```python
import torch

def _softmax(x, axis=-1):
    return torch.softmax(x, dim=axis)
def _gelu(x):
    return torch.nn.functional.gelu(x, approximate="tanh")
def _silu(x):
    return torch.nn.functional.silu(x)
def _sigmoid(x):
    return torch.sigmoid(x)
def _layernorm(x, axis=-1, eps=1e-5):
    m = x.mean(dim=axis, keepdim=True)
    v = x.var(dim=axis, keepdim=True, unbiased=False)
    return (x - m) / torch.sqrt(v + eps)
def _scatter_add(tgt, idx, src, axis=0):
    return tgt.clone().index_add_(axis, idx, src)
def _segment_sum(src, seg, n):
    out = torch.zeros((n,) + src.shape[1:], dtype=src.dtype)
    return out.index_add_(0, seg, src)
def _pad(x, pw):
    flat = tuple(v for pair in reversed(pw) for v in pair)
    return torch.nn.functional.pad(x, flat)

kernel_name = 'interleave_layers__linear_attn_block__linear_kernel_hedgehog__prompt'

def setup_inputs():

    _w = (lambda a: (lambda t: t.to(torch.bfloat16) if t.is_floating_point() else t)(torch.as_tensor(a)))
    def _A_setup():
        B, S, D = 1, 2048, 640
        return {
            "x": _w((lambda *s: torch.randn(*s, dtype=torch.bfloat16) * 0.4)(B, S, D)),
            "wqkv": _w((lambda *s: torch.randn(*s, dtype=torch.bfloat16) * 0.8)(D, 3 * D)),
            "wo": _w((lambda *s: torch.randn(*s, dtype=torch.bfloat16) * 0.8)(D, D)),
        }
    _A_in = _A_setup()

    def _B_setup():
        B, S, D, H = 1, 2048, 640, 32
        Dh = D // H
        return {
            "x": _w((lambda *s: torch.randn(*s, dtype=torch.bfloat16) * 0.4)(B, S, D)),
            "wqkv": _w((lambda *s: torch.randn(*s, dtype=torch.bfloat16) * 0.8)(D, 3 * D)),
            "w_phi": _w((lambda *s: torch.randn(*s, dtype=torch.bfloat16) * 0.8)(H, Dh, Dh) * (Dh ** -0.5)),
            "wo": _w((lambda *s: torch.randn(*s, dtype=torch.bfloat16) * 0.4)(D, D)),
        }
    _B_in = _B_setup()

    return {
        "A_x": _A_in["x"],
        "A_wqkv": _A_in["wqkv"],
        "A_wo": _A_in["wo"],
        "B_x": _B_in["x"],
        "B_wqkv": _B_in["wqkv"],
        "B_w_phi": _B_in["w_phi"],
        "B_wo": _B_in["wo"],
    }

def reference(A_x, A_wqkv, A_wo, B_x, B_wqkv, B_w_phi, B_wo):
    def _A_ref(x, wqkv, wo):
        B, S, D = x.shape
        H = 32; Dh = D // H
        qkv = (lambda x, *d: x.permute(*d))((x @ wqkv).reshape(B, S, 3, H, Dh), 2, 0, 3, 1, 4)
        q, k, v = qkv[0], qkv[1], qkv[2]
        phi = lambda t: torch.where(t > 0, t + 1, torch.exp(t)) + 1e-6
        pq, pk = phi(q), phi(k)
        kv = torch.einsum("bhsd,bhse->bhde", pk, v)
        z = torch.einsum("bhsd->bhd", pk)
        num = torch.einsum("bhqd,bhde->bhqe", pq, kv)
        den = torch.einsum("bhqd,bhd->bhq", pq, z)[..., None] + 1e-6
        o = num / den
        return (lambda x, *d: x.permute(*d))(o, 0, 2, 1, 3).reshape(B, S, D) @ wo

    def _B_ref(x, wqkv, w_phi, wo):
        B, S, D = x.shape
        H = 32; Dh = D // H
        qkv = (lambda x, *d: x.permute(*d))((x @ wqkv).reshape(B, S, 3, H, Dh), 2, 0, 3, 1, 4)
        q, k, v = qkv[0], qkv[1], qkv[2]
        pq = torch.einsum("bhsd,hdf->bhsf", q, w_phi)
        pk = torch.einsum("bhsd,hdf->bhsf", k, w_phi)
        phi_q = torch.concatenate([_softmax(pq, axis=-1), _softmax(-pq, axis=-1)], axis=-1)
        phi_k = torch.concatenate([_softmax(pk, axis=-1), _softmax(-pk, axis=-1)], axis=-1)
        kv = torch.einsum("bhsf,bhsd->bhfd", phi_k, v)
        z  = torch.einsum("bhsf->bhf", phi_k)
        num = torch.einsum("bhqf,bhfd->bhqd", phi_q, kv)
        den = torch.einsum("bhqf,bhf->bhq", phi_q, z)[..., None] + 1e-6
        o = num / den
        return (lambda x, *d: x.permute(*d))(o, 0, 2, 1, 3).reshape(B, S, D) @ wo

    x = A_x
    x = x + _A_ref(_layernorm(x, axis=-1), A_wqkv, A_wo)
    x = x + _B_ref(_layernorm(x, axis=-1), B_wqkv, B_w_phi, B_wo)
    x = x + _A_ref(_layernorm(x, axis=-1), A_wqkv, A_wo)
    x = x + _B_ref(_layernorm(x, axis=-1), B_wqkv, B_w_phi, B_wo)
    return x
```

```python
import re

REG_RE = re.compile(r'\b([vas])(\d+)\b|\b([vas])\[(\d+):(\d+)\]|\b(vcc|exec|m0|scc)\b')

def regs_of(tok):
    out = []
    for m in REG_RE.finditer(tok):
        if m.group(1):
            out.append((m.group(1), int(m.group(2))))
        elif m.group(3):
            for i in range(int(m.group(4)), int(m.group(5)) + 1):
                out.append((m.group(3), i))
        else:
            out.append((m.group(6), 0))
    return out

TRANS = ('v_exp_f32', 'v_log_f32', 'v_rcp_f32', 'v_rsq_f32', 'v_sqrt_f32', 'v_sin_f32', 'v_cos_f32')

def split_ops(s):
    ops, d, cur = [], 0, ''
    for ch in s:
        if ch == '[': d += 1
        if ch == ']': d -= 1
        if ch == ',' and d == 0:
            ops.append(cur.strip()); cur = ''
        else:
            cur += ch
    if cur.strip(): ops.append(cur.strip())
    return ops

class Ins:
    __slots__ = ('op', 'text', 'kind', 'w', 'r', 'passes', 'srcC', 'srcAB', 'wide_store', 'trans', 'dpp', 'dot')

def parse(text):
    t = text.split(';')[0].strip()
    sp = t.split(None, 1)
    op = sp[0]
    rest = sp[1] if len(sp) > 1 else ''
    ops = split_ops(rest)
    I = Ins(); I.op = op; I.text = text; I.passes = 0; I.srcC = []; I.srcAB = []; I.wide_store = []
    I.trans = op.replace('_e32', '').replace('_e64', '') in TRANS
    I.dpp = ('row_' in t or 'quad_perm' in t or 'wave_' in t or '_dpp' in op)
    I.dot = op.startswith('v_dot')
    w, r = [], []
    if op.startswith('v_mfma'):
        I.kind = 'mfma'
        I.passes = 8 if '32x32x16' in op else 4
        w = regs_of(ops[0]); I.srcAB = regs_of(ops[1]) + regs_of(ops[2]); I.srcC = regs_of(ops[3])
        r = I.srcAB + I.srcC
    elif op.startswith('v_'):
        I.kind = 'valu'
        if op.startswith('v_permlane32_swap') or op.startswith('v_permlane16_swap') or op.startswith('v_swap'):
            w = regs_of(ops[0]) + regs_of(ops[1]); r = list(w)
        elif op.startswith('v_cmp'):
            w = regs_of(ops[0]); r = [x for o in ops[1:] for x in regs_of(o)]
        elif '_co_' in op:
            w = regs_of(ops[0]) + regs_of(ops[1]); r = [x for o in ops[2:] for x in regs_of(o)]
        elif op.startswith('v_nop'):
            pass
        else:
            w = regs_of(ops[0]); r = [x for o in ops[1:] for x in regs_of(o)]
            if op.startswith('v_fmac') or op.startswith('v_mac') or op.startswith('v_dot2c') or op.startswith('v_writelane'):
                r += w
            if op.startswith('v_cndmask') and len(ops) == 3:
                r.append(('vcc', 0))
            if I.dpp: r += w
    elif op.startswith(('buffer_', 'global_', 'flat_', 'scratch_')):
        I.kind = 'vmem'
        islds = (' lds' in t) or ('_lds_' in op)
        if 'load' in op and not islds:
            w = regs_of(ops[0]); r = [x for o in ops[1:] for x in regs_of(o)]
        elif 'atomic' in op and ' sc0' in t:
            w = regs_of(ops[0]); r = [x for o in ops for x in regs_of(o)]
        else:
            r = [x for o in ops for x in regs_of(o)]
            if islds: r.append(('m0', 0))
            if 'store' in op and ('x3' in op or 'x4' in op):
                I.wide_store = regs_of(ops[1]) if op.startswith('global_') else regs_of(ops[0])
    elif op.startswith('ds_'):
        I.kind = 'ds'
        if 'read' in op or 'permute' in op or 'swizzle' in op or '_rtn' in op:
            w = regs_of(ops[0]); r = [x for o in ops[1:] for x in regs_of(o)]
        else:
            r = [x for o in ops for x in regs_of(o)]
    elif op.startswith('s_load') or op.startswith('s_memtime') or op.startswith('s_memrealtime') or op.startswith('s_buffer_load'):
        I.kind = 'smem'
        w = regs_of(ops[0]); r = [x for o in ops[1:] for x in regs_of(o)]
    elif op.startswith('s_'):
        I.kind = 'salu'
        if op.startswith(('s_nop', 's_waitcnt', 's_barrier', 's_endpgm', 's_branch', 's_cbranch', 's_setprio', 's_sleep')):
            pass
        elif op.startswith('s_cmp') or op.startswith('s_bitcmp'):
            r = [x for o in ops for x in regs_of(o)]
        else:
            w = regs_of(ops[0]); r = [x for o in ops[1:] for x in regs_of(o)]
            if 'saveexec' in op: w.append(('exec', 0))
    else:
        raise ValueError('unknown instr ' + text)
    I.w = set(w); I.r = set(r)
    return I

class Asm:
    def __init__(self):
        self.lines = []
        self.hist = []
        self.pos = 0
        self.vm = []
        self.lg = []
        self.sm = []
        self.nops = 0
    def raw(self, s):
        self.lines.append(s)
    def comment(self, s):
        self.lines.append('    ; ' + s)
    def label(self, name):
        self.lines.append(name + ':')
    def need(self, I):
        n = 0
        for (P, ppos) in self.hist:
            d = self.pos - ppos - 1
            req = 0
            pw = P.w
            if P.kind == 'valu':
                vw = {x for x in pw if x[0] in 'va'}
                sw = {x for x in pw if x[0] in ('s', 'vcc', 'exec')}
                if I.kind == 'mfma' and vw & I.r: req = max(req, 2)
                if I.kind == 'valu':
                    if P.trans and (vw & I.r) and not I.trans: req = max(req, 1)
                    if P.trans and (vw & I.r) and I.trans: req = max(req, 1)
                    if I.op.startswith(('v_readlane', 'v_readfirstlane')) and vw & I.r: req = max(req, 1)
                    if I.op.startswith('v_permlane') and vw & I.r: req = max(req, 2)
                    if I.dpp and vw & I.r: req = max(req, 2)
                    if sw & I.r: req = max(req, 4 if I.op.startswith(('v_readlane', 'v_writelane')) else 2)
                    if P.dot and (vw & (I.r | I.w)):
                        if not (I.op == P.op): req = max(req, 3)
                        else: req = max(req, 3 if False else 0)
                    if ('exec', 0) in sw: req = max(req, 5)
                if P.dot and I.kind in ('vmem', 'ds', 'mfma') and (vw & I.r): req = max(req, 3)
                if P.trans and I.kind in ('vmem', 'ds') and (vw & I.r): req = max(req, 1)
                if I.kind == 'vmem' and sw & I.r: req = max(req, 5)
                if I.kind == 'salu' and sw & I.r: req = max(req, 1)
                if I.kind == 'mfma' and ('exec', 0) in sw: req = max(req, 4)
            elif P.kind == 'mfma':
                big = 12 if P.passes == 8 else 8
                if I.kind == 'mfma':
                    if pw & set(I.srcAB): req = max(req, big)
                    c = set(I.srcC)
                    if pw & c:
                        if c == pw and I.passes == P.passes: pass
                        else: req = max(req, big - 2)
                    elif pw & I.w: req = max(req, big)
                elif I.kind in ('valu', 'vmem', 'ds'):
                    if pw & (I.r | I.w): req = max(req, big)
                if I.kind in ('valu',) and set(P.srcC) & I.w: req = max(req, 7 if P.passes == 8 else 3)
                if I.kind in ('vmem', 'ds') and set(P.srcC) & I.w: req = max(req, 7 if P.passes == 8 else 3)
            elif P.kind == 'vmem':
                if P.wide_store and (set(P.wide_store) & I.w): req = max(req, 2)
            elif P.kind == 'salu':
                if ('m0', 0) in pw and ('m0', 0) in I.r and I.kind == 'vmem': req = max(req, 1)
            n = max(n, req - d)
        return n
    def check_pending(self, I):
        touched = I.r | I.w
        for q, nm in ((self.vm, 'vm'), (self.lg, 'lgkm')):
            for tag, regs in q:
                if regs & touched:
                    raise RuntimeError(f'pending {nm} load {tag} regs touched by: {I.text}')
        if self.sm and (set(self.sm) & touched):
            raise RuntimeError(f'pending smem regs touched by: {I.text}')
    def I(self, text, tag=None):
        I = parse(text)
        self.check_pending(I)
        n = self.need(I)
        while n > 0:
            k = min(n, 8)
            self.lines.append(f'    s_nop {k-1}')
            self.pos += k; n -= k; self.nops += k
        self.lines.append('    ' + text)
        if I.op == 's_nop':
            self.pos += int(text.split()[1]) + 1
        else:
            self.hist.append((I, self.pos))
            self.pos += 1
        self.hist = [(p, q) for (p, q) in self.hist if self.pos - q < 16]
        if I.kind == 'vmem':
            self.vm.append((tag, {x for x in I.w}))
        elif I.kind == 'ds':
            self.lg.append((tag, {x for x in I.w}))
        elif I.kind == 'smem':
            self.sm += list(I.w)
        return I
    def __call__(self, text, tag=None):
        for ln in text.strip().split('\n'):
            ln = ln.strip()
            if ln: self.I(ln, tag)
    def _cnt(self, q, tag):
        idx = [i for i, (t, _) in enumerate(q) if t == tag]
        if not idx: return None
        return len(q) - 1 - max(idx)
    def wait_vm(self, tag=None):
        n = 0 if tag is None else self._cnt(self.vm, tag)
        if n is None: return
        assert n <= 63, f'vmcnt {n} too large'
        self.I(f's_waitcnt vmcnt({n})')
        self.vm = self.vm[len(self.vm) - n:] if n else []
    def wait_lg(self, tag=None):
        n = 0 if tag is None else self._cnt(self.lg, tag)
        if n is None: return
        if self.sm: n = 0
        assert n <= 15, f'lgkmcnt {n} too large'
        self.I(f's_waitcnt lgkmcnt({n})')
        self.lg = self.lg[len(self.lg) - n:] if n else []
        if n == 0: self.sm = []
    def wait_all(self):
        self.I('s_waitcnt vmcnt(0) lgkmcnt(0)')
        self.vm = []; self.lg = []; self.sm = []
    def text(self):
        return '\n'.join(self.lines) + '\n'

def vr(b, n=1, p='v'):
    return f'{p}{b}' if n == 1 else f'{p}[{b}:{b+n-1}]'
def ar(b, n=1):
    return vr(b, n, 'a')
def sr(b, n=1):
    return vr(b, n, 's')

def kernel_text(name, body, vgpr, accum, sgpr=102):
    code = f'.globl {name}\n.p2align 8\n.type {name},@function\n{name}:\n' + body
    desc = f'''.p2align 6
.amdhsa_kernel {name}
  .amdhsa_next_free_vgpr {vgpr}
  .amdhsa_next_free_sgpr {sgpr}
  .amdhsa_accum_offset {accum}
  .amdhsa_group_segment_fixed_size 0
  .amdhsa_kernarg_size 80
  .amdhsa_user_sgpr_count 2
  .amdhsa_user_sgpr_kernarg_segment_ptr 1
  .amdhsa_system_sgpr_workgroup_id_x 1
.end_amdhsa_kernel
'''
    return code, desc
```

```python
import sys
from emit import *
from lay import *
import k0
HDR = open('interleave_layers__linear_attn_block__linear_kernel_hedgehog__prompt.s.ref').read().split('; @launch')[0]

def build(kernels, launches, path):
    s = HDR
    for n, g, l in launches:
        s += f'; @launch kernel={n} grid=({g},1,1) block=(256,1,1) lds={l}\n'
    s += '.amdgcn_target "amdgcn-amd-amdhsa--gfx950"\n.text\n'
    d = '.section .rodata,"a"\n'
    for n, t, v, a in kernels:
        c, dd = kernel_text(n, t, v, a)
        s += c; d += dd
    open(path, 'w').write(s + d)

if __name__ == '__main__':
    ks = [('k0_kernel', k0.gen_k0(), 256, 256)]
    ls = [('k0_kernel', k0.K0_GRID, k0.K0_LDS)]
    build(ks, ls, 'out_k0.s')
```

```python
from emit import *
from lay import *

NA, NB, NC = 160, 80, 128
K0_GRID = NA + NB + NC
K0_LDS = 40960

def srd(A, d, lo, hi, size):
    A(f's_mov_b32 s{d}, s{lo}')
    A(f's_and_b32 s{d+1}, s{hi}, 0xffff')
    A(f's_mov_b32 s{d+2}, {size}')
    A(f's_mov_b32 s{d+3}, 0x00020000')

def gen_k0():
    A = Asm()
    A('s_load_dwordx16 s[4:19], s[0:1], 0')
    A('s_load_dwordx4 s[20:23], s[0:1], 64')
    A(f's_cmp_ge_u32 s2, {K0_GRID}')
    A('s_cbranch_scc1 K0_END')
    A('v_and_b32 v1, 63, v0')
    A('v_lshrrev_b32 v2, 6, v0')
    A('s_nop 0')
    A('v_readfirstlane_b32 s3, v2')
    A.wait_lg()
    srd(A, 24, 22, 23, WS_SIZE)
    A(f's_cmp_ge_u32 s2, {NA}')
    A('s_cbranch_scc1 K0_BC')
    A('s_cmp_ge_u32 s2, 80')
    A('s_cselect_b32 s36, 1, 0')
    A('s_cselect_b32 s28, s12, s6')
    A('s_cselect_b32 s29, s13, s7')
    A('s_and_b32 s29, s29, 0xffff')
    A(f's_mov_b32 s30, {640*1920*2}')
    A('s_mov_b32 s31, 0x00020000')
    srd(A, 32, 14, 15, 32*400*2)
    A('s_mul_i32 s37, s36, 80')
    A('s_sub_u32 s37, s2, s37')
    A('s_mul_i32 s38, s37, 205')
    A('s_lshr_b32 s38, s38, 10')
    A('s_mul_i32 s39, s38, 5')
    A('s_sub_u32 s39, s37, s39')
    A('v_and_b32 v3, 31, v1')
    A('v_lshrrev_b32 v4, 5, v1')
    A('v_and_b32 v5, 0x13, v3')
    A('v_bfe_u32 v6, v3, 2, 1')
    A('v_lshl_or_b32 v5, v6, 3, v5')
    A('v_bfe_u32 v6, v3, 3, 1')
    A('v_lshl_or_b32 v5, v6, 2, v5')
    A('s_lshl_b32 s40, s39, 2')
    A('s_add_u32 s40, s40, s3')
    A('s_lshl_b32 s41, s40, 5')
    A('v_add_u32 v5, s41, v5')
    A('v_mul_u32_u24 v5, 3840, v5')
    A('v_lshl_add_u32 v6, v4, 4, v5')
    def off(cc):
        part = cc // 5
        base = [1280, 2560, 0][part]
        return base + 16 * (cc % 5)
    A(f'v_mul_u32_u24 v7, {off(5)-off(4)}, v4')
    A('v_add_u32 v7, v7, v5')
    A('s_mul_i32 s42, s38, 80')
    for u in range(8):
        va = 'v7' if u == 2 else ('v5' if u == 7 else 'v6')
        A(f'buffer_load_dwordx4 {vr(16+4*u,4)}, {va}, s[28:31], s42 offen offset:{off(2*u)}', tag='wa')
    A('s_mul_i32 s43, s38, 1600')
    A('v_lshlrev_b32 v8, 1, v0')
    for rr in range(4):
        A(f'buffer_load_ushort v{48+rr}, v8, s[32:35], s43 offen offset:{512*rr}', tag='wp')
    A('v_lshlrev_b32 v9, 4, v0')
    for k in range(4): A(f'v_mov_b32 v{52+k}, 0')
    for k in range(9):
        A(f'ds_write_b128 v9, v[52:55] offset:{4096*k}')
    A('v_lshrrev_b32 v10, 5, v0')
    A('v_bfe_u32 v11, v0, 3, 2')
    A('v_and_b32 v12, 3, v0')
    A('v_lshl_add_u32 v12, v11, 2, v12')
    A('v_lshl_add_u32 v12, v10, 4, v12')
    A('v_mul_u32_u24 v13, 13, v12')
    A('v_lshrrev_b32 v13, 8, v13')
    A('v_bfe_u32 v14, v0, 2, 1')
    A('v_add_u32 v14, v14, v13')
    A('v_mul_u32_u24 v14, 20, v14')
    A('v_add_u32 v14, v14, v12')
    A('v_mul_u32_u24 v15, 272, v0')
    A('v_lshl_add_u32 v15, v14, 1, v15')
    A('v_cmp_gt_u32 vcc, 0x80, v0')
    A('v_cmp_gt_u32 s[44:45], 60, v12')
    A('v_cmp_eq_u32 s[46:47], 1, v13')
    A('s_cmp_eq_u32 s36, 0')
    A('s_cselect_b64 s[48:49], -1, s[46:47]')
    A('s_and_b64 s[44:45], s[44:45], vcc')
    A('s_and_b64 s[44:45], s[44:45], s[48:49]')
    A('v_mov_b32 v56, 0x3f80')
    A.wait_lg()
    A('s_barrier')
    A('s_mov_b64 exec, s[44:45]')
    A('ds_write_b16 v15, v56')
    A('s_mov_b64 exec, -1')
    A('s_cmp_eq_u32 s36, 0')
    A('s_cbranch_scc1 K0_A_NOPHI')
    A.wait_vm('wp')
    for rr in range(4):
        A(f'v_add_u32 v10, {256*rr}, v0')
        A('v_cmp_le_u32 vcc, 400, v10')
        A('v_cndmask_b32 v11, 0, 1, vcc')
        A('v_mul_u32_u24 v12, 400, v11')
        A('v_sub_u32 v12, v10, v12')
        A('v_mul_u32_u24 v13, 205, v12')
        A('v_lshrrev_b32 v13, 12, v13')
        A('v_mul_u32_u24 v14, 20, v13')
        A('v_sub_u32 v14, v12, v14')
        A('v_mul_u32_u24 v15, 20, v11')
        A('v_add_u32 v15, v15, v13')
        if rr == 3:
            A('v_cmp_gt_u32 vcc, 800, v10')
            A('s_mov_b64 exec, vcc')
        for part in (0, 2):
            A(f'v_add_u32 v57, {20*part}, v14')
            A('v_lshrrev_b32 v58, 4, v57')
            A('v_bfe_u32 v59, v57, 2, 2')
            A('v_and_b32 v57, 3, v57')
            A('v_lshl_add_u32 v57, v58, 5, v57')
            A('v_lshl_add_u32 v57, v59, 3, v57')
            A('v_lshl_add_u32 v57, v11, 2, v57')
            A('v_mul_u32_u24 v57, 272, v57')
            A('v_lshl_add_u32 v57, v15, 1, v57')
            A(f'ds_write_b16 v57, v{48+rr} offset:{80*part}')
        if rr == 3:
            A('s_mov_b64 exec, -1')
    A.label('K0_A_NOPHI')
    A.wait_all()
    A('s_barrier')
    A('v_mul_u32_u24 v9, 272, v3')
    A('v_lshl_add_u32 v9, v4, 4, v9')
    need = {0: range(0, 3), 1: range(0, 5), 2: range(2, 8), 3: range(5, 8)}
    lst = [(t, u) for t in range(4) for u in need[t]]
    for n, (t, u) in enumerate(lst):
        A(f'ds_read_b128 {vr(128+4*n,4)}, v9 offset:{8704*t+32*u}', tag=f'b{n}')
        if n == 8: A.wait_lg('b3')
    for n, (t, u) in enumerate(lst):
        A.wait_lg(f'b{n}')
        c = '0' if u == need[t][0] else vr(64+16*t, 16)
        A(f'v_mfma_f32_32x32x16_bf16 {vr(64+16*t,16)}, {vr(16+4*u,4)}, {vr(128+4*n,4)}, {c}')
    A('s_lshl_b32 s43, s38, 2')
    A('s_mul_i32 s43, s43, 40')
    A('s_lshl_b32 s44, s40, 1')
    A('s_add_u32 s43, s43, s44')
    A('s_lshl_b32 s43, s43, 10')
    A(f's_mul_i32 s44, s36, {WF["B"]-WF["A"]}')
    A('s_add_u32 s43, s43, s44')
    A('v_lshlrev_b32 v8, 4, v1')
    A('v_lshrrev_b32 v10, 5, v0')
    A('v_lshlrev_b32 v10, 9, v10')
    A('v_lshl_add_u32 v10, v3, 2, v10')
    for t in range(4):
        pk = 200 + 8 * t
        for x in range(8):
            A(f'v_cvt_pk_bf16_f32 v{pk+x}, v{64+16*t+2*x}, v{64+16*t+2*x+1}')
        A(f'buffer_store_dwordx4 {vr(pk,4)}, v8, s[24:27], s43 offen')
        A(f'buffer_store_dwordx4 {vr(pk+4,4)}, v8, s[24:27], s43 offen offset:1024')
        A(f's_add_u32 s43, s43, {40*1024}')
        A(f'v_lshlrev_b32 v11, 16, v{pk}')
        A(f'v_and_b32 v12, 0xffff0000, v{pk}')
        for x in range(1, 8):
            A(f'v_lshlrev_b32 v13, 16, v{pk+x}')
            A(f'v_and_b32 v14, 0xffff0000, v{pk+x}')
            A('v_add_f32 v11, v11, v13')
            A('v_add_f32 v12, v12, v14')
        A('v_add_f32 v11, v11, v12')
        A(f'ds_write_b32 v10, v11 offset:{36864+128*t}')
    A.wait_lg()
    A('s_barrier')
    A('s_cmp_ge_u32 s3, 2')
    A('s_cbranch_scc1 K0_END')
    A('v_lshlrev_b32 v10, 2, v0')
    for k in range(8):
        A(f'ds_read_b32 v{16+k}, v10 offset:{36864+512*k}')
    A.wait_lg()
    for k in range(1, 8):
        A(f'v_add_f32 v16, v16, v{16+k}')
    A('v_cvt_pk_bf16_f32 v17, v16, v16')
    A('v_lshlrev_b32 v18, 16, v17')
    A('v_sub_f32 v16, v16, v18')
    A('v_cvt_pk_bf16_f32 v19, v16, v16')
    A('v_lshlrev_b32 v18, 16, v19')
    A('v_sub_f32 v16, v16, v18')
    A('v_cvt_pk_bf16_f32 v20, v16, v16')
    A('v_mov_b32 v21, 0')
    A('v_lshrrev_b32 v10, 5, v0')
    A('v_lshlrev_b32 v10, 10, v10')
    A('v_lshl_add_u32 v10, v3, 4, v10')
    A('s_lshl_b32 s43, s38, 12')
    A(f's_mul_i32 s44, s36, {WC["B"]-WC["A"]}')
    A('s_add_u32 s43, s43, s44')
    A(f's_add_u32 s43, s43, {WC["A"]}')
    A('s_mul_i32 s44, s39, 3')
    for k, reg in ((0, 17), (1, 19), (2, 20), (3, 21)):
        if k == 3:
            A('s_cmp_lg_u32 s39, 4')
            A('s_cbranch_scc1 K0_END')
        A(f's_add_u32 s45, s44, {k}')
        A('s_lshr_b32 s46, s45, 3')
        A('s_lshl_b32 s46, s46, 9')
        A('s_and_b32 s45, s45, 7')
        A('s_lshl_b32 s45, s45, 1')
        A('s_add_u32 s45, s45, s46')
        A('s_add_u32 s45, s45, s43')
        A(f'buffer_store_short v{reg}, v10, s[24:27], s45 offen')
    A('s_endpgm')
    A.vm = []; A.lg = []
    A.label('K0_BC')
    A(f's_cmp_ge_u32 s2, {NA+NB}')
    A('s_cbranch_scc1 K0_C')
    A(f's_sub_u32 s37, s2, {NA}')
    A('s_cmp_ge_u32 s37, 40')
    A('s_cselect_b32 s36, 1, 0')
    A('s_cselect_b32 s28, s16, s8')
    A('s_cselect_b32 s29, s17, s9')
    A('s_and_b32 s29, s29, 0xffff')
    A(f's_mov_b32 s30, {640*640*2}')
    A('s_mov_b32 s31, 0x00020000')
    A('s_mul_i32 s38, s36, 40')
    A('s_sub_u32 s37, s37, s38')
    A('s_cmp_ge_u32 s37, 20')
    A('s_cselect_b32 s38, 1, 0')
    A('s_mul_i32 s39, s38, 20')
    A('s_sub_u32 s37, s37, s39')
    A('s_mul_i32 s39, s37, 205')
    A('s_lshr_b32 s39, s39, 10')
    A('s_mul_i32 s40, s39, 5')
    A('s_sub_u32 s40, s37, s40')
    A('s_lshl_b32 s41, s38, 2')
    A('s_add_u32 s41, s41, s3')
    A('v_lshrrev_b32 v3, 4, v1')
    A('v_and_b32 v4, 15, v1')
    A('v_mul_u32_u24 v3, 6400, v3')
    A('v_lshl_add_u32 v3, v4, 1, v3')
    A('s_mul_i32 s42, s41, 160')
    A(f's_mul_i32 s43, s39, {160*1280}')
    A('s_add_u32 s42, s42, s43')
    for j in range(8):
        A('s_lshl_b32 s44, s40, 3')
        A(f's_add_u32 s44, s44, {j}')
        A('s_mul_i32 s45, s44, 205')
        A('s_lshr_b32 s45, s45, 10')
        A('s_mul_i32 s45, s45, 15')
        A('s_add_u32 s44, s44, s45')
        A('s_mul_i32 s44, s44, 1280')
        A(f's_add_u32 s{48+j}, s44, s42')
        for mt in range(5):
            A(f'buffer_load_ushort v{16+8*mt+j}, v3, s[28:31], s{48+j} offen offset:{32*mt}')
    A('s_lshl_b32 s44, s41, 2')
    A('s_mul_i32 s44, s44, 5')
    A('s_add_u32 s44, s44, s37')
    A('s_mul_i32 s44, s44, 5120')
    A(f's_mul_i32 s45, s36, {WOF["B"]-WOF["A"]}')
    A('s_add_u32 s44, s44, s45')
    A(f's_add_u32 s44, s44, {WOF["A"]}')
    A('v_lshlrev_b32 v8, 4, v1')
    A.wait_vm()
    for mt in range(5):
        for x in range(4):
            A(f'v_lshl_or_b32 v{64+4*mt+x}, v{16+8*mt+2*x+1}, 16, v{16+8*mt+2*x}')
        if mt < 4:
            A(f'buffer_store_dwordx4 {vr(64+4*mt,4)}, v8, s[24:27], s44 offen offset:{1024*mt}')
        else:
            A('s_add_u32 s44, s44, 4096')
            A(f'buffer_store_dwordx4 {vr(64+4*mt,4)}, v8, s[24:27], s44 offen')
    A('s_endpgm')
    A.vm = []; A.lg = []
    A.label('K0_C')
    A(f's_sub_u32 s37, s2, {NA+NB}')
    srd(A, 28, 4, 5, 2048*640*2)
    A('s_lshl_b32 s38, s37, 2')
    A('s_add_u32 s38, s38, s3')
    A('s_lshr_b32 s39, s38, 3')
    A('s_and_b32 s40, s38, 7')
    A('v_and_b32 v3, 31, v1')
    A('v_lshrrev_b32 v4, 5, v1')
    A('v_mul_u32_u24 v5, 1280, v3')
    A('v_lshl_add_u32 v5, v4, 4, v5')
    A(f's_mul_i32 s41, s39, {32*1280}')
    A('s_mul_i32 s42, s40, 160')
    A('s_add_u32 s41, s41, s42')
    for s in range(5):
        A(f'buffer_load_dwordx4 {vr(16+4*s,4)}, v5, s[28:31], s41 offen offset:{32*s}')
    for k in range(4): A(f'v_mov_b32 v{52+k}, 0')
    A('v_lshlrev_b32 v6, 4, v0')
    A('s_lshl_b32 s42, s37, 12')
    A(f's_add_u32 s42, s42, {KV0}')
    A('buffer_store_dwordx4 v[52:55], v6, s[24:27], s42 offen')
    A('s_mul_i32 s42, s39, 40')
    A('s_mul_i32 s43, s40, 5')
    A('s_add_u32 s42, s42, s43')
    A('s_lshl_b32 s42, s42, 10')
    A(f's_add_u32 s42, s42, {XF}')
    A('v_lshlrev_b32 v8, 4, v1')
    A.wait_vm()
    for s in range(5):
        if s < 4:
            A(f'buffer_store_dwordx4 {vr(16+4*s,4)}, v8, s[24:27], s42 offen offset:{1024*s}')
        else:
            A('s_add_u32 s42, s42, 4096')
            A(f'buffer_store_dwordx4 {vr(16+4*s,4)}, v8, s[24:27], s42 offen')
    for k in range(20):
        A(f'v_lshlrev_b32 v{64+2*k}, 16, v{16+k}')
        A(f'v_and_b32 v{65+2*k}, 0xffff0000, v{16+k}')
    A('v_add_f32 v10, v64, v65')
    A('v_add_f32 v11, v66, v67')
    for k in range(2, 20):
        A(f'v_add_f32 v10, v10, v{64+2*k}')
        A(f'v_add_f32 v11, v11, v{65+2*k}')
    A('v_add_f32 v10, v10, v11')
    A('v_mov_b32 v11, v10')
    A('v_permlane32_swap_b32 v10, v11')
    A('v_add_f32 v10, v10, v11')
    A('v_mul_f32 v10, 0x3c4ccccd, v10')
    A('v_mov_b32 v12, 0')
    A('v_mov_b32 v13, 0')
    for k in range(20):
        A(f'v_sub_f32 v14, v{64+2*k}, v10')
        A(f'v_sub_f32 v15, v{65+2*k}, v10')
        A('v_fmac_f32 v12, v14, v14')
        A('v_fmac_f32 v13, v15, v15')
    A('v_add_f32 v12, v12, v13')
    A('v_mov_b32 v13, v12')
    A('v_permlane32_swap_b32 v12, v13')
    A('v_add_f32 v11, v12, v13')
    A('v_lshlrev_b32 v5, 6, v3')
    A('s_lshl_b32 s42, s39, 11')
    A('s_lshl_b32 s43, s40, 3')
    A('s_add_u32 s42, s42, s43')
    A(f's_add_u32 s42, s42, {ST}')
    A('s_mov_b64 exec, 0xffffffff')
    A('buffer_store_dwordx2 v[10:11], v5, s[24:27], s42 offen')
    A.label('K0_END')
    A('s_endpgm')
    return A.text()
```

```python
from emit import *
from lay import *

K1_LDS = 163840
ACC = 64
WB = 128
WCR = 192
STR = 208
PK = 216
TMP = 8
V_LANE16 = 1
V_R = 2
V_RL = 3
V_NM = 4
V_DS = 48
V_REC = 49
V_TRA = 50; V_TRB = 51
V_AT0 = 52; V_AT1 = 53; V_AT2 = 54; V_AT3 = 55
V_PQ0 = 56; V_PQ1 = 57
X1 = 58; X2 = 59; X3 = 60; X4 = 61; X5 = 62
RS = 288

def emit_items(A, items):
    for it in items:
        if isinstance(it, str): A(it)
        elif it[0] == 'i': A(it[1], tag=it[2])
        elif it[0] == 'wvm': A.wait_vm(it[1])
        elif it[0] == 'wlg': A.wait_lg(it[1])
        else: raise ValueError(it)

def cost(it):
    if isinstance(it, str):
        return 2 if it.startswith(('v_exp', 'v_rcp', 'v_sqrt', 'v_rsq')) else 1
    return 1

def merge(groups, fill, budget):
    out = []
    fill = list(fill)
    for g in groups:
        out += g
        b = budget
        while fill and b > 0:
            it = fill.pop(0)
            out.append(it); b -= cost(it)
    return out, fill

def phiA_items(src, dst, sc):
    it = []
    n = len(src)
    for b0 in range(0, n, 4):
        blk = src[b0:b0+4]
        t = [TMP + 2*k for k in range(len(blk))]
        for a, tt in zip(blk, t): it.append(f'v_mul_f32 v{tt}, v{a}, v{V_RL}')
        for a, tt in zip(blk, t): it.append(f'v_max_f32 v{tt+1}, 0, v{a}')
        for a, tt in zip(blk, t): it.append(f'v_exp_f32_e64 v{tt}, v{tt} clamp')
        for a, tt in zip(blk, t): it.append(f'v_fma_f32 v{tt+1}, v{tt+1}, v{V_R}, s{sc}')
        for a, tt in zip(blk, t): it.append(f'v_add_f32 v{tt}, v{tt}, v{tt+1}')
        for k in range(0, len(blk), 2):
            it.append(f'v_cvt_pk_bf16_f32 v{dst[(b0+k)//2]}, v{t[k]}, v{t[k+1]}')
    return it

def phiB_items(src, dst):
    it = []
    it.append(f'v_max3_f32 v{X1}, v{src[0]}, v{src[1]}, v{src[2]}')
    it.append(f'v_min3_f32 v{X2}, v{src[0]}, v{src[1]}, v{src[2]}')
    for k in range(3, 19, 2):
        it.append(f'v_max3_f32 v{X1}, v{X1}, v{src[k]}, v{src[k+1]}')
        it.append(f'v_min3_f32 v{X2}, v{X2}, v{src[k]}, v{src[k+1]}')
    it.append(f'v_max_f32 v{X1}, v{X1}, v{src[19]}')
    it.append(f'v_min_f32 v{X2}, v{X2}, v{src[19]}')
    it.append(f'v_mul_f32_e64 v{X1}, -v{X1}, v{V_RL}')
    it.append(f'v_mul_f32 v{X2}, v{X2}, v{V_RL}')
    P = [TMP + k for k in range(20)]; N = [TMP + 20 + k for k in range(20)]
    for b0 in range(0, 20, 4):
        for k in range(b0, b0+4):
            it.append(f'v_fma_f32 v{P[k]}, v{src[k]}, v{V_RL}, v{X1}')
            it.append(f'v_fma_f32 v{N[k]}, -v{src[k]}, v{V_RL}, v{X2}')
        for k in range(b0, b0+4):
            it.append(f'v_exp_f32 v{P[k]}, v{P[k]}')
            it.append(f'v_exp_f32 v{N[k]}, v{N[k]}')
        def addblk(bb):
            r = []
            for k in range(bb, bb+4):
                if k == 0: continue
                if k == 1:
                    r.append(f'v_add_f32 v{X3}, v{P[0]}, v{P[1]}'); r.append(f'v_add_f32 v{X4}, v{N[0]}, v{N[1]}')
                else:
                    r.append(f'v_add_f32 v{X3}, v{X3}, v{P[k]}'); r.append(f'v_add_f32 v{X4}, v{X4}, v{N[k]}')
            return r
        if b0 > 0: it += addblk(b0 - 4)
    it += addblk(16)
    it.append(f'v_rcp_f32 v{X3}, v{X3}')
    it.append(f'v_rcp_f32 v{X4}, v{X4}')
    it.append('s_nop 0')
    for k in range(0, 20, 2):
        it.append(f'v_mul_f32 v{P[k]}, v{P[k]}, v{X3}')
        it.append(f'v_mul_f32 v{P[k+1]}, v{P[k+1]}, v{X3}')
        it.append(f'v_mul_f32 v{N[k]}, v{N[k]}, v{X4}')
        it.append(f'v_mul_f32 v{N[k+1]}, v{N[k+1]}, v{X4}')
        it.append(f'v_cvt_pk_bf16_f32 v{dst[k//2]}, v{P[k]}, v{P[k+1]}')
        it.append(f'v_cvt_pk_bf16_f32 v{dst[10+k//2]}, v{N[k]}, v{N[k+1]}')
    return it

def scale_items(src, dst):
    it = []
    for k in range(0, len(src), 2):
        it.append(f'v_mul_f32 v{src[k]}, v{src[k]}, v{V_R}')
        it.append(f'v_mul_f32 v{src[k+1]}, v{src[k+1]}, v{V_R}')
    for k in range(0, len(src), 2):
        it.append(f'v_cvt_pk_bf16_f32 v{dst[k//2]}, v{src[k]}, v{src[k+1]}')
    return it

def gen_k1(L, name, PD=4):
    T = 'AB'[L & 1]
    F = 20 if T == 'A' else 40
    NT = 2 if T == 'A' else 3
    HS = 2048 if T == 'A' else 4096
    NU = 20 if T == 'A' else 40
    A = Asm()
    A('s_load_dwordx2 s[4:5], s[0:1], 72')
    A('s_cmp_ge_u32 s2, 256')
    A(f's_cbranch_scc1 {name}_END')
    A('v_lshrrev_b32 v2, 6, v0')
    A('v_and_b32 v250, 63, v0')
    A('v_readfirstlane_b32 s3, v2')
    A(f'v_lshlrev_b32 v{V_LANE16}, 4, v250')
    A('s_and_b32 s14, s2, 7')
    A('s_lshr_b32 s15, s2, 3')
    A('s_lshr_b32 s12, s14, 1')
    A('s_lshl_b32 s12, s12, 2')
    A('s_and_b32 s16, s15, 3')
    A('s_add_u32 s12, s12, s16')
    A('s_and_b32 s13, s14, 1')
    A('s_lshl_b32 s13, s13, 3')
    A('s_lshr_b32 s16, s15, 2')
    A('s_add_u32 s13, s13, s16')
    A('s_lshl_b32 s17, s12, 2')
    A('s_add_u32 s17, s17, s3')
    A('s_mul_i32 s18, s17, 40960')
    A(f's_add_u32 s18, s18, {XF}')
    A('s_mul_i32 s19, s13, 163840')
    A(f's_add_u32 s19, s19, {WF[T]}')
    A('s_lshr_b32 s20, s3, 1')
    A('s_mul_i32 s20, s20, 40960')
    A('s_and_b32 s21, s3, 1')
    A('s_lshl_b32 s21, s21, 11')
    A('s_add_u32 s20, s20, s21')
    A('s_add_u32 s21, s20, s19')
    A('s_lshl_b32 s22, s3, 11')
    A('s_add_u32 s23, s22, s19')
    A.wait_lg()
    A('s_mov_b32 s8, s4')
    A('s_and_b32 s9, s5, 0xffff')
    A(f's_mov_b32 s10, {WS_SIZE}')
    A('s_mov_b32 s11, 0x00020000')
    groups = []
    for c in range(10):
        g = [f's_add_u32 m0, s20, {4096*c}',
             f's_add_u32 s24, s21, {4096*c}',
             ('i', f'buffer_load_dwordx4 v{V_LANE16}, s[8:11], s24 offen lds', f'c{c}'),
             ('i', f'buffer_load_dwordx4 v{V_LANE16}, s[8:11], s24 offen offset:1024 lds', f'c{c}'),
             f's_add_u32 s25, s18, {4096*c}']
        for k in range(4):
            g.append(('i', f'buffer_load_dwordx4 {ar(16*c+4*k,4)}, v{V_LANE16}, s[8:11], s25 offen offset:{1024*k}', f'c{c}'))
        groups.append(g)
    pairs = []
    for t in (2, 3):
        for k in range(5):
            o = t * 40960 + 8192 * k
            pairs.append([f's_add_u32 m0, s22, {o}', f's_add_u32 s24, s23, {o}',
                          ('i', f'buffer_load_dwordx4 v{V_LANE16}, s[8:11], s24 offen lds', f't{t}k{k}'),
                          ('i', f'buffer_load_dwordx4 v{V_LANE16}, s[8:11], s24 offen offset:1024 lds', f't{t}k{k}')])
    for k in range(0, 10, 3):
        groups.append(sum(pairs[k:k+3], []))
    misc = ['v_and_b32 v251, 31, v250', 'v_lshrrev_b32 v252, 5, v250',
            'v_lshlrev_b32 v253, 6, v251', 'v_lshl_add_u32 v253, v252, 5, v253',
            's_lshl_b32 s26, s17, 11', f's_add_u32 s26, s26, {ST}',
            ('i', f'buffer_load_dwordx4 {vr(STR,4)}, v253, s[8:11], s26 offen', 'st'),
            ('i', f'buffer_load_dwordx4 {vr(STR+4,4)}, v253, s[8:11], s26 offen offset:16', 'st'),
            's_lshl_b32 s26, s13, 12', f's_add_u32 s26, s26, {WC[T]}']
    for t in range(4):
        misc.append(('i', f'buffer_load_dwordx4 {vr(WCR+4*t,4)}, v{V_LANE16}, s[8:11], s26 offen offset:{1024*t}', 'st'))
    emit_items(A, groups[0]); emit_items(A, groups[1]); emit_items(A, misc)
    for c in range(2, PD): emit_items(A, groups[c])
    gi = PD
    A(f'v_mov_b32 v{V_DS}, v{V_LANE16}')
    A('s_lshl_b32 s26, s3, 5')
    A(f'v_add_u32 v{V_REC}, s26, v251')
    A(f'v_mul_u32_u24 v{V_REC}, {RS}, v{V_REC}')
    A(f'v_lshl_add_u32 v{V_REC}, v252, 7, v{V_REC}')
    A(f'v_lshrrev_b32 v{X1}, 2, v250')
    A(f'v_mul_u32_u24 v{X1}, {RS}, v{X1}')
    A(f'v_and_b32 v{X2}, 3, v250')
    A(f'v_lshl_add_u32 v{X1}, v{X2}, 3, v{X1}')
    A('s_lshr_b32 s27, s3, 1')
    A('s_and_b32 s28, s3, 1')
    A('s_lshl_b32 s26, s27, 7')
    A(f'v_add_u32 v{V_TRB}, s26, v{X1}')
    A('s_mul_i32 s26, s28, 24')
    A(f's_add_u32 s26, s26, {2*F}')
    A(f'v_add_u32 v{V_TRA}, s26, v{V_TRB}')
    A(f'v_lshrrev_b32 v{X1}, 4, v250')
    A(f'v_and_b32 v{X2}, 15, v250')
    A(f'v_lshlrev_b32 v{X3}, 2, v{X2}')
    A(f'v_lshl_add_u32 v{V_AT0}, v{X1}, 6, v{X3}')
    A('s_mul_i32 s26, s28, 768')
    A(f'v_add_u32 v{V_AT0}, s26, v{V_AT0}')
    TS = 64 if T == 'A' else 128
    TB = 1536 * (NT - 1)
    A(f'v_mul_u32_u24 v{V_AT2}, {TS//4}, v{X1}')
    A(f'v_add_u32 v{V_AT2}, v{V_AT2}, v{X3}')
    A(f's_mul_i32 s26, s28, {4*TS}')
    A(f's_add_u32 s26, s26, {TB}')
    A(f'v_add_u32 v{V_AT2}, s26, v{V_AT2}')
    A(f'v_mov_b32 v{X4}, {OOB}')
    A(f'v_cmp_gt_u32 vcc, 3, v{X1}')
    A(f'v_cndmask_b32 v{V_AT0}, v{X4}, v{V_AT0}, vcc')
    A(f'v_cndmask_b32 v{V_AT2}, v{X4}, v{V_AT2}, vcc')
    A(f'v_cmp_gt_u32 vcc, {TS//16}, v{X2}')
    A(f'v_cndmask_b32 v{V_AT2}, v{X4}, v{V_AT2}, vcc')
    A(f'v_add_u32 v{X1}, s28, v{X1}')
    A(f'v_cmp_gt_u32 vcc, 3, v{X1}')
    A(f'v_cndmask_b32 v{V_AT1}, v{X4}, v{V_AT0}, vcc')
    A(f'v_cndmask_b32 v{V_AT3}, v{X4}, v{V_AT2}, vcc')
    A('s_lshl_b32 s29, s13, 1')
    A('s_add_u32 s29, s29, s27')
    A(f's_mul_i32 s29, s29, {HS}')
    A(f's_add_u32 s29, s29, {KV(L)}')
    A(f'v_lshrrev_b32 v{X1}, 4, v251')
    A(f'v_mul_u32_u24 v{X1}, {NU*1024}, v{X1}')
    A(f'v_and_b32 v{X2}, 15, v251')
    A(f'v_lshl_add_u32 v{X1}, v{X2}, 4, v{X1}')
    A(f's_mul_i32 s30, s17, {2*NU*1024}')
    A(f's_add_u32 s30, s30, {PQ}')
    if T == 'A':
        A(f'v_lshl_add_u32 v{V_PQ0}, v252, 9, v{X1}')
        A(f'v_lshl_add_u32 v{V_PQ1}, v252, 3, v{X1}')
        A('s_lshr_b32 s26, s13, 2')
        A('s_mul_i32 s26, s26, 5120')
        A('s_add_u32 s30, s30, s26')
        A('s_and_b32 s26, s13, 3')
        A('s_lshl_b32 s31, s26, 8')
        A('s_add_u32 s31, s31, s30')
        A('s_add_u32 s31, s31, 4096')
        A('s_lshl_b32 s26, s26, 10')
        A('s_add_u32 s30, s30, s26')
    else:
        A(f'v_lshl_add_u32 v{V_PQ0}, v252, 10, v{X1}')
        A(f'v_lshl_add_u32 v{V_PQ1}, v252, 8, v{X1}')
        A('s_lshr_b32 s26, s13, 1')
        A('s_mul_i32 s26, s26, 5120')
        A('s_add_u32 s30, s30, s26')
        A('s_and_b32 s26, s13, 1')
        A('s_lshl_b32 s31, s26, 9')
        A('s_add_u32 s31, s31, s30')
        A('s_add_u32 s31, s31, 4096')
        A('s_lshl_b32 s26, s26, 11')
        A('s_add_u32 s30, s30, s26')
    A('s_mov_b32 s32, 0x358637bd')
    def rd(slot, t, s, tag):
        off = t * 40960 + s * 1024
        base, o = V_DS, off
        return ('i', f'ds_read_b128 {vr(WB+4*slot,4)}, v{dsreg(off)} offset:{off & 0xffff}', tag)
    DS1, DS2 = 248, 249
    def dsreg(off):
        return [V_DS, DS1, DS2][off >> 16]
    A(f'v_add_u32 v{DS1}, 0x10000, v{V_DS}')
    A(f'v_add_u32 v{DS2}, 0x20000, v{V_DS}')
    def chunk_reads(c):
        return [rd((c & 1) * 8 + 2 * k + t, t, 4 * c + k, f'r{c}_{k}_{t}') for k in range(4) for t in range(2)]
    A.wait_vm('c0'); A('s_barrier')
    emit_items(A, chunk_reads(0))
    stats_items = [('wvm', 'st'),
        f'v_add_f32 v{X1}, v{STR}, v{STR+2}', f'v_add_f32 v{X2}, v{STR+4}, v{STR+6}',
        f'v_add_f32 v{X1}, v{X1}, v{X2}', f'v_mov_b32 v{X2}, v{X1}',
        f'v_add_f32 v{X3}, v{STR+1}, v{STR+3}',
        f'v_permlane32_swap_b32 v{X1}, v{X2}',
        f'v_add_f32 v{X4}, v{STR+5}, v{STR+7}',
        f'v_add_f32 v{X1}, v{X1}, v{X2}',
        f'v_mul_f32 v{X1}, 0.125, v{X1}',
        f'v_add_f32 v{X3}, v{X3}, v{X4}',
        f'v_sub_f32 v{STR}, v{STR}, v{X1}', f'v_sub_f32 v{STR+2}, v{STR+2}, v{X1}',
        f'v_sub_f32 v{STR+4}, v{STR+4}, v{X1}', f'v_sub_f32 v{STR+6}, v{STR+6}, v{X1}',
        f'v_mul_f32 v{X2}, v{STR}, v{STR}', f'v_fmac_f32 v{X2}, v{STR+2}, v{STR+2}',
        f'v_fmac_f32 v{X2}, v{STR+4}, v{STR+4}', f'v_fmac_f32 v{X2}, v{STR+6}, v{STR+6}',
        f'v_fmac_f32 v{X3}, 0x42a00000, v{X2}',
        f'v_mov_b32 v{X4}, v{X3}',
        f'v_cvt_pk_bf16_f32 v{V_NM}, -v{X1}, -v{X1}',
        f'v_permlane32_swap_b32 v{X3}, v{X4}',
        f'v_mov_b32 v{V_NM+1}, v{V_NM}',
        f'v_add_f32 v{X3}, v{X3}, v{X4}',
        f'v_mul_f32 v{X3}, 0x3acccccd, v{X3}',
        f'v_cvt_pk_bf16_f32 v{X3}, v{X3}, v{X3}',
        f'v_mov_b32 v{V_NM+2}, v{V_NM}',
        f'v_lshlrev_b32 v{X3}, 16, v{X3}',
        f'v_add_f32 v{X3}, 0x3727c5ac, v{X3}',
        f'v_cvt_pk_bf16_f32 v{X3}, v{X3}, v{X3}',
        f'v_lshlrev_b32 v{X3}, 16, v{X3}',
        f'v_sqrt_f32 v{X3}, v{X3}',
        f'v_mov_b32 v{V_NM+3}, v{V_NM}',
        f'v_cvt_pk_bf16_f32 v{X3}, v{X3}, v{X3}',
        f'v_lshlrev_b32 v{X3}, 16, v{X3}',
        f'v_rcp_f32 v{V_R}, v{X3}',
        's_nop 0',
        f'v_mul_f32 v{V_RL}, 0x3fb8aa3b, v{V_R}']
    def t_reads(t, s, slot):
        return rd(slot, t, s, f'q{t}_{s}')
    RING = 8
    for c in range(10):
        mf = []
        for k in range(4):
            for t in range(2):
                s = 4 * c + k
                cc = '0' if s == 0 else vr(ACC + 16 * t, 16)
                slot = (c & 1) * 8 + 2 * k + t
                mf.append([('wlg', f'r{c}_{k}_{t}'),
                           f'v_mfma_f32_32x32x16_bf16 {vr(ACC+16*t,16)}, {vr(WB+4*slot,4)}, {ar(4*s,4)}, {cc}'])
        fill1 = groups[gi] if gi < len(groups) else []
        gi += 1
        if c == 3: fill1 = fill1 + stats_items
        o1, rest = merge(mf[:4], fill1, 6)
        emit_items(A, o1); emit_items(A, rest)
        if c < 9:
            A.wait_vm(f'c{c+1}'); A('s_barrier')
            nxt = chunk_reads(c + 1)
        else:
            A.wait_vm('t2k0'); A('s_barrier')
            nxt = [t_reads(2, s, s) for s in range(8)]
        o2, rest = merge(mf[4:], nxt, 2)
        emit_items(A, o2); emit_items(A, rest)
    assert gi >= len(groups)
    def aug(t):
        return f'v_mfma_f32_32x32x16_bf16 {vr(ACC+16*t,16)}, {vr(WCR+4*t,4)}, {vr(V_NM,4)}, {vr(ACC+16*t,16)}'
    A(aug(0)); A(aug(1))
    kreg = [ACC + x for x in range(20)]
    v01 = [ACC + 20 + x for x in range(12)]
    v23 = [ACC + 32 + x for x in range(8)]
    qreg = [ACC + 40 + x for x in range(20)]
    npk = F // 2
    if T == 'A':
        fill = phiA_items(kreg, [PK + x for x in range(10)], 32)
    else:
        fill = phiB_items(kreg, [PK + x for x in range(20)])
    fill += scale_items(v01, [PK + npk + x for x in range(6)])
    nfull = (npk + 6) // 4
    for x in range(nfull):
        fill.append(('i', f'ds_write_b128 v{V_REC}, {vr(PK+4*x,4)} offset:{16*x}', 'rec'))
    def tile_groups(t, nxt_t):
        gs = []
        for s in range(40):
            g = []
            if s % 8 == 0 and s + 8 < 40:
                g += [('wvm', f't{t}k{s//8+1}'), 's_barrier']
            if s == 32 and nxt_t is not None:
                g += [('wvm', f't{nxt_t}k0'), 's_barrier']
            sn = s + RING
            if sn < 40: g.append(t_reads(t, sn, (sn + off0[t]) % 16))
            elif nxt_t is not None: g.append(t_reads(nxt_t, sn - 40, (sn - 40 + off0[nxt_t]) % 16))
            cc = '0' if s == 0 else vr(ACC + 16 * t, 16)
            g += [('wlg', f'q{t}_{s}'),
                  f'v_mfma_f32_32x32x16_bf16 {vr(ACC+16*t,16)}, {vr(WB+4*((s+off0[t])%16),4)}, {ar(4*s,4)}, {cc}']
            gs.append(g)
        gs.append([aug(t)])
        return gs
    off0 = {2: 0, 3: 8}
    g2 = tile_groups(2, 3)
    o, rest = merge(g2[:1], [], 0); emit_items(A, o)
    o, rest = merge(g2[1:], fill, 6); emit_items(A, o); emit_items(A, rest)
    emit_items(A, scale_items(v23, [PK + npk + 6 + x for x in range(4)]))
    A(f'v_mov_b32 v{PK+npk+10}, 0x3f80')
    ntot = (npk + 11 + 3) // 4
    for x in range(nfull, ntot):
        if 4 * x + 4 <= npk + 11 or T == 'B':
            A(f'ds_write_b128 v{V_REC}, {vr(PK+4*x,4)} offset:{16*x}', tag='rec')
        else:
            A(f'ds_write_b32 v{V_REC}, v{PK+4*x} offset:{16*x}', tag='rec')
    A.wait_lg('rec'); A('s_barrier')
    KA = 64; KBf = [8, 24, 80]; KC = 250 - 0
    KC = PK
    for ks in range(4):
        for jh in range(2):
            o = (32 * ks + 16 * jh) * RS
            A(f'ds_read_b64_tr_b16 {vr(KA+4*ks+2*jh,2)}, v{V_TRA} offset:{o}', tag=f'k{ks}')
            for nt in range(NT):
                A(f'ds_read_b64_tr_b16 {vr(KBf[nt]+4*ks+2*jh,2)}, v{V_TRB} offset:{o+32*nt}', tag=f'k{ks}')
        if ks >= 1:
            A.wait_lg(f'k{ks-1}')
            for nt in range(NT):
                cc = '0' if ks == 1 else vr(KC + 4 * nt, 4)
                A(f'v_mfma_f32_16x16x32_bf16 {vr(KC+4*nt,4)}, {vr(KA+4*(ks-1),4)}, {vr(KBf[nt]+4*(ks-1),4)}, {cc}')
    A.wait_lg('k3')
    for nt in range(NT):
        A(f'v_mfma_f32_16x16x32_bf16 {vr(KC+4*nt,4)}, {vr(KA+12,4)}, {vr(KBf[nt]+12,4)}, {vr(KC+4*nt,4)}')
    atom = []
    for nt in range(NT):
        for r in range(4):
            if nt < NT - 1:
                va = V_AT0 if r == 0 else V_AT1; o = nt * 1536 + r * 192
            else:
                va = V_AT2 if r == 0 else V_AT3; o = r * TS
            atom.append(('i', f'buffer_atomic_add_f32 v{KC+4*nt+r}, v{va}, s[8:11], s29 offen offset:{o}', 'at'))
    g3 = tile_groups(3, None)
    QP = 228
    fill = list(atom)
    if T == 'A':
        fill += phiA_items(qreg[:8], [QP + x for x in range(4)], 32)
        fill.append(('i', f'buffer_store_dwordx4 {vr(QP,4)}, v{V_PQ0}, s[8:11], s30 offen', 'pq'))
    o, rest = merge(g3[:1], [], 0); emit_items(A, o)
    o, rest = merge(g3[1:], fill, 4); emit_items(A, o); emit_items(A, rest)
    if T == 'A':
        emit_items(A, phiA_items(qreg[8:], [QP + 4 + x for x in range(6)], 32))
        A(f'buffer_store_dwordx4 {vr(QP+4,4)}, v{V_PQ0}, s[8:11], s30 offen offset:256')
        A(f'buffer_store_dwordx2 {vr(QP+8,2)}, v{V_PQ1}, s[8:11], s31 offen')
    else:
        emit_items(A, phiB_items(qreg, [QP + x for x in range(20)]))
        for c in range(4):
            A(f'buffer_store_dwordx4 {vr(QP+4*c,4)}, v{V_PQ0}, s[8:11], s30 offen offset:{256*c}')
        A(f'buffer_store_dwordx4 {vr(QP+16,4)}, v{V_PQ1}, s[8:11], s31 offen')
    A.label(f'{name}_END')
    A('s_endpgm')
    return A.text()
```

```python
from emit import *
from lay import *
from k1 import emit_items, merge, cost

K2_LDS = 131072
YA = 32
NUM = 112
RAW = 176
KF = 208
OF = 224
HOLE = 1088

def gen_k2(L, name, final=False, LA=3):
    T = 'AB'[L & 1]
    F = 20 if T == 'A' else 40
    NTk = 2 if T == 'A' else 3
    HS = 2048 if T == 'A' else 4096
    NU = F
    NS = 5 if T == 'A' else 10
    TS = 64 if T == 'A' else 128
    TB = 1536 * (NTk - 1)
    A = Asm()
    A('s_load_dwordx2 s[4:5], s[0:1], 72')
    if final: A('s_load_dwordx2 s[6:7], s[0:1], 56')
    A('s_cmp_ge_u32 s2, 256')
    A(f's_cbranch_scc1 {name}_END')
    A('v_lshrrev_b32 v2, 6, v0')
    A('v_and_b32 v3, 63, v0')
    A('v_readfirstlane_b32 s3, v2')
    A('v_lshlrev_b32 v1, 4, v3')
    A('s_and_b32 s14, s2, 7')
    A('s_lshr_b32 s15, s2, 3')
    A('s_lshl_b32 s12, s14, 2')
    A('s_and_b32 s16, s15, 3')
    A('s_add_u32 s12, s12, s16')
    A('s_lshr_b32 s13, s15, 2')
    A(f's_mul_i32 s17, s3, {8*HS}')
    A(f's_add_u32 s18, s17, {KV(L)}')
    A(f's_mul_i32 s19, s3, {NS*1024}')
    A(f's_add_u32 s19, s19, {PQ}')
    for nu in range(4):
        A(f's_add_u32 s16, s3, {nu}')
        A('s_and_b32 s16, s16, 3')
        A('s_lshl_b32 s24, s12, 2')
        A('s_add_u32 s16, s16, s24')
        A(f's_mul_i32 s16, s16, {NU*1024}')
        A(f's_add_u32 s{20+nu}, s16, s19')
    A('s_lshl_b32 s24, s13, 2')
    A('s_add_u32 s24, s24, s3')
    A('s_mul_i32 s24, s24, 25600')
    A(f's_add_u32 s24, s24, {WOF[T]}')
    A.wait_lg()
    A('s_mov_b32 s8, s4')
    A('s_and_b32 s9, s5, 0xffff')
    A(f's_mov_b32 s10, {WS_SIZE}')
    A('s_mov_b32 s11, 0x00020000')
    def main_step(hh): return (hh >> 1) if T == 'A' else 5 * (hh >> 2) + (hh & 3)
    def tail_step(hh): return 4 if T == 'A' else 5 * (hh >> 2) + 4
    def pqreg(st, nu): return ar(16 * st + 4 * nu, 4)
    WO0 = 16 * NS
    def wofreg(kap, mt):
        idx = kap * 5 + mt
        if WO0 + 4 * idx + 4 <= 256: return ar(WO0 + 4 * idx, 4)
        return ar(0, 4)
    kap_after = {1: 0, 3: 1, 4: 2, 6: 3, 7: 4}
    loaded = set()
    lg = []
    for hh in range(8):
        g = []
        nd = HS // 1024
        g.append(f's_add_u32 m0, s17, {hh*HS}')
        g.append(f's_add_u32 s25, s18, {hh*HS}')
        for d in range(nd):
            g.append(('i', f'buffer_load_dwordx4 v1, s[8:11], s25 offen offset:{1024*d} lds', f'h{hh}'))
        for st in (main_step(hh), tail_step(hh)):
            if st in loaded: continue
            loaded.add(st)
            for nu in range(4):
                if st < 4:
                    g.append(('i', f'buffer_load_dwordx4 {pqreg(st,nu)}, v1, s[8:11], s{20+nu} offen offset:{1024*st}', f'h{hh}'))
                else:
                    g.append(f's_add_u32 s25, s{20+nu}, {1024*st}')
                    g.append(('i', f'buffer_load_dwordx4 {pqreg(st,nu)}, v1, s[8:11], s25 offen', f'h{hh}'))
        if hh in kap_after:
            kap = kap_after[hh]
            g.append(f's_add_u32 s25, s24, {5120*kap}')
            for mt in range(4):
                g.append(('i', f'buffer_load_dwordx4 {wofreg(kap,mt)}, v1, s[8:11], s25 offen offset:{1024*mt}', f'w{kap}'))
            g.append(f's_add_u32 s25, s24, {5120*kap+4096}')
            g.append(('i', f'buffer_load_dwordx4 {wofreg(kap,4)}, v1, s[8:11], s25 offen', f'w{kap}'))
        lg.append(g)
    for hh in range(LA): emit_items(A, lg[hh])
    A('v_lshrrev_b32 v4, 4, v3')
    A('v_and_b32 v5, 15, v3')
    A('v_lshrrev_b32 v6, 2, v5')
    A('v_and_b32 v7, 3, v5')
    A('v_mul_u32_u24 v8, 5, v6')
    A('v_add_u32 v9, 4, v8')
    A('v_add_u32 v8, v8, v7')
    A('v_cmp_eq_u32 vcc, 0, v7')
    A('v_cndmask_b32 v9, 20, v9, vcc')
    A(f's_add_u32 s26, s17, {HOLE}')
    A('v_mov_b32 v31, s26')
    VM = 16
    VT = 20
    for mt in range(2):
        e = 8 + mt
        A(f'v_cmp_le_u32 vcc, 12, v{e}')
        A('v_cndmask_b32 v10, 0, 1, vcc')
        A('v_mul_u32_u24 v11, 12, v10')
        A(f'v_sub_u32 v11, v{e}, v11')
        A('v_and_b32 v12, 3, v11')
        A('v_lshrrev_b32 v11, 2, v11')
        A('v_lshl_add_u32 v12, v10, 2, v12')
        A('v_mul_u32_u24 v13, 192, v12')
        A('v_lshl_add_u32 v13, v11, 6, v13')
        A(f'v_mul_u32_u24 v14, {TS}, v12')
        A(f'v_mul_u32_u24 v15, {TS//4}, v11')
        A('v_add_u32 v14, v14, v15')
        A(f's_add_u32 s26, s17, {TB}')
        A('v_add_u32 v14, s26, v14')
        A('v_and_b32 v15, 1, v4')
        A('v_lshl_add_u32 v13, v15, 5, v13')
        A('v_add_u32 v13, s17, v13')
        A('v_lshrrev_b32 v15, 1, v4')
        if T == 'A':
            for par in range(2):
                A(f'v_cmp_eq_u32 vcc, {par}, v15')
                A(f'v_cndmask_b32 v{VM+2*par+mt}, v31, v13, vcc')
        else:
            A('v_mul_u32_u24 v15, 1536, v15')
            A(f'v_add_u32 v{VM+mt}, v13, v15')
        for c in range(4):
            A(f'v_cmp_eq_u32 vcc, {c}, v4')
            A(f'v_cndmask_b32 v{VT+2*c+mt}, v31, v14, vcc')
    A('s_mov_b32 s32, 0x358637bd')
    def raw_reads(hh):
        it = []
        for f in range(4):
            mt = f & 1
            if f < 2:
                a = VM + (2 * (hh & 1) + mt if T == 'A' else mt)
                lo, hi = (a, 0), (a, 16)
            else:
                if T == 'A':
                    a = VT + 2 * (hh >> 1) + mt
                    lo, hi = ((a, 0), (31, 0)) if (hh & 1) == 0 else ((31, 0), (a, 0))
                else:
                    a = VT + 2 * (hh & 3) + mt
                    lo, hi = (a, 0), (a, 16)
            for k, (ra, o) in enumerate((lo, hi)):
                it.append(('i', f'ds_read_b128 {vr(RAW+8*f+4*k,4)}, v{ra} offset:{hh*HS+o}', f'raw{hh}_{f}'))
        return it
    def cvt_frag(hh, f):
        it = [('wlg', f'raw{hh}_{f}')]
        for x in range(4):
            it.append(f'v_cvt_pk_bf16_f32 v{KF+4*f+x}, v{RAW+8*f+2*x}, v{RAW+8*f+2*x+1}')
        return it
    def num_reg(hh, mt, nu): return NUM + 32 * (hh & 1) + 4 * (mt * 4 + nu)
    def num_mfmas(hh, f):
        mt = f & 1
        st = main_step(hh) if f < 2 else tail_step(hh)
        out = []
        for nu in range(4):
            d = vr(num_reg(hh, mt, nu), 4)
            c = '0' if f < 2 else d
            out.append([f'v_mfma_f32_16x16x32_bf16 {d}, {vr(KF+4*f,4)}, {pqreg(st,nu)}, {c}'])
        return out
    def oval(hh, nu, r5):
        return num_reg(hh, 0, nu) + r5 if r5 < 4 else num_reg(hh, 1, nu)
    def ofreg(kap, nu): return OF + 16 * (kap & 1) + 4 * nu
    def o_items(hh):
        it = []
        for nu in range(4):
            it.append(f'v_add_f32 v{8+nu}, s32, v{num_reg(hh,1,nu)+1}')
        for nu in range(4):
            it.append(f'v_rcp_f32 v{8+nu}, v{8+nu}')
        SV = [6, 7, 28, 29]
        for nu in range(4):
            for r5 in range(5):
                dst = SV[nu] if (r5 == 4 and hh & 1 == 0) else oval(hh,nu,r5)
                it.append(f'v_mul_f32 v{dst}, v{oval(hh,nu,r5)}, v{8+nu}')
        for nu in range(4):
            if hh & 1 == 0:
                prs = [(5*hh, oval(hh,nu,0), oval(hh,nu,1)), (5*hh+2, oval(hh,nu,2), oval(hh,nu,3))]
            else:
                prs = [(5*hh-1, SV[nu], oval(hh,nu,0)), (5*hh+1, oval(hh,nu,1), oval(hh,nu,2)), (5*hh+3, oval(hh,nu,3), oval(hh,nu,4))]
            for q, a, b in prs:
                it.append(f'v_cvt_pk_bf16_f32 v{ofreg(q>>3,nu)+((q&7)>>1)}, v{a}, v{b}')
        return it
    def y_mfmas(kap):
        out = []
        for nu in (1, 2, 3, 0):
            for mt in range(5):
                d = vr(YA + 4 * (mt * 4 + nu), 4)
                c = '0' if kap == 0 else d
                out.append([f'v_mfma_f32_16x16x32_bf16 {d}, {wofreg(kap,mt)}, {vr(ofreg(kap,nu),4)}, {c}'])
        return out
    A.wait_vm('h0')
    emit_items(A, raw_reads(0))
    for f in range(4): emit_items(A, cvt_frag(0, f))
    pend_y = None
    for hh in range(8):
        if hh + LA < 8: emit_items(A, lg[hh + LA])
        if hh + 1 < 8:
            A.wait_vm(f'h{hh+1}')
            emit_items(A, raw_reads(hh + 1))
        fill = o_items(hh - 1) if hh > 0 else []
        for f in range(4):
            o, fill = merge(num_mfmas(hh, f), fill, 3)
            emit_items(A, o)
            if hh + 1 < 8: fill = fill + cvt_frag(hh + 1, f)
        if hh - 1 in kap_after:
            k = kap_after[hh - 1]
            pre = []
            while fill and not (isinstance(fill[0], tuple)):
                pre.append(fill.pop(0))
            emit_items(A, pre)
            A.wait_vm(f'w{k}')
            o, fill = merge(y_mfmas(k), fill, 2)
            emit_items(A, o)
        emit_items(A, fill); fill = []
    A('v_lshrrev_b32 v10, 1, v4')
    A('v_lshlrev_b32 v10, 9, v10')
    A('v_lshl_add_u32 v10, v5, 4, v10')
    A('v_and_b32 v11, 1, v4')
    A('v_lshl_add_u32 v12, v11, 3, v10')
    A('s_lshl_b32 s26, s12, 1')
    A('s_lshr_b32 s27, s3, 1')
    A('s_add_u32 s26, s26, s27')
    A('s_mul_i32 s26, s26, 40')
    A('s_mul_i32 s27, s13, 5')
    A('s_add_u32 s26, s26, s27')
    A('s_lshl_b32 s26, s26, 10')
    A('s_and_b32 s27, s3, 1')
    A('s_lshl_b32 s27, s27, 8')
    A('s_add_u32 s26, s26, s27')
    A(f's_add_u32 s26, s26, {XF}')
    A('s_add_u32 s27, s26, 4096')
    for mt in range(5):
        so, o = ('s26', 1024 * mt) if mt < 4 else ('s27', 0)
        A(f'buffer_load_dwordx2 {vr(RAW+2*mt,2)}, v12, s[8:11], {so} offen offset:{o}', tag='x')
    emit_items(A, o_items(7))
    A.wait_vm('w4')
    ym = y_mfmas(4)
    A('v_add_u32 v13, s17, v1')
    for k, g in enumerate(ym):
        emit_items(A, g)
        if k >= 7:
            kk = k - 7
            if kk < 15:
                nu, mt = 1 + kk // 5, kk % 5
                A(f'ds_write_b128 v13, {vr(YA+4*(mt*4+nu),4)} offset:{(nu-1)*5120+mt*1024}', tag='yw')
    for kk in range(13, 15):
        nu, mt = 1 + kk // 5, kk % 5
        A(f'ds_write_b128 v13, {vr(YA+4*(mt*4+nu),4)} offset:{(nu-1)*5120+mt*1024}', tag='yw')
    for nu in range(1, 4):
        A(f's_sub_u32 s28, s3, {nu}')
        A('s_and_b32 s28, s28, 3')
        A(f's_mul_i32 s28, s28, {8*HS}')
        A(f's_add_u32 s28, s28, {(nu-1)*5120}')
        A(f'v_add_u32 v{13+nu}, s28, v1')
    A.wait_lg(); A('s_barrier')
    RD = NUM
    for nu in range(1, 4):
        for mt in range(5):
            A(f'ds_read_b128 {vr(RD+20*(nu-1)+4*mt,4)}, v{13+nu} offset:{mt*1024}', tag=f'yr{nu}')
    for nu in range(1, 4):
        A.wait_lg(f'yr{nu}')
        for mt in range(5):
            for r in range(0, 4, 2):
                y = YA + 16 * mt + r
                A(f'v_pk_add_f32 {vr(y,2)}, {vr(y,2)}, {vr(RD+20*(nu-1)+4*mt+r,2)}')
    A.wait_vm('x')
    XN = KF
    U = NUM
    for mt in range(5):
        for p in range(2):
            y = YA + 16 * mt + 2 * p
            xr = RAW + 2 * mt + p
            u = U + 4 * mt + 2 * p
            A(f'v_cvt_pk_bf16_f32 v8, v{y}, v{y+1}')
            A(f'v_lshlrev_b32 v{u}, 16, v{xr}')
            A(f'v_and_b32 v{u+1}, 0xffff0000, v{xr}')
            A(f'v_lshlrev_b32 v{y}, 16, v8')
            A(f'v_and_b32 v{y+1}, 0xffff0000, v8')
            A(f'v_pk_add_f32 {vr(u,2)}, {vr(u,2)}, {vr(y,2)}')
            A(f'v_cvt_pk_bf16_f32 v{XN+2*mt+p}, v{u}, v{u+1}')
    if final:
        A('s_mov_b32 s36, s6')
        A('s_and_b32 s37, s7, 0xffff')
        A(f's_mov_b32 s38, {2048*640*2}')
        A('s_mov_b32 s39, 0x00020000')
        A('v_mul_u32_u24 v10, 1280, v5')
        A('v_lshl_add_u32 v10, v4, 3, v10')
        A('s_lshl_b32 s28, s12, 2')
        A('s_add_u32 s28, s28, s3')
        A(f's_mul_i32 s28, s28, {16*1280}')
        A('s_mul_i32 s29, s13, 160')
        A('s_add_u32 s28, s28, s29')
        for mt in range(5):
            A(f'buffer_store_dwordx2 {vr(XN+2*mt,2)}, v10, s[36:39], s28 offen offset:{32*mt}')
    else:
        for mt in range(5):
            so, o = ('s26', 1024 * mt) if mt < 4 else ('s27', 0)
            A(f'buffer_store_dwordx2 {vr(XN+2*mt,2)}, v12, s[8:11], {so} offen offset:{o}')
        for k in range(10):
            A(f'v_lshlrev_b32 v{U+2*k}, 16, v{XN+k}')
            A(f'v_and_b32 v{U+2*k+1}, 0xffff0000, v{XN+k}')
        A(f'v_pk_add_f32 v[8:9], {vr(U,2)}, {vr(U+2,2)}')
        for k in range(2, 10):
            A(f'v_pk_add_f32 v[8:9], v[8:9], {vr(U+2*k,2)}')
        def allsum(a, b):
            A(f'v_mov_b32 v{b}, v{a}')
            A(f'v_permlane16_swap_b32 v{a}, v{b}')
            A(f'v_add_f32 v{a}, v{a}, v{b}')
            A(f'v_mov_b32 v{b}, v{a}')
            A(f'v_permlane32_swap_b32 v{a}, v{b}')
            A(f'v_add_f32 v{a}, v{a}, v{b}')
        A('v_add_f32 v8, v8, v9')
        allsum(8, 9)
        A('v_mul_f32 v8, 0x3c4ccccd, v8')
        A('v_mul_f32 v10, -1.0, v8')
        A('v_mov_b32 v11, v10')
        for k in range(10):
            A(f'v_pk_add_f32 {vr(U+2*k,2)}, {vr(U+2*k,2)}, v[10:11]')
        A(f'v_pk_mul_f32 v[14:15], {vr(U,2)}, {vr(U,2)}')
        for k in range(1, 10):
            A(f'v_pk_fma_f32 v[14:15], {vr(U+2*k,2)}, {vr(U+2*k,2)}, v[14:15]')
        A('v_add_f32 v9, v14, v15')
        allsum(9, 10)
        A('v_lshlrev_b32 v10, 6, v5')
        A('s_lshl_b32 s28, s12, 2')
        A('s_add_u32 s28, s28, s3')
        A('s_lshl_b32 s28, s28, 10')
        A('s_lshl_b32 s29, s13, 3')
        A('s_add_u32 s28, s28, s29')
        A(f's_add_u32 s28, s28, {ST}')
        A('s_mov_b64 exec, 0xffff')
        A('buffer_store_dwordx2 v[8:9], v10, s[8:11], s28 offen')
    A.label(f'{name}_END')
    A('s_endpgm')
    return A.text()
```

```python
WF = {'A': 0x000000, 'B': 0x280000}
WC = {'A': 0x500000, 'B': 0x510000}
WOF = {'A': 0x520000, 'B': 0x5F0000}
XF = 0x700000
ST = 0x980000
KV0 = 0x9A0000
def KV(L): return KV0 + L * 0x20000
PQ = 0xB00000
WS_SIZE = 0x10000000
OOB = 0x40000000
```

```python
import sys
import gen, k0, k1, k2
def make(path):
    ks = [('k0_kernel', k0.gen_k0(), 256, 256)]
    ls = [('k0_kernel', k0.K0_GRID, k0.K0_LDS)]
    for L in range(4):
        ks.append((f'k1l{L}_kernel', k1.gen_k1(L, f'k1l{L}'), 416, 256))
        ks.append((f'k2l{L}_kernel', k2.gen_k2(L, f'k2l{L}', final=(L == 3)), 512, 256))
        ls.append((f'k1l{L}_kernel', 256, k1.K1_LDS))
        ls.append((f'k2l{L}_kernel', 256, k2.K2_LDS))
    gen.build(ks, ls, path)
if __name__ == '__main__':
    make(sys.argv[1] if len(sys.argv) > 1 else 'out_all.s')
```

```python
import re

REG_RE = re.compile(r'\b([vas])(\d+)\b|\b([vas])\[(\d+):(\d+)\]|\b(vcc|exec|m0|scc)\b')

def regs_of(tok):
    out = []
    for m in REG_RE.finditer(tok):
        if m.group(1):
            out.append((m.group(1), int(m.group(2))))
        elif m.group(3):
            for i in range(int(m.group(4)), int(m.group(5)) + 1):
                out.append((m.group(3), i))
        else:
            out.append((m.group(6), 0))
    return out

TRANS = ('v_exp_f32', 'v_log_f32', 'v_rcp_f32', 'v_rsq_f32', 'v_sqrt_f32', 'v_sin_f32', 'v_cos_f32')

def split_ops(s):
    ops, d, cur = [], 0, ''
    for ch in s:
        if ch == '[': d += 1
        if ch == ']': d -= 1
        if ch == ',' and d == 0:
            ops.append(cur.strip()); cur = ''
        else:
            cur += ch
    if cur.strip(): ops.append(cur.strip())
    return ops

class Ins:
    __slots__ = ('op', 'text', 'kind', 'w', 'r', 'passes', 'srcC', 'srcAB', 'wide_store', 'trans', 'dpp', 'dot')

def parse(text):
    t = text.split(';')[0].strip()
    sp = t.split(None, 1)
    op = sp[0]
    rest = sp[1] if len(sp) > 1 else ''
    ops = split_ops(rest)
    I = Ins(); I.op = op; I.text = text; I.passes = 0; I.srcC = []; I.srcAB = []; I.wide_store = []
    I.trans = op.replace('_e32', '').replace('_e64', '') in TRANS
    I.dpp = ('row_' in t or 'quad_perm' in t or 'wave_' in t or '_dpp' in op)
    I.dot = op.startswith('v_dot')
    w, r = [], []
    if op.startswith('v_mfma'):
        I.kind = 'mfma'
        I.passes = 8 if '32x32x16' in op else 4
        w = regs_of(ops[0]); I.srcAB = regs_of(ops[1]) + regs_of(ops[2]); I.srcC = regs_of(ops[3])
        r = I.srcAB + I.srcC
    elif op.startswith('v_'):
        I.kind = 'valu'
        if op.startswith('v_permlane32_swap') or op.startswith('v_permlane16_swap') or op.startswith('v_swap'):
            w = regs_of(ops[0]) + regs_of(ops[1]); r = list(w)
        elif op.startswith('v_cmp'):
            w = regs_of(ops[0]); r = [x for o in ops[1:] for x in regs_of(o)]
        elif '_co_' in op:
            w = regs_of(ops[0]) + regs_of(ops[1]); r = [x for o in ops[2:] for x in regs_of(o)]
        elif op.startswith('v_nop'):
            pass
        else:
            w = regs_of(ops[0]); r = [x for o in ops[1:] for x in regs_of(o)]
            if op.startswith('v_fmac') or op.startswith('v_mac') or op.startswith('v_dot2c') or op.startswith('v_writelane'):
                r += w
            if op.startswith('v_cndmask') and len(ops) == 3:
                r.append(('vcc', 0))
            if I.dpp: r += w
    elif op.startswith(('buffer_', 'global_', 'flat_', 'scratch_')):
        I.kind = 'vmem'
        islds = (' lds' in t) or ('_lds_' in op)
        if 'load' in op and not islds:
            w = regs_of(ops[0]); r = [x for o in ops[1:] for x in regs_of(o)]
        elif 'atomic' in op and ' sc0' in t:
            w = regs_of(ops[0]); r = [x for o in ops for x in regs_of(o)]
        else:
            r = [x for o in ops for x in regs_of(o)]
            if islds: r.append(('m0', 0))
            if 'store' in op and ('x3' in op or 'x4' in op):
                I.wide_store = regs_of(ops[1]) if op.startswith('global_') else regs_of(ops[0])
    elif op.startswith('ds_'):
        I.kind = 'ds'
        if 'read' in op or 'permute' in op or 'swizzle' in op or '_rtn' in op:
            w = regs_of(ops[0]); r = [x for o in ops[1:] for x in regs_of(o)]
        else:
            r = [x for o in ops for x in regs_of(o)]
    elif op.startswith('s_load') or op.startswith('s_memtime') or op.startswith('s_memrealtime') or op.startswith('s_buffer_load'):
        I.kind = 'smem'
        w = regs_of(ops[0]); r = [x for o in ops[1:] for x in regs_of(o)]
    elif op.startswith('s_'):
        I.kind = 'salu'
        if op.startswith(('s_nop', 's_waitcnt', 's_barrier', 's_endpgm', 's_branch', 's_cbranch', 's_setprio', 's_sleep')):
            pass
        elif op.startswith('s_cmp') or op.startswith('s_bitcmp'):
            r = [x for o in ops for x in regs_of(o)]
        else:
            w = regs_of(ops[0]); r = [x for o in ops[1:] for x in regs_of(o)]
            if 'saveexec' in op: w.append(('exec', 0))
    else:
        raise ValueError('unknown instr ' + text)
    I.w = set(w); I.r = set(r)
    return I

class Asm:
    def __init__(self):
        self.lines = []
        self.hist = []
        self.pos = 0
        self.vm = []
        self.lg = []
        self.sm = []
        self.nops = 0
    def raw(self, s):
        self.lines.append(s)
    def comment(self, s):
        self.lines.append('    ; ' + s)
    def label(self, name):
        self.lines.append(name + ':')
    def need(self, I):
        n = 0
        for (P, ppos) in self.hist:
            d = self.pos - ppos - 1
            req = 0
            pw = P.w
            if P.kind == 'valu':
                vw = {x for x in pw if x[0] in 'va'}
                sw = {x for x in pw if x[0] in ('s', 'vcc', 'exec')}
                if I.kind == 'mfma' and vw & I.r: req = max(req, 2)
                if I.kind == 'valu':
                    if P.trans and (vw & I.r) and not I.trans: req = max(req, 1)
                    if P.trans and (vw & I.r) and I.trans: req = max(req, 1)
                    if I.op.startswith(('v_readlane', 'v_readfirstlane')) and vw & I.r: req = max(req, 1)
                    if I.op.startswith('v_permlane') and vw & I.r: req = max(req, 2)
                    if I.dpp and vw & I.r: req = max(req, 2)
                    if sw & I.r: req = max(req, 4 if I.op.startswith(('v_readlane', 'v_writelane')) else 2)
                    if P.dot and (vw & (I.r | I.w)):
                        if not (I.op == P.op): req = max(req, 3)
                        else: req = max(req, 3 if False else 0)
                    if ('exec', 0) in sw: req = max(req, 5)
                if P.dot and I.kind in ('vmem', 'ds', 'mfma') and (vw & I.r): req = max(req, 3)
                if P.trans and I.kind in ('vmem', 'ds') and (vw & I.r): req = max(req, 1)
                if I.kind == 'vmem' and sw & I.r: req = max(req, 5)
                if I.kind == 'salu' and sw & I.r: req = max(req, 1)
                if I.kind == 'mfma' and ('exec', 0) in sw: req = max(req, 4)
            elif P.kind == 'mfma':
                big = 12 if P.passes == 8 else 8
                if I.kind == 'mfma':
                    if pw & set(I.srcAB): req = max(req, big)
                    c = set(I.srcC)
                    if pw & c:
                        if c == pw and I.passes == P.passes: pass
                        else: req = max(req, big - 2)
                    elif pw & I.w: req = max(req, big)
                elif I.kind in ('valu', 'vmem', 'ds'):
                    if pw & (I.r | I.w): req = max(req, big)
                if I.kind in ('valu',) and set(P.srcC) & I.w: req = max(req, 7 if P.passes == 8 else 3)
                if I.kind in ('vmem', 'ds') and set(P.srcC) & I.w: req = max(req, 7 if P.passes == 8 else 3)
            elif P.kind == 'vmem':
                if P.wide_store and (set(P.wide_store) & I.w): req = max(req, 2)
            elif P.kind == 'salu':
                if ('m0', 0) in pw and ('m0', 0) in I.r and I.kind == 'vmem': req = max(req, 1)
            n = max(n, req - d)
        return n
    def check_pending(self, I):
        touched = I.r | I.w
        for q, nm in ((self.vm, 'vm'), (self.lg, 'lgkm')):
            for tag, regs in q:
                if regs & touched:
                    raise RuntimeError(f'pending {nm} load {tag} regs touched by: {I.text}')
        if self.sm and (set(self.sm) & touched):
            raise RuntimeError(f'pending smem regs touched by: {I.text}')
    def I(self, text, tag=None):
        I = parse(text)
        self.check_pending(I)
        n = self.need(I)
        while n > 0:
            k = min(n, 8)
            self.lines.append(f'    s_nop {k-1}')
            self.pos += k; n -= k; self.nops += k
        self.lines.append('    ' + text)
        if I.op == 's_nop':
            self.pos += int(text.split()[1]) + 1
        else:
            self.hist.append((I, self.pos))
            self.pos += 1
        self.hist = [(p, q) for (p, q) in self.hist if self.pos - q < 16]
        if I.kind == 'vmem':
            self.vm.append((tag, {x for x in I.w}))
        elif I.kind == 'ds':
            self.lg.append((tag, {x for x in I.w}))
        elif I.kind == 'smem':
            self.sm += list(I.w)
        return I
    def __call__(self, text, tag=None):
        for ln in text.strip().split('\n'):
            ln = ln.strip()
            if ln: self.I(ln, tag)
    def _cnt(self, q, tag):
        idx = [i for i, (t, _) in enumerate(q) if t == tag]
        if not idx: return None
        return len(q) - 1 - max(idx)
    def wait_vm(self, tag=None):
        n = 0 if tag is None else self._cnt(self.vm, tag)
        if n is None: return
        n = min(n, 63)
        self.I(f's_waitcnt vmcnt({n})')
        self.vm = self.vm[len(self.vm) - n:] if n else []
    def wait_lg(self, tag=None):
        n = 0 if tag is None else self._cnt(self.lg, tag)
        if n is None: return
        if self.sm: n = 0
        n = min(n, 15)
        self.I(f's_waitcnt lgkmcnt({n})')
        self.lg = self.lg[len(self.lg) - n:] if n else []
        if n == 0: self.sm = []
    def wait_all(self):
        self.I('s_waitcnt vmcnt(0) lgkmcnt(0)')
        self.vm = []; self.lg = []; self.sm = []
    def text(self):
        return '\n'.join(self.lines) + '\n'
    prof = None
    def stamp(self, name='', real=False):
        if self.prof is None: return
        k = len(self.stamps) if hasattr(self, 'stamps') else 0
        if k == 0: self.stamps = []
        assert k < 30
        self.stamps.append(name)
        self.I(f's_{"memrealtime" if real else "memtime"} s[{40+2*k}:{41+2*k}]')
    def prof_end(self, wave_sgpr='s3', srd='s[8:11]'):
        if self.prof is None: return
        self.stamp('end')
        self.stamp('rend', real=True)
        self.wait_all()
        self.stamp('drained')
        self.wait_all()
        self.I('s_mov_b64 exec, -1')
        self.I('v_mov_b32 v2, 0')
        for k in range(len(self.stamps)):
            self.I(f'v_writelane_b32 v2, s{40+2*k}, {k}')
        self.I('v_mbcnt_lo_u32_b32 v3, -1, 0')
        self.I('v_mbcnt_hi_u32_b32 v3, -1, v3')
        self.I('v_lshlrev_b32 v3, 2, v3')
        self.I('s_lshl_b32 s100, s2, 10')
        self.I(f's_lshl_b32 s101, {wave_sgpr}, 8')
        self.I('s_add_u32 s100, s100, s101')
        self.I(f's_add_u32 s100, s100, {0x2000000 + self.prof * 0x80000}')
        self.I(f'buffer_store_dword v2, v3, {srd}, s100 offen')
        PROF_NAMES[self.prof] = list(self.stamps)
PROF_NAMES = {}

def vr(b, n=1, p='v'):
    return f'{p}{b}' if n == 1 else f'{p}[{b}:{b+n-1}]'
def ar(b, n=1):
    return vr(b, n, 'a')
def sr(b, n=1):
    return vr(b, n, 's')

def kernel_text(name, body, vgpr, accum, sgpr=102):
    code = f'.globl {name}\n.p2align 8\n.type {name},@function\n{name}:\n' + body
    desc = f'''.p2align 6
.amdhsa_kernel {name}
  .amdhsa_next_free_vgpr {vgpr}
  .amdhsa_next_free_sgpr {sgpr}
  .amdhsa_accum_offset {accum}
  .amdhsa_group_segment_fixed_size 0
  .amdhsa_kernarg_size 80
  .amdhsa_user_sgpr_count 2
  .amdhsa_user_sgpr_kernarg_segment_ptr 1
  .amdhsa_system_sgpr_workgroup_id_x 1
.end_amdhsa_kernel
'''
    return code, desc
```

```python
from emit import *
from lay2 import *

NA, NB, NC = 160, 80, 128
K0_GRID = NA + NB + NC
K0_LDS = 40960

def srd(A, d, lo, hi, size):
    A(f's_mov_b32 s{d}, s{lo}')
    A(f's_and_b32 s{d+1}, s{hi}, 0xffff')
    A(f's_mov_b32 s{d+2}, {size}')
    A(f's_mov_b32 s{d+3}, 0x00020000')

def gen_k0():
    A = Asm()
    A('s_load_dwordx16 s[4:19], s[0:1], 0')
    A('s_load_dwordx4 s[20:23], s[0:1], 64')
    A(f's_cmp_ge_u32 s2, {K0_GRID}')
    A('s_cbranch_scc1 K0_END')
    A('v_and_b32 v1, 63, v0')
    A('v_lshrrev_b32 v2, 6, v0')
    A('s_nop 0')
    A('v_readfirstlane_b32 s3, v2')
    A.wait_lg()
    srd(A, 24, 22, 23, WS_SIZE)
    A(f's_cmp_ge_u32 s2, {NA}')
    A('s_cbranch_scc1 K0_BC')
    A('s_cmp_ge_u32 s2, 80')
    A('s_cselect_b32 s36, 1, 0')
    A('s_cselect_b32 s28, s12, s6')
    A('s_cselect_b32 s29, s13, s7')
    A('s_and_b32 s29, s29, 0xffff')
    A(f's_mov_b32 s30, {640*1920*2}')
    A('s_mov_b32 s31, 0x00020000')
    srd(A, 32, 14, 15, 32*400*2)
    A('s_mul_i32 s37, s36, 80')
    A('s_sub_u32 s37, s2, s37')
    A('s_mul_i32 s38, s37, 205')
    A('s_lshr_b32 s38, s38, 10')
    A('s_mul_i32 s39, s38, 5')
    A('s_sub_u32 s39, s37, s39')
    A('v_and_b32 v3, 31, v1')
    A('v_lshrrev_b32 v4, 5, v1')
    A('v_and_b32 v5, 0x13, v3')
    A('v_bfe_u32 v6, v3, 2, 1')
    A('v_lshl_or_b32 v5, v6, 3, v5')
    A('v_bfe_u32 v6, v3, 3, 1')
    A('v_lshl_or_b32 v5, v6, 2, v5')
    A('s_lshl_b32 s40, s39, 2')
    A('s_add_u32 s40, s40, s3')
    A('s_lshl_b32 s41, s40, 5')
    A('v_add_u32 v5, s41, v5')
    A('v_mul_u32_u24 v5, 3840, v5')
    A('v_lshl_add_u32 v6, v4, 4, v5')
    def off(cc):
        part = cc // 5
        base = [1280, 2560, 0][part]
        return base + 16 * (cc % 5)
    A(f'v_mul_u32_u24 v7, {off(5)-off(4)}, v4')
    A('v_add_u32 v7, v7, v5')
    A('s_mul_i32 s42, s38, 80')
    for u in range(8):
        va = 'v7' if u == 2 else ('v5' if u == 7 else 'v6')
        A(f'buffer_load_dwordx4 {vr(16+4*u,4)}, {va}, s[28:31], s42 offen offset:{off(2*u)}', tag='wa')
    A('s_mul_i32 s43, s38, 1600')
    A('v_lshlrev_b32 v8, 1, v0')
    for rr in range(4):
        A(f'buffer_load_ushort v{48+rr}, v8, s[32:35], s43 offen offset:{512*rr}', tag='wp')
    A('v_lshlrev_b32 v9, 4, v0')
    for k in range(4): A(f'v_mov_b32 v{52+k}, 0')
    for k in range(9):
        A(f'ds_write_b128 v9, v[52:55] offset:{4096*k}')
    A('v_bfe_u32 v10, v0, 5, 1')
    A('v_bfe_u32 v11, v0, 3, 2')
    A('v_and_b32 v12, 3, v0')
    A('v_lshl_add_u32 v12, v11, 2, v12')
    A('v_bfe_u32 v13, v0, 6, 1')
    A('v_bfe_u32 v14, v0, 2, 1')
    A('v_mul_u32_u24 v15, 80, v13')
    A('v_mul_u32_u24 v57, 10, v14')
    A('v_add_u32 v15, v15, v57')
    A('v_mul_u32_u24 v57, 6, v14')
    A('v_lshl_add_u32 v58, v14, 2, 12')
    A('v_cmp_eq_u32 vcc, 1, v13')
    A('v_cndmask_b32 v57, v57, v58, vcc')
    A('v_add_u32 v57, 30, v57')
    A('v_cmp_gt_u32 s[46:47], 10, v12')
    A('v_cndmask_b32 v15, v57, v15, s[46:47]')
    A('v_mul_u32_u24 v57, 20, v10')
    A('v_add3_u32 v14, v15, v57, v12')
    A('v_mul_u32_u24 v15, 272, v0')
    A('v_lshl_add_u32 v15, v14, 1, v15')
    A('v_lshl_add_u32 v57, v13, 1, v12')
    A('v_cmp_gt_u32 s[44:45], 16, v57')
    A('v_cmp_gt_u32 vcc, 0x80, v0')
    A('s_not_b64 s[46:47], s[46:47]')
    A('s_cmp_eq_u32 s36, 0')
    A('s_cselect_b64 s[48:49], -1, s[46:47]')
    A('s_and_b64 s[44:45], s[44:45], vcc')
    A('s_and_b64 s[44:45], s[44:45], s[48:49]')
    A('v_mov_b32 v56, 0x3f80')
    A.wait_lg()
    A('s_barrier')
    A('s_mov_b64 exec, s[44:45]')
    A('ds_write_b16 v15, v56')
    A('s_mov_b64 exec, -1')
    A('s_cmp_eq_u32 s36, 0')
    A('s_cbranch_scc1 K0_A_NOPHI')
    A.wait_vm('wp')
    for rr in range(4):
        A(f'v_add_u32 v10, {256*rr}, v0')
        A('v_cmp_le_u32 vcc, 400, v10')
        A('v_cndmask_b32 v11, 0, 1, vcc')
        A('v_mul_u32_u24 v12, 400, v11')
        A('v_sub_u32 v12, v10, v12')
        A('v_mul_u32_u24 v13, 205, v12')
        A('v_lshrrev_b32 v13, 12, v13')
        A('v_mul_u32_u24 v14, 20, v13')
        A('v_sub_u32 v14, v12, v14')
        A('v_mul_u32_u24 v15, 20, v11')
        A('v_add_u32 v15, v15, v13')
        if rr == 3:
            A('v_cmp_gt_u32 vcc, 800, v10')
            A('s_mov_b64 exec, vcc')
        A('v_cmp_le_u32 s[46:47], 10, v14')
        A('v_cndmask_b32 v58, 0, 1, s[46:47]')
        A('v_mul_u32_u24 v57, 10, v58')
        A('v_sub_u32 v57, v14, v57')
        A('v_lshrrev_b32 v59, 2, v57')
        A('v_and_b32 v57, 3, v57')
        A('v_lshl_add_u32 v57, v59, 3, v57')
        A('v_lshl_add_u32 v57, v58, 2, v57')
        A('v_lshl_add_u32 v57, v11, 5, v57')
        A('v_mul_u32_u24 v57, 272, v57')
        A('v_lshl_add_u32 v57, v15, 1, v57')
        A(f'ds_write_b16 v57, v{48+rr}')
        A(f'ds_write_b16 v57, v{48+rr} offset:{160+64*272}')
        if rr == 3:
            A('s_mov_b64 exec, -1')
    A.label('K0_A_NOPHI')
    A.wait_all()
    A('s_barrier')
    A('v_mul_u32_u24 v9, 272, v3')
    A('v_lshl_add_u32 v9, v4, 4, v9')
    need = {0: [0, 1, 2, 3], 1: [1, 2, 3, 4], 2: [3, 5, 6], 3: [4, 6, 7]}
    lst = [(t, u) for t in range(4) for u in need[t]]
    for n, (t, u) in enumerate(lst):
        A(f'ds_read_b128 {vr(128+4*n,4)}, v9 offset:{8704*t+32*u}', tag=f'b{n}')
        if n == 8: A.wait_lg('b3')
    for n, (t, u) in enumerate(lst):
        A.wait_lg(f'b{n}')
        c = '0' if u == need[t][0] else vr(64+16*t, 16)
        A(f'v_mfma_f32_32x32x16_bf16 {vr(64+16*t,16)}, {vr(16+4*u,4)}, {vr(128+4*n,4)}, {c}')
    A('s_lshl_b32 s43, s38, 2')
    A('s_mul_i32 s43, s43, 40')
    A('s_lshl_b32 s44, s40, 1')
    A('s_add_u32 s43, s43, s44')
    A('s_lshl_b32 s43, s43, 10')
    A(f's_mul_i32 s44, s36, {WF["B"]-WF["A"]}')
    A('s_add_u32 s43, s43, s44')
    A('v_lshlrev_b32 v8, 4, v1')
    A('v_lshrrev_b32 v10, 5, v0')
    A('v_lshlrev_b32 v10, 9, v10')
    A('v_lshl_add_u32 v10, v3, 2, v10')
    for t in range(4):
        pk = 200 + 8 * t
        for x in range(8):
            A(f'v_cvt_pk_bf16_f32 v{pk+x}, v{64+16*t+2*x}, v{64+16*t+2*x+1}')
        A(f'buffer_store_dwordx4 {vr(pk,4)}, v8, s[24:27], s43 offen')
        A(f'buffer_store_dwordx4 {vr(pk+4,4)}, v8, s[24:27], s43 offen offset:1024')
        A(f's_add_u32 s43, s43, {40*1024}')
        A(f'v_lshlrev_b32 v11, 16, v{pk}')
        A(f'v_and_b32 v12, 0xffff0000, v{pk}')
        for x in range(1, 8):
            A(f'v_lshlrev_b32 v13, 16, v{pk+x}')
            A(f'v_and_b32 v14, 0xffff0000, v{pk+x}')
            A('v_add_f32 v11, v11, v13')
            A('v_add_f32 v12, v12, v14')
        A('v_add_f32 v11, v11, v12')
        A(f'ds_write_b32 v10, v11 offset:{36864+128*t}')
    A.wait_lg()
    A('s_barrier')
    A('s_cmp_ge_u32 s3, 2')
    A('s_cbranch_scc1 K0_END')
    A('v_lshlrev_b32 v10, 2, v0')
    for k in range(8):
        A(f'ds_read_b32 v{16+k}, v10 offset:{36864+512*k}')
    A.wait_lg()
    for k in range(1, 8):
        A(f'v_add_f32 v16, v16, v{16+k}')
    A('v_cvt_pk_bf16_f32 v17, v16, v16')
    A('v_lshlrev_b32 v18, 16, v17')
    A('v_sub_f32 v16, v16, v18')
    A('v_cvt_pk_bf16_f32 v19, v16, v16')
    A('v_lshlrev_b32 v18, 16, v19')
    A('v_sub_f32 v16, v16, v18')
    A('v_cvt_pk_bf16_f32 v20, v16, v16')
    A('v_mov_b32 v21, 0')
    A('v_lshrrev_b32 v10, 5, v0')
    A('v_lshlrev_b32 v10, 10, v10')
    A('v_lshl_add_u32 v10, v3, 4, v10')
    A('s_lshl_b32 s43, s38, 12')
    A(f's_mul_i32 s44, s36, {WC["B"]-WC["A"]}')
    A('s_add_u32 s43, s43, s44')
    A(f's_add_u32 s43, s43, {WC["A"]}')
    A('s_mul_i32 s44, s39, 3')
    for k, reg in ((0, 17), (1, 19), (2, 20), (3, 21)):
        if k == 3:
            A('s_cmp_lg_u32 s39, 4')
            A('s_cbranch_scc1 K0_END')
        A(f's_add_u32 s45, s44, {k}')
        A('s_lshr_b32 s46, s45, 3')
        A('s_lshl_b32 s46, s46, 9')
        A('s_and_b32 s45, s45, 7')
        A('s_lshl_b32 s45, s45, 1')
        A('s_add_u32 s45, s45, s46')
        A('s_add_u32 s45, s45, s43')
        A(f'buffer_store_short v{reg}, v10, s[24:27], s45 offen')
    A('s_endpgm')
    A.vm = []; A.lg = []
    A.label('K0_BC')
    A(f's_cmp_ge_u32 s2, {NA+NB}')
    A('s_cbranch_scc1 K0_C')
    A(f's_sub_u32 s37, s2, {NA}')
    A('s_cmp_ge_u32 s37, 40')
    A('s_cselect_b32 s36, 1, 0')
    A('s_cselect_b32 s28, s16, s8')
    A('s_cselect_b32 s29, s17, s9')
    A('s_and_b32 s29, s29, 0xffff')
    A(f's_mov_b32 s30, {640*640*2}')
    A('s_mov_b32 s31, 0x00020000')
    A('s_mul_i32 s38, s36, 40')
    A('s_sub_u32 s37, s37, s38')
    A('s_cmp_ge_u32 s37, 20')
    A('s_cselect_b32 s38, 1, 0')
    A('s_mul_i32 s39, s38, 20')
    A('s_sub_u32 s37, s37, s39')
    A('s_lshl_b32 s41, s38, 2')
    A('s_add_u32 s41, s41, s3')
    A('v_lshrrev_b32 v3, 4, v1')
    A('v_and_b32 v4, 15, v1')
    A('s_lshl_b32 s39, s37, 2')
    A('v_add_u32 v3, s39, v3')
    A('v_mul_u32_u24 v5, 205, v3')
    A('v_lshrrev_b32 v5, 10, v5')
    A('v_mul_u32_u24 v6, 5, v5')
    A('v_sub_u32 v6, v3, v6')
    A('v_mul_u32_u24 v5, 40, v5')
    A('v_mul_u32_u24 v7, 10, v6')
    A('v_add_u32 v7, v7, v5')
    A('v_add_u32 v5, 8, v5')
    A('v_mul_u32_u24 v7, 1280, v7')
    A('v_mul_u32_u24 v5, 1280, v5')
    A('v_lshrrev_b32 v9, 2, v4')
    A('v_and_b32 v10, 3, v4')
    A('v_lshl_add_u32 v9, v9, 3, v10')
    A('v_sub_u32 v10, v4, v9')
    A('v_lshlrev_b32 v10, 1, v10')
    A('v_lshl_add_u32 v7, v9, 1, v7')
    A('v_lshl_add_u32 v5, v9, 1, v5')
    A('v_cmp_eq_u32 vcc, 4, v6')
    A('s_mul_i32 s42, s41, 160')
    for j in range(8):
        o4 = 20 * ((j >> 1) & 1) + 10 * (j >> 2) + (j & 1)
        A(f'v_add_u32 v11, {1280*j}, v7')
        A(f'v_add_u32 v12, {1280*o4}, v5')
        A(f'v_cndmask_b32 v{96+2*j}, v11, v12, vcc')
        A(f'v_add_u32 v{97+2*j}, v{96+2*j}, v10')
        for mt in range(5):
            if mt < 4:
                A(f'buffer_load_ushort v{16+8*mt+j}, v{96+2*j}, s[28:31], s42 offen offset:{2*(32*(mt>>1)+4*(mt&1))}')
            else:
                A(f'buffer_load_ushort v{16+8*mt+j}, v{97+2*j}, s[28:31], s42 offen offset:128')
    A('s_mul_i32 s44, s41, 20')
    A('s_add_u32 s44, s44, s37')
    A('s_mul_i32 s44, s44, 5120')
    A(f's_mul_i32 s45, s36, {WOF["B"]-WOF["A"]}')
    A('s_add_u32 s44, s44, s45')
    A(f's_add_u32 s44, s44, {WOF["A"]}')
    A('v_lshlrev_b32 v8, 4, v1')
    A.wait_vm()
    for mt in range(5):
        for x in range(4):
            A(f'v_lshl_or_b32 v{64+4*mt+x}, v{16+8*mt+2*x+1}, 16, v{16+8*mt+2*x}')
        if mt < 4:
            A(f'buffer_store_dwordx4 {vr(64+4*mt,4)}, v8, s[24:27], s44 offen offset:{1024*mt}')
        else:
            A('s_add_u32 s44, s44, 4096')
            A(f'buffer_store_dwordx4 {vr(64+4*mt,4)}, v8, s[24:27], s44 offen')
    A('s_endpgm')
    A.vm = []; A.lg = []
    A.label('K0_C')
    A(f's_sub_u32 s37, s2, {NA+NB}')
    srd(A, 28, 4, 5, 2048*640*2)
    A('s_lshl_b32 s38, s37, 2')
    A('s_add_u32 s38, s38, s3')
    A('s_lshr_b32 s39, s38, 3')
    A('s_and_b32 s40, s38, 7')
    A('v_and_b32 v3, 31, v1')
    A('v_lshrrev_b32 v4, 5, v1')
    A('v_mul_u32_u24 v5, 1280, v3')
    A('v_lshl_add_u32 v5, v4, 4, v5')
    A(f's_mul_i32 s41, s39, {32*1280}')
    A('s_mul_i32 s42, s40, 160')
    A('s_add_u32 s41, s41, s42')
    for s in range(5):
        A(f'buffer_load_dwordx4 {vr(16+4*s,4)}, v5, s[28:31], s41 offen offset:{32*s}')
    for k in range(4): A(f'v_mov_b32 v{52+k}, -1')
    A('v_lshlrev_b32 v6, 4, v0')
    A('s_lshl_b32 s42, s37, 12')
    for base in (CLR0, KVP(0), KVP(0) + 0x80000, KVP(0) + 0x100000, KVF(0), KVF(0) + 0x80000):
        A(f's_add_u32 s43, s42, {base}')
        A('buffer_store_dwordx4 v[52:55], v6, s[24:27], s43 offen sc1')
    A('s_mul_i32 s42, s39, 40')
    A('s_mul_i32 s43, s40, 5')
    A('s_add_u32 s42, s42, s43')
    A('s_lshl_b32 s42, s42, 10')
    A(f's_add_u32 s42, s42, {X(0)}')
    A('v_lshlrev_b32 v8, 4, v1')
    A.wait_vm()
    for s in range(5):
        if s < 4:
            A(f'buffer_store_dwordx4 {vr(16+4*s,4)}, v8, s[24:27], s42 offen offset:{1024*s}')
        else:
            A('s_add_u32 s42, s42, 4096')
            A(f'buffer_store_dwordx4 {vr(16+4*s,4)}, v8, s[24:27], s42 offen')
    for k in range(20):
        A(f'v_lshlrev_b32 v{64+2*k}, 16, v{16+k}')
        A(f'v_and_b32 v{65+2*k}, 0xffff0000, v{16+k}')
    A('v_add_f32 v10, v64, v65')
    A('v_add_f32 v11, v66, v67')
    for k in range(2, 20):
        A(f'v_add_f32 v10, v10, v{64+2*k}')
        A(f'v_add_f32 v11, v11, v{65+2*k}')
    A('v_add_f32 v10, v10, v11')
    A('v_mov_b32 v11, v10')
    A('v_permlane32_swap_b32 v10, v11')
    A('v_add_f32 v10, v10, v11')
    A('v_mul_f32 v10, 0x3c4ccccd, v10')
    A('v_mov_b32 v12, 0')
    A('v_mov_b32 v13, 0')
    for k in range(20):
        A(f'v_sub_f32 v14, v{64+2*k}, v10')
        A(f'v_sub_f32 v15, v{65+2*k}, v10')
        A('v_fmac_f32 v12, v14, v14')
        A('v_fmac_f32 v13, v15, v15')
    A('v_add_f32 v12, v12, v13')
    A('v_mov_b32 v13, v12')
    A('v_permlane32_swap_b32 v12, v13')
    A('v_add_f32 v11, v12, v13')
    A('v_lshrrev_b32 v5, 4, v3')
    A('v_and_b32 v6, 15, v3')
    A('v_lshlrev_b32 v5, 10, v5')
    A('v_lshl_add_u32 v5, v6, 3, v5')
    A('s_lshl_b32 s42, s39, 11')
    A('s_lshl_b32 s43, s40, 7')
    A('s_add_u32 s42, s42, s43')
    A(f's_add_u32 s42, s42, {ST(0)}')
    A('s_mov_b64 exec, 0xffffffff')
    A('buffer_store_dwordx2 v[10:11], v5, s[24:27], s42 offen')
    A.label('K0_END')
    A('s_endpgm')
    return A.text()
```

```python
from emit import *
from lay import *

K1_LDS = 163840
ACC = 64
WB = 128
WCR = 192
STR = 208
PK = 216
TMP = 8
V_LANE16 = 1
V_R = 2
V_RL = 3
V_NM = 4
V_DS = 48
V_REC = 49
V_TRA = 50; V_TRB = 51
V_AT0 = 52; V_AT1 = 53; V_AT2 = 54; V_AT3 = 55
V_PQ0 = 56; V_PQ1 = 57
X1 = 58; X2 = 59; X3 = 60; X4 = 61; X5 = 62
RS = 288

def emit_items(A, items):
    for it in items:
        if isinstance(it, str): A(it)
        elif it[0] == 'i': A(it[1], tag=it[2])
        elif it[0] == 'wvm': A.wait_vm(it[1])
        elif it[0] == 'wlg': A.wait_lg(it[1])
        else: raise ValueError(it)

def cost(it):
    if isinstance(it, str):
        return 2 if it.startswith(('v_exp', 'v_rcp', 'v_sqrt', 'v_rsq')) else 1
    return 1

def merge(groups, fill, budget):
    out = []
    fill = list(fill)
    for g in groups:
        out += g
        b = budget
        while fill and b > 0:
            it = fill.pop(0)
            out.append(it); b -= cost(it)
    return out, fill

def phiA_items(src, dst, sc):
    it = []
    n = len(src)
    for b0 in range(0, n, 4):
        blk = src[b0:b0+4]
        t = [TMP + 2*k for k in range(len(blk))]
        for a, tt in zip(blk, t): it.append(f'v_mul_f32 v{tt}, v{a}, v{V_RL}')
        for a, tt in zip(blk, t): it.append(f'v_max_f32 v{tt+1}, 0, v{a}')
        for a, tt in zip(blk, t): it.append(f'v_exp_f32_e64 v{tt}, v{tt} clamp')
        for a, tt in zip(blk, t): it.append(f'v_fma_f32 v{tt+1}, v{tt+1}, v{V_R}, s{sc}')
        for a, tt in zip(blk, t): it.append(f'v_add_f32 v{tt}, v{tt}, v{tt+1}')
        for k in range(0, len(blk), 2):
            it.append(f'v_cvt_pk_bf16_f32 v{dst[(b0+k)//2]}, v{t[k]}, v{t[k+1]}')
    return it

def phiB_items(src, dst):
    it = []
    it.append(f'v_max3_f32 v{X1}, v{src[0]}, v{src[1]}, v{src[2]}')
    it.append(f'v_min3_f32 v{X2}, v{src[0]}, v{src[1]}, v{src[2]}')
    for k in range(3, 19, 2):
        it.append(f'v_max3_f32 v{X1}, v{X1}, v{src[k]}, v{src[k+1]}')
        it.append(f'v_min3_f32 v{X2}, v{X2}, v{src[k]}, v{src[k+1]}')
    it.append(f'v_max_f32 v{X1}, v{X1}, v{src[19]}')
    it.append(f'v_min_f32 v{X2}, v{X2}, v{src[19]}')
    it.append(f'v_mul_f32_e64 v{X1}, -v{X1}, v{V_RL}')
    it.append(f'v_mul_f32 v{X2}, v{X2}, v{V_RL}')
    P = [TMP + k for k in range(20)]; N = [TMP + 20 + k for k in range(20)]
    for b0 in range(0, 20, 4):
        for k in range(b0, b0+4):
            it.append(f'v_fma_f32 v{P[k]}, v{src[k]}, v{V_RL}, v{X1}')
            it.append(f'v_fma_f32 v{N[k]}, -v{src[k]}, v{V_RL}, v{X2}')
        for k in range(b0, b0+4):
            it.append(f'v_exp_f32 v{P[k]}, v{P[k]}')
            it.append(f'v_exp_f32 v{N[k]}, v{N[k]}')
        def addblk(bb):
            r = []
            for k in range(bb, bb+4):
                if k == 0: continue
                if k == 1:
                    r.append(f'v_add_f32 v{X3}, v{P[0]}, v{P[1]}'); r.append(f'v_add_f32 v{X4}, v{N[0]}, v{N[1]}')
                else:
                    r.append(f'v_add_f32 v{X3}, v{X3}, v{P[k]}'); r.append(f'v_add_f32 v{X4}, v{X4}, v{N[k]}')
            return r
        if b0 > 0: it += addblk(b0 - 4)
    it += addblk(16)
    it.append(f'v_rcp_f32 v{X3}, v{X3}')
    it.append(f'v_rcp_f32 v{X4}, v{X4}')
    it.append('s_nop 0')
    for k in range(0, 20, 2):
        it.append(f'v_mul_f32 v{P[k]}, v{P[k]}, v{X3}')
        it.append(f'v_mul_f32 v{P[k+1]}, v{P[k+1]}, v{X3}')
        it.append(f'v_mul_f32 v{N[k]}, v{N[k]}, v{X4}')
        it.append(f'v_mul_f32 v{N[k+1]}, v{N[k+1]}, v{X4}')
        it.append(f'v_cvt_pk_bf16_f32 v{dst[k//2]}, v{P[k]}, v{P[k+1]}')
        it.append(f'v_cvt_pk_bf16_f32 v{dst[10+k//2]}, v{N[k]}, v{N[k+1]}')
    return it

def scale_items(src, dst):
    it = []
    for k in range(0, len(src), 2):
        it.append(f'v_mul_f32 v{src[k]}, v{src[k]}, v{V_R}')
        it.append(f'v_mul_f32 v{src[k+1]}, v{src[k+1]}, v{V_R}')
    for k in range(0, len(src), 2):
        it.append(f'v_cvt_pk_bf16_f32 v{dst[k//2]}, v{src[k]}, v{src[k+1]}')
    return it

def gen_k1(L, name, PD=4, prof=None):
    T = 'AB'[L & 1]
    F = 20 if T == 'A' else 40
    NT = 2 if T == 'A' else 3
    HS = 2048 if T == 'A' else 4096
    NU = 20 if T == 'A' else 40
    A = Asm(); A.prof = prof
    A('s_load_dwordx2 s[4:5], s[0:1], 72')
    A('s_cmp_ge_u32 s2, 256')
    A(f's_cbranch_scc1 {name}_END')
    A.stamp('rstart', real=True); A.stamp('start')
    A('v_lshrrev_b32 v2, 6, v0')
    A('v_and_b32 v250, 63, v0')
    A('v_readfirstlane_b32 s3, v2')
    A(f'v_lshlrev_b32 v{V_LANE16}, 4, v250')
    A('s_and_b32 s14, s2, 7')
    A('s_lshr_b32 s15, s2, 3')
    A('s_lshr_b32 s12, s14, 1')
    A('s_lshl_b32 s12, s12, 2')
    A('s_and_b32 s16, s15, 3')
    A('s_add_u32 s12, s12, s16')
    A('s_and_b32 s13, s14, 1')
    A('s_lshl_b32 s13, s13, 3')
    A('s_lshr_b32 s16, s15, 2')
    A('s_add_u32 s13, s13, s16')
    A('s_lshl_b32 s17, s12, 2')
    A('s_add_u32 s17, s17, s3')
    A('s_mul_i32 s18, s17, 40960')
    A(f's_add_u32 s18, s18, {XF}')
    A('s_mul_i32 s19, s13, 163840')
    A(f's_add_u32 s19, s19, {WF[T]}')
    A('s_lshr_b32 s20, s3, 1')
    A('s_mul_i32 s20, s20, 40960')
    A('s_and_b32 s21, s3, 1')
    A('s_lshl_b32 s21, s21, 11')
    A('s_add_u32 s20, s20, s21')
    A('s_add_u32 s21, s20, s19')
    A('s_lshl_b32 s22, s3, 11')
    A('s_add_u32 s23, s22, s19')
    A.wait_lg()
    A.stamp('karg')
    A('s_mov_b32 s8, s4')
    A('s_and_b32 s9, s5, 0xffff')
    A(f's_mov_b32 s10, {WS_SIZE}')
    A('s_mov_b32 s11, 0x00020000')
    groups = []
    for c in range(10):
        g = [f's_add_u32 m0, s20, {4096*c}',
             f's_add_u32 s24, s21, {4096*c}',
             ('i', f'buffer_load_dwordx4 v{V_LANE16}, s[8:11], s24 offen lds', f'c{c}'),
             ('i', f'buffer_load_dwordx4 v{V_LANE16}, s[8:11], s24 offen offset:1024 lds', f'c{c}'),
             f's_add_u32 s25, s18, {4096*c}']
        for k in range(4):
            g.append(('i', f'buffer_load_dwordx4 {ar(16*c+4*k,4)}, v{V_LANE16}, s[8:11], s25 offen offset:{1024*k}', f'c{c}'))
        groups.append(g)
    pairs = []
    for t in (2, 3):
        for k in range(5):
            o = t * 40960 + 8192 * k
            pairs.append([f's_add_u32 m0, s22, {o}', f's_add_u32 s24, s23, {o}',
                          ('i', f'buffer_load_dwordx4 v{V_LANE16}, s[8:11], s24 offen lds', f't{t}k{k}'),
                          ('i', f'buffer_load_dwordx4 v{V_LANE16}, s[8:11], s24 offen offset:1024 lds', f't{t}k{k}')])
    for k in range(0, 10, 3):
        groups.append(sum(pairs[k:k+3], []))
    misc = ['v_and_b32 v251, 31, v250', 'v_lshrrev_b32 v252, 5, v250',
            'v_lshlrev_b32 v253, 6, v251', 'v_lshl_add_u32 v253, v252, 5, v253',
            's_lshl_b32 s26, s17, 11', f's_add_u32 s26, s26, {ST}',
            ('i', f'buffer_load_dwordx4 {vr(STR,4)}, v253, s[8:11], s26 offen', 'st'),
            ('i', f'buffer_load_dwordx4 {vr(STR+4,4)}, v253, s[8:11], s26 offen offset:16', 'st'),
            's_lshl_b32 s26, s13, 12', f's_add_u32 s26, s26, {WC[T]}']
    for t in range(4):
        misc.append(('i', f'buffer_load_dwordx4 {vr(WCR+4*t,4)}, v{V_LANE16}, s[8:11], s26 offen offset:{1024*t}', 'st'))
    emit_items(A, groups[0]); emit_items(A, groups[1]); emit_items(A, misc)
    for c in range(2, PD): emit_items(A, groups[c])
    gi = PD
    A(f'v_mov_b32 v{V_DS}, v{V_LANE16}')
    A('s_lshl_b32 s26, s3, 5')
    A(f'v_add_u32 v{V_REC}, s26, v251')
    A(f'v_mul_u32_u24 v{V_REC}, {RS}, v{V_REC}')
    A(f'v_lshl_add_u32 v{V_REC}, v252, 7, v{V_REC}')
    A(f'v_lshrrev_b32 v{X1}, 2, v250')
    A(f'v_mul_u32_u24 v{X1}, {RS}, v{X1}')
    A(f'v_and_b32 v{X2}, 3, v250')
    A(f'v_lshl_add_u32 v{X1}, v{X2}, 3, v{X1}')
    A('s_lshr_b32 s27, s3, 1')
    A('s_and_b32 s28, s3, 1')
    A('s_lshl_b32 s26, s27, 7')
    A(f'v_add_u32 v{V_TRB}, s26, v{X1}')
    A('s_mul_i32 s26, s28, 24')
    A(f's_add_u32 s26, s26, {2*F}')
    A(f'v_add_u32 v{V_TRA}, s26, v{V_TRB}')
    A(f'v_lshrrev_b32 v{X1}, 4, v250')
    A(f'v_and_b32 v{X2}, 15, v250')
    A(f'v_lshlrev_b32 v{X3}, 2, v{X2}')
    A(f'v_lshl_add_u32 v{V_AT0}, v{X1}, 6, v{X3}')
    A('s_mul_i32 s26, s28, 768')
    A(f'v_add_u32 v{V_AT0}, s26, v{V_AT0}')
    TS = 64 if T == 'A' else 128
    TB = 1536 * (NT - 1)
    A(f'v_mul_u32_u24 v{V_AT2}, {TS//4}, v{X1}')
    A(f'v_add_u32 v{V_AT2}, v{V_AT2}, v{X3}')
    A(f's_mul_i32 s26, s28, {4*TS}')
    A(f's_add_u32 s26, s26, {TB}')
    A(f'v_add_u32 v{V_AT2}, s26, v{V_AT2}')
    A(f'v_mov_b32 v{X4}, {OOB}')
    A(f'v_cmp_gt_u32 vcc, 3, v{X1}')
    A(f'v_cndmask_b32 v{V_AT0}, v{X4}, v{V_AT0}, vcc')
    A(f'v_cndmask_b32 v{V_AT2}, v{X4}, v{V_AT2}, vcc')
    A(f'v_cmp_gt_u32 vcc, {TS//16}, v{X2}')
    A(f'v_cndmask_b32 v{V_AT2}, v{X4}, v{V_AT2}, vcc')
    A(f'v_add_u32 v{X1}, s28, v{X1}')
    A(f'v_cmp_gt_u32 vcc, 3, v{X1}')
    A(f'v_cndmask_b32 v{V_AT1}, v{X4}, v{V_AT0}, vcc')
    A(f'v_cndmask_b32 v{V_AT3}, v{X4}, v{V_AT2}, vcc')
    A('s_lshl_b32 s29, s13, 1')
    A('s_add_u32 s29, s29, s27')
    A(f's_mul_i32 s29, s29, {HS}')
    A(f's_add_u32 s29, s29, {KV(L)}')
    A(f'v_lshrrev_b32 v{X1}, 4, v251')
    A(f'v_mul_u32_u24 v{X1}, {NU*1024}, v{X1}')
    A(f'v_and_b32 v{X2}, 15, v251')
    A(f'v_lshl_add_u32 v{X1}, v{X2}, 4, v{X1}')
    A(f's_mul_i32 s30, s17, {2*NU*1024}')
    A(f's_add_u32 s30, s30, {PQ}')
    if T == 'A':
        A(f'v_lshl_add_u32 v{V_PQ0}, v252, 9, v{X1}')
        A(f'v_lshl_add_u32 v{V_PQ1}, v252, 3, v{X1}')
        A('s_lshr_b32 s26, s13, 2')
        A('s_mul_i32 s26, s26, 5120')
        A('s_add_u32 s30, s30, s26')
        A('s_and_b32 s26, s13, 3')
        A('s_lshl_b32 s31, s26, 8')
        A('s_add_u32 s31, s31, s30')
        A('s_add_u32 s31, s31, 4096')
        A('s_lshl_b32 s26, s26, 10')
        A('s_add_u32 s30, s30, s26')
    else:
        A(f'v_lshl_add_u32 v{V_PQ0}, v252, 10, v{X1}')
        A(f'v_lshl_add_u32 v{V_PQ1}, v252, 8, v{X1}')
        A('s_lshr_b32 s26, s13, 1')
        A('s_mul_i32 s26, s26, 5120')
        A('s_add_u32 s30, s30, s26')
        A('s_and_b32 s26, s13, 1')
        A('s_lshl_b32 s31, s26, 9')
        A('s_add_u32 s31, s31, s30')
        A('s_add_u32 s31, s31, 4096')
        A('s_lshl_b32 s26, s26, 11')
        A('s_add_u32 s30, s30, s26')
    A('s_mov_b32 s32, 0x358637bd')
    def rd(slot, t, s, tag):
        off = t * 40960 + s * 1024
        base, o = V_DS, off
        return ('i', f'ds_read_b128 {vr(WB+4*slot,4)}, v{dsreg(off)} offset:{off & 0xffff}', tag)
    DS1, DS2 = 248, 249
    def dsreg(off):
        return [V_DS, DS1, DS2][off >> 16]
    A(f'v_add_u32 v{DS1}, 0x10000, v{V_DS}')
    A(f'v_add_u32 v{DS2}, 0x20000, v{V_DS}')
    def chunk_reads(c):
        return [rd((c & 1) * 8 + 2 * k + t, t, 4 * c + k, f'r{c}_{k}_{t}') for k in range(4) for t in range(2)]
    A.wait_vm('c0'); A.stamp('c0'); A('s_barrier')
    emit_items(A, chunk_reads(0))
    stats_items = [('wvm', 'st'),
        f'v_add_f32 v{X1}, v{STR}, v{STR+2}', f'v_add_f32 v{X2}, v{STR+4}, v{STR+6}',
        f'v_add_f32 v{X1}, v{X1}, v{X2}', f'v_mov_b32 v{X2}, v{X1}',
        f'v_add_f32 v{X3}, v{STR+1}, v{STR+3}',
        f'v_permlane32_swap_b32 v{X1}, v{X2}',
        f'v_add_f32 v{X4}, v{STR+5}, v{STR+7}',
        f'v_add_f32 v{X1}, v{X1}, v{X2}',
        f'v_mul_f32 v{X1}, 0.125, v{X1}',
        f'v_add_f32 v{X3}, v{X3}, v{X4}',
        f'v_sub_f32 v{STR}, v{STR}, v{X1}', f'v_sub_f32 v{STR+2}, v{STR+2}, v{X1}',
        f'v_sub_f32 v{STR+4}, v{STR+4}, v{X1}', f'v_sub_f32 v{STR+6}, v{STR+6}, v{X1}',
        f'v_mul_f32 v{X2}, v{STR}, v{STR}', f'v_fmac_f32 v{X2}, v{STR+2}, v{STR+2}',
        f'v_fmac_f32 v{X2}, v{STR+4}, v{STR+4}', f'v_fmac_f32 v{X2}, v{STR+6}, v{STR+6}',
        f'v_fmac_f32 v{X3}, 0x42a00000, v{X2}',
        f'v_mov_b32 v{X4}, v{X3}',
        f'v_cvt_pk_bf16_f32 v{V_NM}, -v{X1}, -v{X1}',
        f'v_permlane32_swap_b32 v{X3}, v{X4}',
        f'v_mov_b32 v{V_NM+1}, v{V_NM}',
        f'v_add_f32 v{X3}, v{X3}, v{X4}',
        f'v_mul_f32 v{X3}, 0x3acccccd, v{X3}',
        f'v_cvt_pk_bf16_f32 v{X3}, v{X3}, v{X3}',
        f'v_mov_b32 v{V_NM+2}, v{V_NM}',
        f'v_lshlrev_b32 v{X3}, 16, v{X3}',
        f'v_add_f32 v{X3}, 0x3727c5ac, v{X3}',
        f'v_cvt_pk_bf16_f32 v{X3}, v{X3}, v{X3}',
        f'v_lshlrev_b32 v{X3}, 16, v{X3}',
        f'v_sqrt_f32 v{X3}, v{X3}',
        f'v_mov_b32 v{V_NM+3}, v{V_NM}',
        f'v_cvt_pk_bf16_f32 v{X3}, v{X3}, v{X3}',
        f'v_lshlrev_b32 v{X3}, 16, v{X3}',
        f'v_rcp_f32 v{V_R}, v{X3}',
        's_nop 0',
        f'v_mul_f32 v{V_RL}, 0x3fb8aa3b, v{V_R}']
    def t_reads(t, s, slot):
        return rd(slot, t, s, f'q{t}_{s}')
    RING = 8
    for c in range(10):
        mf = []
        for k in range(4):
            for t in range(2):
                s = 4 * c + k
                cc = '0' if s == 0 else vr(ACC + 16 * t, 16)
                slot = (c & 1) * 8 + 2 * k + t
                mf.append([('wlg', f'r{c}_{k}_{t}'),
                           f'v_mfma_f32_32x32x16_bf16 {vr(ACC+16*t,16)}, {vr(WB+4*slot,4)}, {ar(4*s,4)}, {cc}'])
        fill1 = groups[gi] if gi < len(groups) else []
        gi += 1
        if c == 3: fill1 = fill1 + stats_items
        o1, rest = merge(mf[:4], fill1, 6)
        emit_items(A, o1); emit_items(A, rest)
        if c < 9:
            A.wait_vm(f'c{c+1}'); A.stamp(f'c{c+1}'); A('s_barrier')
            nxt = chunk_reads(c + 1)
        else:
            A.wait_vm('t2k0'); A('s_barrier')
            nxt = [t_reads(2, s, s) for s in range(8)]
        o2, rest = merge(mf[4:], nxt, 2)
        emit_items(A, o2); emit_items(A, rest)
    assert gi >= len(groups)
    def aug(t):
        return f'v_mfma_f32_32x32x16_bf16 {vr(ACC+16*t,16)}, {vr(WCR+4*t,4)}, {vr(V_NM,4)}, {vr(ACC+16*t,16)}'
    A.stamp('p1end')
    A(aug(0)); A(aug(1))
    kreg = [ACC + x for x in range(20)]
    v01 = [ACC + 20 + x for x in range(12)]
    v23 = [ACC + 32 + x for x in range(8)]
    qreg = [ACC + 40 + x for x in range(20)]
    npk = F // 2
    if T == 'A':
        fill = phiA_items(kreg, [PK + x for x in range(10)], 32)
    else:
        fill = phiB_items(kreg, [PK + x for x in range(20)])
    fill += scale_items(v01, [PK + npk + x for x in range(6)])
    nfull = (npk + 6) // 4
    for x in range(nfull):
        fill.append(('i', f'ds_write_b128 v{V_REC}, {vr(PK+4*x,4)} offset:{16*x}', 'rec'))
    def tile_groups(t, nxt_t):
        gs = []
        for s in range(40):
            g = []
            if s % 8 == 0 and s + 8 < 40:
                g += [('wvm', f't{t}k{s//8+1}'), 's_barrier']
            if s == 32 and nxt_t is not None:
                g += [('wvm', f't{nxt_t}k0'), 's_barrier']
            sn = s + RING
            if sn < 40: g.append(t_reads(t, sn, (sn + off0[t]) % 16))
            elif nxt_t is not None: g.append(t_reads(nxt_t, sn - 40, (sn - 40 + off0[nxt_t]) % 16))
            cc = '0' if s == 0 else vr(ACC + 16 * t, 16)
            g += [('wlg', f'q{t}_{s}'),
                  f'v_mfma_f32_32x32x16_bf16 {vr(ACC+16*t,16)}, {vr(WB+4*((s+off0[t])%16),4)}, {ar(4*s,4)}, {cc}']
            gs.append(g)
        gs.append([aug(t)])
        return gs
    off0 = {2: 0, 3: 8}
    g2 = tile_groups(2, 3)
    o, rest = merge(g2[:1], [], 0); emit_items(A, o)
    o, rest = merge(g2[1:], fill, 6); emit_items(A, o); emit_items(A, rest)
    A.stamp('t2end')
    emit_items(A, scale_items(v23, [PK + npk + 6 + x for x in range(4)]))
    A(f'v_mov_b32 v{PK+npk+10}, 0x3f80')
    ntot = (npk + 11 + 3) // 4
    for x in range(nfull, ntot):
        if 4 * x + 4 <= npk + 11 or T == 'B':
            A(f'ds_write_b128 v{V_REC}, {vr(PK+4*x,4)} offset:{16*x}', tag='rec')
        else:
            A(f'ds_write_b32 v{V_REC}, v{PK+4*x} offset:{16*x}', tag='rec')
    A.wait_lg('rec'); A('s_barrier'); A.stamp('recbar')
    KA = 64; KBf = [8, 24, 80]; KC = 250 - 0
    KC = PK
    for ks in range(4):
        for jh in range(2):
            o = (32 * ks + 16 * jh) * RS
            A(f'ds_read_b64_tr_b16 {vr(KA+4*ks+2*jh,2)}, v{V_TRA} offset:{o}', tag=f'k{ks}')
            for nt in range(NT):
                A(f'ds_read_b64_tr_b16 {vr(KBf[nt]+4*ks+2*jh,2)}, v{V_TRB} offset:{o+32*nt}', tag=f'k{ks}')
        if ks >= 1:
            A.wait_lg(f'k{ks-1}')
            for nt in range(NT):
                cc = '0' if ks == 1 else vr(KC + 4 * nt, 4)
                A(f'v_mfma_f32_16x16x32_bf16 {vr(KC+4*nt,4)}, {vr(KA+4*(ks-1),4)}, {vr(KBf[nt]+4*(ks-1),4)}, {cc}')
    A.wait_lg('k3')
    for nt in range(NT):
        A(f'v_mfma_f32_16x16x32_bf16 {vr(KC+4*nt,4)}, {vr(KA+12,4)}, {vr(KBf[nt]+12,4)}, {vr(KC+4*nt,4)}')
    A.stamp('kvend')
    atom = []
    for nt in range(NT):
        for r in range(4):
            if nt < NT - 1:
                va = V_AT0 if r == 0 else V_AT1; o = nt * 1536 + r * 192
            else:
                va = V_AT2 if r == 0 else V_AT3; o = r * TS
            atom.append(('i', f'buffer_atomic_add_f32 v{KC+4*nt+r}, v{va}, s[8:11], s29 offen offset:{o}', 'at'))
    g3 = tile_groups(3, None)
    QP = 228
    fill = list(atom)
    if T == 'A':
        fill += phiA_items(qreg[:8], [QP + x for x in range(4)], 32)
        fill.append(('i', f'buffer_store_dwordx4 {vr(QP,4)}, v{V_PQ0}, s[8:11], s30 offen', 'pq'))
    o, rest = merge(g3[:1], [], 0); emit_items(A, o)
    o, rest = merge(g3[1:], fill, 4); emit_items(A, o); emit_items(A, rest)
    A.stamp('t3end')
    if T == 'A':
        emit_items(A, phiA_items(qreg[8:], [QP + 4 + x for x in range(6)], 32))
        A(f'buffer_store_dwordx4 {vr(QP+4,4)}, v{V_PQ0}, s[8:11], s30 offen offset:256')
        A(f'buffer_store_dwordx2 {vr(QP+8,2)}, v{V_PQ1}, s[8:11], s31 offen')
    else:
        emit_items(A, phiB_items(qreg, [QP + x for x in range(20)]))
        for c in range(4):
            A(f'buffer_store_dwordx4 {vr(QP+4*c,4)}, v{V_PQ0}, s[8:11], s30 offen offset:{256*c}')
        A(f'buffer_store_dwordx4 {vr(QP+16,4)}, v{V_PQ1}, s[8:11], s31 offen')
    A.prof_end()
    A.label(f'{name}_END')
    A('s_endpgm')
    return A.text()
```

```python
WF = {'A': 0x000000, 'B': 0x280000}
WC = {'A': 0x500000, 'B': 0x510000}
WOF = {'A': 0x520000, 'B': 0x5F0000}
DBG = [False]
def X(L): return 0x700000 + (L * 0x280000 if DBG[0] else 0)
def O(L): return 0x1100000 + (L * 0x280000 if DBG[0] else 0)
CLR0 = 0x1C00000
def ST(L): return CLR0 if L == 1 else 0x1B00000 + L * 0x20000
def F2(L): return CLR0 + 0x20000 if L == 0 else 0x1B80000 + L * 0x20000
def KVF(L): return 0x3000000 + L * 0x100000
KVC = 0x20000
XI = CLR0 + 0x50000
def KVP(L): return 0x2800000 + L * 0x200000
def KVPS(L): return 0x20000
WS_SIZE = 0x10000000
OOB = 0x40000000
AR = 0x1D01000; EC = 0x1D04000; FL = 0x1D05000
```

```python
from emit import *
from lay2 import *
from k1 import emit_items

P_LDS = 163840
RS = 288
KREC = [0, 9216]
def PQ(rb): return 18432 + 9216 * rb
WOL = 55296
SC = 162816
LANE = 0; L16 = 1
VR = [2, 3]; VRL = [4, 5]; T0 = 6; T1 = 7
NM = 8; WCR = {'A': 12, 'B': 16}; XOLD = 20
DS1 = 30; DS2 = 31; REC0 = 32; REC = 33
TRA = {'B': [34, 35, 36], 'A': [37, 38]}; TRB0 = 39; TRB = 40
VSC = 41; VSTP = 42; VX = 43; VX3 = 44; VKA = {'A': 45, 'B': 46}; VPQ = 47
ACC = 48; RING = 80; TMP = 112; X1 = 132; X2 = 133; X3 = 134; X4 = 135; X5 = 136; X6 = 137
PK = 138; VC = 148; KFA = 152; KFB = 164; KC = 168; XL = 180; SENT = 184; STR = 112
S_RG = 20; S_HP = 21; S_BUD = 22; S_SAME = 23; S_EPS = 24; S_W2K = 25; S_XCC = 26
S_RBY = 27; S_CG = 28
BUDGET = 400000

def cost(it):
    if isinstance(it, str):
        if it.startswith(('v_exp', 'v_rcp', 'v_sqrt', 'v_rsq')): return 2
        if it.startswith('v_mfma'): return 4
        return 1
    if isinstance(it, list): return sum(cost(x) for x in it)
    return 1

def flat(items):
    out = []
    for it in items:
        if isinstance(it, list): out += flat(it)
        else: out.append(it)
    return out

def wreg(T, s):
    if T == 'A': return ar(4 * s, 4)
    return ar(160 + 4 * s, 4) if s < 24 else vr(192 + 4 * (s - 24), 4)

def dsaddr(off):
    return [L16, DS1, DS2][off >> 16], off & 0xffff

class P:
    def __init__(self, name, prof=None, nl=4, stamp_layers=(0, 1, 2, 3), opt=None):
        self.name = name; self.nl = nl; self.sl = stamp_layers
        self.A = Asm(); self.A.prof = prof
        self.nlab = 0
        self.opt = dict(FB=5, PRE=4, DMA_EVERY=4, YFB=1)
        if opt: self.opt.update(opt)
        self.L = 0
    def lab(self, s):
        self.nlab += 1
        return f'{self.name}_{s}{self.nlab}'
    def stamp(self, n):
        if self.L in self.sl: self.A.stamp(f'{n}{self.L}')
    def poll(self, loads, regs, tmp):
        A = self.A
        lp, lg = self.lab('poll'), self.lab('go')
        A('s_nop 4')
        A.label(lp)
        for t in loads: A(t)
        A.wait_vm()
        r = list(regs)
        if len(r) == 1: m = r[0]
        else:
            m = tmp
            if len(r) == 2:
                A(f'v_max_u32 v{m}, v{r[0]}, v{r[1]}'); r = []
            else:
                A(f'v_max3_u32 v{m}, v{r[0]}, v{r[1]}, v{r[2]}'); r = r[3:]
            while len(r) >= 2:
                A(f'v_max3_u32 v{m}, v{m}, v{r[0]}, v{r[1]}'); r = r[2:]
            if r: A(f'v_max_u32 v{m}, v{m}, v{r[0]}')
        A(f'v_cmp_eq_u32 vcc, -1, v{m}')
        A(f's_sub_u32 s{S_BUD}, s{S_BUD}, 1')
        A(f's_cbranch_scc1 {lg}')
        A(f's_cbranch_vccnz {lp}')
        A.label(lg)
        A(f's_max_i32 s{S_BUD}, s{S_BUD}, 0')
    def fstore(self, stores, tag=None):
        A = self.A
        ls, lj = self.lab('slow'), self.lab('join')
        A(f's_cmp_eq_u32 s{S_SAME}, 0')
        A(f's_cbranch_scc1 {ls}')
        n0 = len(A.lines)
        for t in stores: A(t, tag=tag)
        body = A.lines[n0:]
        A(f's_branch {lj}')
        A.label(ls)
        for ln in body:
            A.raw(ln + ' sc1' if 'buffer_store' in ln else ln)
        A.raw('    s_nop 0')
        A.label(lj)
    def srd_x(self, L):
        A = self.A
        A(f's_mul_i32 s30, s{S_RG}, 163840')
        A(f's_add_u32 s30, s30, {X(L)}')
        A('s_add_u32 s12, s4, s30')
        A('s_addc_u32 s13, s5, 0')
        A('s_and_b32 s13, s13, 0xffff')
    def srd_wo_items(self, T):
        return [f's_mul_i32 s30, s{S_CG}, 102400', f's_add_u32 s30, s30, {WOF[T] - WOL}',
                's_add_u32 s16, s4, s30', 's_addc_u32 s17, s5, 0', 's_and_b32 s17, s17, 0xffff']

    def prologue(self):
        A = self.A
        A('s_load_dwordx2 s[6:7], s[0:1], 56')
        A('s_load_dwordx2 s[4:5], s[0:1], 72')
        A('s_cmp_ge_u32 s2, 256')
        A(f's_cbranch_scc1 {self.name}_END')
        A.stamp('rstart', real=True); A.stamp('start')
        A('v_lshrrev_b32 v2, 6, v0')
        A('v_and_b32 v0, 63, v0')
        A('v_readfirstlane_b32 s3, v2')
        A(f'v_lshlrev_b32 v{L16}, 4, v0')
        A('s_and_b32 s30, s2, 7')
        A('s_lshr_b32 s31, s2, 3')
        A(f's_lshl_b32 s{S_RG}, s30, 1')
        A('s_and_b32 s30, s31, 1')
        A(f's_add_u32 s{S_RG}, s{S_RG}, s30')
        A(f's_lshr_b32 s{S_HP}, s31, 1')
        A(f's_lshr_b32 s{S_CG}, s{S_HP}, 1')
        A(f's_and_b32 s30, s{S_HP}, 1')
        A('s_lshl_b32 s30, s30, 2')
        A(f's_lshl_b32 s{S_RBY}, s{S_RG}, 3')
        A(f's_add_u32 s{S_RBY}, s{S_RBY}, s30')
        A(f's_add_u32 s{S_RBY}, s{S_RBY}, s3')
        A(f's_lshl_b32 s{S_W2K}, s3, 11')
        A(f's_mov_b32 s{S_BUD}, {BUDGET}')
        A(f's_mov_b32 s{S_EPS}, 0x358637bd')
        A(f's_getreg_b32 s{S_XCC}, hwreg(HW_REG_XCC_ID, 0, 16)')
        A('s_mov_b32 s10, %d' % WS_SIZE); A('s_mov_b32 s11, 0x00020000')
        A('s_mov_b32 s14, 163840'); A('s_mov_b32 s15, 0x00020000')
        A(f's_mov_b32 s18, {WOL + 102400}'); A('s_mov_b32 s19, 0x00020000')
        A(f'v_bfe_u32 v{T0}, v0, 4, 1')
        A(f'v_lshrrev_b32 v{T1}, 5, v0')
        A(f'v_lshlrev_b32 v{T0}, 10, v{T0}')
        A(f'v_lshl_add_u32 v{T0}, v{T1}, 9, v{T0}')
        A(f'v_and_b32 v{T1}, 15, v0')
        A(f'v_lshl_add_u32 v{VSTP}, v{T1}, 3, v{T0}')
        A('s_and_b32 s30, s3, 1')
        A('s_lshl_b32 s30, s30, 8')
        A(f'v_lshlrev_b32 v{T1}, 4, v{T1}')
        A(f'v_add_u32 v{T1}, s30, v{T1}')
        A(f'v_lshrrev_b32 v{T0}, 4, v0')
        A(f'v_lshl_add_u32 v{VX}, v{T0}, 9, v{T1}')
        A(f'v_lshrrev_b32 v2, 5, v0')
        A(f'v_lshl_add_u32 v{T1}, v2, 9, v{T1}')
        A(f'v_and_b32 v{T0}, 1, v{T0}')
        A(f'v_lshl_add_u32 v{T1}, v{T0}, 3, v{T1}')
        A(f'v_add_u32 v{VX3}, 0x1000, v{T1}')
        A.wait_lg()
        A('s_mov_b32 s8, s4')
        A('s_and_b32 s9, s5, 0xffff')
        self.srd_x(0)

    def setup_addr(self):
        it = []
        a = it.append
        a(f'v_add_u32 v{DS1}, 0x10000, v{L16}')
        a(f'v_add_u32 v{DS2}, 0x20000, v{L16}')
        a(f'v_and_b32 v{T0}, 31, v0')
        a(f'v_lshrrev_b32 v{T1}, 5, v0')
        a(f'v_lshlrev_b32 v{VSC}, 3, v{T0}')
        a(f'v_add_u32 v{VSC}, {SC}, v{VSC}')
        a(f'v_mul_u32_u24 v{T0}, {RS}, v{T0}')
        a(f'v_lshl_add_u32 v{T0}, v{T1}, 6, v{T0}')
        a('s_and_b32 s30, s3, 1')
        a('s_lshl_b32 s30, s30, 7')
        a(f'v_add_u32 v{REC0}, s30, v{T0}')
        a('s_mul_i32 s30, s3, 9216')
        a(f's_add_u32 s30, s30, {PQ(0)}')
        a(f'v_add_u32 v{VPQ}, s30, v{T0}')
        a(f'v_lshrrev_b32 v{T0}, 2, v0')
        a(f'v_mul_u32_u24 v{T0}, {RS}, v{T0}')
        a('s_lshr_b32 s30, s3, 1')
        a('s_lshl_b32 s30, s30, 7')
        a(f'v_add_u32 v{T0}, s30, v{T0}')
        a(f'v_and_b32 v{T1}, 3, v0')
        for T, nch in (('B', 5), ('A', 3)):
            for mt, r in enumerate(TRA[T]):
                a(f'v_add_u32 v{X1}, {4*mt}, v{T1}')
                a(f'v_min_u32 v{X1}, {2*nch-1}, v{X1}')
                a(f'v_cmp_le_u32 vcc, {nch}, v{X1}')
                a(f'v_cndmask_b32 v{X2}, 0, {64-8*nch}, vcc')
                a(f'v_lshl_add_u32 v{X1}, v{X1}, 3, v{X2}')
                a(f'v_add_u32 v{r}, v{X1}, v{T0}')
        a(f'v_lshrrev_b32 v{X1}, 1, v{T1}')
        a(f'v_and_b32 v{X2}, 1, v{T1}')
        a(f'v_lshlrev_b32 v{X1}, 6, v{X1}')
        a(f'v_lshl_add_u32 v{X1}, v{X2}, 3, v{X1}')
        a(f'v_lshlrev_b32 v{X2}, 6, v{X2}')
        a('s_bitcmp1_b32 s3, 0')
        a('s_cselect_b64 vcc, -1, 0')
        a(f'v_cndmask_b32 v{X1}, v{X1}, v{X2}, vcc')
        a(f'v_add3_u32 v{TRB0}, v{X1}, v{T0}, 48')
        a(f'v_bfe_u32 v{X1}, v0, 3, 2')
        a(f'v_and_b32 v{X2}, 3, v0')
        a(f'v_lshl_add_u32 v{X1}, v{X1}, 2, v{X2}')
        a(f'v_bfe_u32 v{X2}, v0, 2, 1')
        a(f'v_mul_u32_u24 v{X2}, 10, v{X2}')
        a(f'v_add_u32 v{X2}, v{X2}, v{X1}')
        a(f'v_cmp_le_u32 vcc, 6, v{X2}')
        a(f'v_cndmask_b32 v{X3}, 0, 2, vcc')
        a(f'v_cmp_le_u32 vcc, 12, v{X2}')
        a(f'v_cndmask_b32 v{X4}, 0, 2, vcc')
        a(f'v_add3_u32 v{X2}, v{X2}, v{X3}, v{X4}')
        a(f'v_cmp_gt_u32 vcc, 10, v{X1}')
        a(f'v_cndmask_b32 v{X2}, 6, v{X2}, vcc')
        a(f'v_lshrrev_b32 v{X1}, 5, v0')
        a(f'v_lshl_add_u32 v{X2}, v{X2}, 1, v{X1}')
        a(f'v_mul_u32_u24 v{VKA["A"]}, 24, v{X2}')
        a(f'v_mul_u32_u24 v{VKA["B"]}, 40, v{X2}')
        for k in range(4): a(f'v_mov_b32 v{SENT+k}, -1')
        a(f'v_mov_b32 v{VC+3}, 0x3f80')
        return it

    def stats_items(self):
        S = STR
        return [
        f'v_add_f32 v{X1}, v{S}, v{S+2}', f'v_add_f32 v{X2}, v{S+4}, v{S+6}',
        f'v_add_f32 v{X1}, v{X1}, v{X2}', f'v_mov_b32 v{X2}, v{X1}',
        f'v_add_f32 v{X3}, v{S+1}, v{S+3}',
        f'v_add_f32 v{X4}, v{S+5}, v{S+7}',
        f'v_permlane32_swap_b32 v{X1}, v{X2}',
        f'v_add_f32 v{X3}, v{X3}, v{X4}',
        f'v_add_f32 v{X1}, v{X1}, v{X2}',
        f'v_mul_f32 v{X1}, 0.125, v{X1}',
        f'v_sub_f32 v{S}, v{S}, v{X1}', f'v_sub_f32 v{S+2}, v{S+2}, v{X1}',
        f'v_sub_f32 v{S+4}, v{S+4}, v{X1}', f'v_sub_f32 v{S+6}, v{S+6}, v{X1}',
        f'v_mul_f32 v{X2}, v{S}, v{S}', f'v_fmac_f32 v{X2}, v{S+2}, v{S+2}',
        f'v_fmac_f32 v{X2}, v{S+4}, v{S+4}', f'v_fmac_f32 v{X2}, v{S+6}, v{S+6}',
        f'v_fmac_f32 v{X3}, 0x42a00000, v{X2}',
        f'v_mov_b32 v{X4}, v{X3}',
        f'v_cvt_pk_bf16_f32 v{X5}, -v{X1}, -v{X1}',
        f's_lshl_b32 s30, s3, 8',
        f'v_permlane32_swap_b32 v{X3}, v{X4}',
        f'v_add_u32 v{X1}, s30, v{VSC}',
        f'v_add_f32 v{X3}, v{X3}, v{X4}',
        f'v_mul_f32 v{X3}, 0x3acccccd, v{X3}',
        f'v_cvt_pk_bf16_f32 v{X3}, v{X3}, v{X3}',
        f'v_lshlrev_b32 v{X3}, 16, v{X3}',
        f'v_add_f32 v{X3}, 0x3727c5ac, v{X3}',
        f'v_cvt_pk_bf16_f32 v{X3}, v{X3}, v{X3}',
        f'v_lshlrev_b32 v{X3}, 16, v{X3}',
        f'v_sqrt_f32 v{X3}, v{X3}',
        f'v_cvt_pk_bf16_f32 v{X3}, v{X3}, v{X3}',
        f'v_lshlrev_b32 v{X3}, 16, v{X3}',
        f'v_rcp_f32 v{X6}, v{X3}',
        ('i', f'ds_write_b64 v{X1}, v[{X5}:{X6}]', 'sc')]
    def st_loads(self, L):
        return [f'buffer_load_dwordx2 {vr(STR+2*c,2)}, v{VSTP}, s[8:11], s31 offen offset:{128*c} sc1' for c in range(4)]
    def st_soff(self, L):
        return [f's_lshl_b32 s31, s{S_RG}, 13', f's_add_u32 s31, s31, s{S_W2K}', f's_add_u32 s31, s31, {ST(L)}']
    def xchunk(self, c):
        it = [f's_add_u32 m0, s{S_W2K}, {8192*c}']
        if c == 19: it.append(f's_min_u32 m0, m0, {157*1024}')
        it += [('i', f'buffer_load_dwordx4 v{L16}, s[12:15], m0 offen sc1 lds', f'x{c}'),
               ('i', f'buffer_load_dwordx4 v{L16}, s[12:15], m0 offen offset:1024 sc1 lds', f'x{c}')]
        if c == 19:
            it += [f's_mov_b32 s30, {159*1024}',
                   ('i', f'buffer_load_dwordx4 {vr(XL,4)}, v{L16}, s[12:15], s30 offen sc1', f'x{c}')]
        return it
    def wloads(self, T, s0, n):
        it = [f's_add_u32 s30, s29, {WF[T] + 1024*s0}']
        for k in range(n):
            it.append(('i', f'buffer_load_dwordx4 {wreg(T, s0+k)}, v{L16}, s[8:11], s30 offen offset:{1024*k}', f'w{T}{s0}'))
        return it
    def wo_dma(self, f0, f1):
        gs = []
        f = f0
        while f < f1:
            it = [f's_add_u32 m0, s{S_W2K}, {WOL + 1024*f}']
            if f + 8 > f1: it.append(f's_min_u32 m0, m0, {WOL + 1024*(f1-2)}')
            it += [('i', f'buffer_load_dwordx4 v{L16}, s[16:19], m0 offen lds', 'wo'),
                   ('i', f'buffer_load_dwordx4 v{L16}, s[16:19], m0 offen offset:1024 lds', 'wo')]
            gs.append(it); f += 8
        return gs
    def scread(self, rb):
        b = rb & 1
        return [('i', f'ds_read_b64 v[{T0}:{T1}], v{VSC} offset:{256*rb}', 'scr'), ('wlg', 'scr'),
                f'v_mov_b32 v{NM}, v{T0}', f'v_mov_b32 v{NM+1}, v{T0}', f'v_mov_b32 v{NM+2}, v{T0}', f'v_mov_b32 v{NM+3}, v{T0}',
                f'v_mov_b32 v{VR[b]}, v{T1}', f'v_mul_f32 v{VRL[b]}, 0x3fb8aa3b, v{T1}']
    def epilogue(self, T, rb):
        b = rb & 1
        ac = ACC + 16 * b; R = VR[b]; RL = VRL[b]
        it = []
        a = it.append
        a(['s_cmp_ge_u32 s3, 2', f's_cselect_b32 s30, {PQ(rb)-KREC[b]}, 0', f'v_add_u32 v{REC}, s30, v{REC0}'])
        KO = KREC[b]
        for k in range(10, 16): a(f'v_mul_f32 v{ac+k}, v{ac+k}, v{R}')
        for k in range(3): a(f'v_cvt_pk_bf16_f32 v{VC+k}, v{ac+10+2*k}, v{ac+11+2*k}')
        a(('i', f'ds_write_b128 v{REC}, {vr(VC,4)} offset:{KO+48}', 'rec'))
        if T == 'A':
            for b0, n in ((0, 4), (4, 4), (8, 2)):
                blk = [ac + b0 + k for k in range(n)]
                t = [TMP + 2 * k for k in range(n)]
                for x, tt in zip(blk, t): a(f'v_mul_f32 v{tt}, v{x}, v{RL}')
                for x, tt in zip(blk, t): a(f'v_max_f32 v{tt+1}, 0, v{x}')
                for x, tt in zip(blk, t): a(f'v_exp_f32_e64 v{tt}, v{tt} clamp')
                for x, tt in zip(blk, t): a(f'v_fma_f32 v{tt+1}, v{tt+1}, v{R}, s{S_EPS}')
                for x, tt in zip(blk, t): a(f'v_add_f32 v{tt}, v{tt}, v{tt+1}')
                for k in range(0, n, 2): a(f'v_cvt_pk_bf16_f32 v{PK+(b0+k)//2}, v{t[k]}, v{t[k+1]}')
                if b0 == 4: a(('i', f'ds_write_b128 v{REC}, {vr(PK,4)} offset:{KO}', 'rec'))
            a(f'v_mov_b32 v{PK+5}, 0')
            a(('i', f'ds_write_b64 v{REC}, {vr(PK+4,2)} offset:{KO+16}', 'rec'))
        else:
            s = [ac + k for k in range(10)]
            a(f'v_max3_f32 v{X1}, v{s[0]}, v{s[1]}, v{s[2]}')
            a(f'v_max3_f32 v{X2}, -v{s[0]}, -v{s[1]}, -v{s[2]}')
            for k in (3, 5, 7):
                a(f'v_max3_f32 v{X1}, v{X1}, v{s[k]}, v{s[k+1]}')
                a(f'v_max3_f32 v{X2}, v{X2}, -v{s[k]}, -v{s[k+1]}')
            a(f'v_max_f32 v{X1}, v{X1}, v{s[9]}')
            a(f'v_max_f32_e64 v{X2}, v{X2}, -v{s[9]}')
            a(f'v_permlane32_swap_b32 v{X1}, v{X2}')
            a(f'v_max_f32 v{X1}, v{X1}, v{X2}')
            a(f'v_mul_f32_e64 v{X1}, -v{X1}, v{RL}')
            a(f'v_mov_b32 v{X2}, v{X1}')
            a(f'v_permlane32_swap_b32 v{X1}, v{X2}')
            Pp = [TMP + k for k in range(10)]; N = [TMP + 10 + k for k in range(10)]
            prev = None
            def addblk(ks):
                for k in ks:
                    if k == 0: continue
                    if k == 1:
                        a(f'v_add_f32 v{X3}, v{Pp[0]}, v{Pp[1]}'); a(f'v_add_f32 v{X4}, v{N[0]}, v{N[1]}')
                    else:
                        a(f'v_add_f32 v{X3}, v{X3}, v{Pp[k]}'); a(f'v_add_f32 v{X4}, v{X4}, v{N[k]}')
            for ks in ((0, 1, 2, 3), (4, 5, 6, 7), (8, 9)):
                for k in ks:
                    a(f'v_fma_f32 v{Pp[k]}, v{s[k]}, v{RL}, v{X1}')
                    a(f'v_fma_f32 v{N[k]}, -v{s[k]}, v{RL}, v{X2}')
                for k in ks:
                    a(f'v_exp_f32 v{Pp[k]}, v{Pp[k]}')
                    a(f'v_exp_f32 v{N[k]}, v{N[k]}')
                if prev: addblk(prev)
                prev = ks
            addblk(prev)
            a(f'v_permlane32_swap_b32 v{X3}, v{X4}')
            a(f'v_add_f32 v{X3}, v{X3}, v{X4}')
            a(f'v_rcp_f32 v{X3}, v{X3}')
            a(f'v_mov_b32 v{X4}, v{X3}')
            a(f'v_permlane32_swap_b32 v{X3}, v{X4}')
            for half, (regs, sc) in enumerate(((Pp, X3), (N, X4))):
                for k in range(0, 10, 2):
                    a(f'v_mul_f32 v{regs[k]}, v{regs[k]}, v{sc}')
                    a(f'v_mul_f32 v{regs[k+1]}, v{regs[k+1]}, v{sc}')
                    a(f'v_cvt_pk_bf16_f32 v{PK+5*half+k//2}, v{regs[k]}, v{regs[k+1]}')
                    n = 5 * half + k // 2
                    if n == 3: a(('i', f'ds_write_b128 v{REC}, {vr(PK,4)} offset:{KO}', 'rec'))
                    if n == 7: a(('i', f'ds_write_b128 v{REC}, {vr(PK+4,4)} offset:{KO+16}', 'rec'))
                    if n == 9: a(('i', f'ds_write_b64 v{REC}, {vr(PK+8,2)} offset:{KO+32}', 'rec'))
        return it
    def kv(self, T, rb):
        b = rb & 1
        rd = [['s_bitcmp1_b32 s3, 0', f's_cselect_b32 s30, {PQ(rb)-KREC[b]}, 0', f'v_add_u32 v{TRB}, s30, v{TRB0}']]
        for jh in range(2):
            rd.append(('i', f'ds_read_b64_tr_b16 {vr(KFB+2*jh,2)}, v{TRB} offset:{KREC[b]+16*jh*RS}', 'kvr'))
        for mt, r in enumerate(TRA[T]):
            for jh in range(2):
                rd.append(('i', f'ds_read_b64_tr_b16 {vr(KFA+4*mt+2*jh,2)}, v{r} offset:{KREC[b]+16*jh*RS}', 'kvr'))
        mm = [('wlg', 'kvr')]
        for mt in range(len(TRA[T])):
            c = '0' if rb == 0 else vr(KC + 4 * mt, 4)
            mm.append(f'v_mfma_f32_16x16x32_bf16 {vr(KC+4*mt,4)}, {vr(KFA+4*mt,4)}, {vr(KFB,4)}, {c}')
        return rd, mm
    def clears(self, L):
        n = L + 1
        g1 = [f'v_lshrrev_b32 v{X5}, 3, v0', f'v_and_b32 v{X6}, 7, v0', f'v_lshlrev_b32 v{X5}, 11, v{X5}',
              f'v_lshl_add_u32 v{X5}, v{X6}, 4, v{X5}',
              f's_mul_i32 s30, s{S_HP}, {KVPS(n)}', f's_lshl_b32 s31, s{S_RG}, 7', 's_add_u32 s30, s30, s31',
              's_lshl_b32 s31, s3, 15', 's_add_u32 s30, s30, s31', f's_add_u32 s30, s30, {KVP(n)}',
              ('i', f'buffer_store_dwordx4 {vr(SENT,4)}, v{X5}, s[8:11], s30 offen sc1', 'clr'),
              's_add_u32 s30, s30, 16384',
              ('i', f'buffer_store_dwordx4 {vr(SENT,4)}, v{X5}, s[8:11], s30 offen sc1', 'clr')]
        g2 = [f's_lshl_b32 s30, s{S_HP}, 12', f's_lshl_b32 s31, s{S_RG}, 6', 's_add_u32 s30, s30, s31',
              's_lshl_b32 s31, s3, 10', 's_add_u32 s30, s30, s31', f's_add_u32 s30, s30, {KVF(n)}',
              f's_lshl_b32 s31, s{S_RG}, 13', f's_add_u32 s31, s31, s{S_W2K}', f's_lshl_b32 s32, s{S_HP}, 7',
              's_add_u32 s31, s31, s32', f's_add_u32 s31, s31, {F2(n)}',
              f's_lshl_b32 s32, s{S_RBY}, 10', f's_lshl_b32 s33, s{S_CG}, 7', 's_add_u32 s32, s32, s33',
              f's_add_u32 s32, s32, {ST(n)}',
              ['s_mov_b64 exec, 0xff',
               ('i', f'buffer_store_dwordx4 {vr(SENT,4)}, v{L16}, s[8:11], s32 offen sc1', 'clr'),
               's_mov_b64 exec, 0xf',
               ('i', f'buffer_store_dwordx4 {vr(SENT,4)}, v{L16}, s[8:11], s30 offen sc1', 'clr'),
               ('i', f'buffer_store_dwordx4 {vr(SENT,4)}, v{L16}, s[8:11], s31 offen sc1', 'clr'),
               's_mov_b64 exec, -1']]
        return [g1, g2]

    def layer(self, L):
        A = self.A; o = self.opt
        self.L = L
        T = 'AB'[L & 1]
        NG = 6 if T == 'A' else 10
        NR = 6 * NG
        last = (L == self.nl - 1)
        final = (L == 3)
        PF = 7
        queue = []
        if L == 0:
            emit_items(A, self.st_soff(0))
            for t in self.st_loads(0): A(t, tag='st')
            A(f's_lshl_b32 s29, s{S_HP}, 2'); A('s_add_u32 s29, s29, s3'); A('s_mul_i32 s29, s29, 40960')
            emit_items(A, self.xchunk(0)); emit_items(A, self.wloads('A', 0, 4)); emit_items(A, self.wloads('A', 4, 4))
            A(f's_lshl_b32 s30, s{S_RG}, 6'); A(f's_lshl_b32 s31, s{S_HP}, 2'); A('s_add_u32 s30, s30, s31')
            A(f's_add_u32 s30, s30, {XI}')
            A(f'v_mov_b32 v{T0}, s{S_XCC}')
            A('s_mov_b64 exec, 1')
            A(f'buffer_store_dword v{T0}, off, s[8:11], s30 sc1')
            A('s_mov_b64 exec, -1')
            A(f's_lshl_b32 s30, s{S_HP}, 12'); A('s_lshl_b32 s31, s3, 10'); A('s_add_u32 s30, s30, s31')
            A(f's_add_u32 s31, s30, {WC["A"]}'); A(f's_add_u32 s30, s30, {WC["B"]}')
            A(f'buffer_load_dwordx4 {vr(WCR["A"],4)}, v{L16}, s[8:11], s31 offen', tag='wc')
            A(f'buffer_load_dwordx4 {vr(WCR["B"],4)}, v{L16}, s[8:11], s30 offen', tag='wc')
            for c in range(1, 5):
                emit_items(A, self.xchunk(c)); emit_items(A, self.wloads('A', 8*c, 4)); emit_items(A, self.wloads('A', 8*c+4, 4))
                if c == 1: emit_items(A, self.setup_addr())
            queue = [self.xchunk(c) for c in range(5, 20)]
            xo = [f's_bfe_u32 s30, s{S_RBY}, 0x20001', 's_mul_i32 s30, s30, 40960', f's_mul_i32 s31, s{S_CG}, 5120', 's_add_u32 s30, s30, s31',
                  ('i', f'buffer_load_dwordx4 {vr(XOLD,4)}, v{VX}, s[12:15], s30 offen', 'xo'),
                  ('i', f'buffer_load_dwordx4 {vr(XOLD+4,4)}, v{VX}, s[12:15], s30 offen offset:2048', 'xo'),
                  ('i', f'buffer_load_dwordx2 {vr(XOLD+8,2)}, v{VX3}, s[12:15], s30 offen', 'xo')]
            queue.append(xo)
            if self.nl > 1: queue += [self.wloads('B', 4*k, 4) for k in range(10)]
            A.wait_vm('st')
            emit_items(A, self.stats_items())
        else:
            emit_items(A, self.st_soff(L))
            self.poll(self.st_loads(L), [STR + k for k in range(8)], X1)
            self.stamp('st')
            A('s_barrier')
            for c in range(o['PRE']): emit_items(A, self.xchunk(c))
            emit_items(A, self.stats_items())
            queue = [self.xchunk(c) for c in range(o['PRE'], 20)]
        def xread(n):
            if n == 159: return []
            r, off = dsaddr(1024 * n)
            return [('i', f'ds_read_b128 {vr(RING+4*(n%8),4)}, v{r} offset:{off}', f'r{n}')]
        bar = {0: 0, 1: 1, 2: 2, 3: 3, 4: 4, 5: 6, 7: 9, 10: 14}
        A.wait_vm('x0'); A.wait_lg('sc'); self.stamp('x0'); A('s_barrier')
        for n in range(PF): emit_items(A, xread(n))
        gcount = 0
        for rb in range(4):
            ac = vr(ACC + 16 * (rb & 1), 16)
            fill = []
            if rb >= 2:
                rd, mm = self.kv(T, rb - 2)
                fill += rd
            if rb >= 1:
                ep = self.epilogue(T, rb - 1)
                if rb >= 2: ep = ep[:12] + mm + ep[12:]
                fill += ep
            scr = self.scread(rb)
            if rb == 1 and not last: fill += self.clears(L)
            if rb == 0: fill += ['s_nop 0'] * 12
            fill = scr[:1] + fill + scr[1:]
            if rb == 2:
                queue += [self.srd_wo_items(T)] + self.wo_dma(0, 26)
            if rb == 3:
                queue += self.wo_dma(26, 66)
            for s in range(41):
                n = 40 * rb + s
                if s < 40:
                    nn = n + PF
                    if nn < 160 and nn % 8 == 0 and (nn // 8) in bar:
                        c = bar[nn // 8]
                        while queue and not any(t == f'x{c}' for t, _ in A.vm) and any(isinstance(i, tuple) and i[2] == f'x{c}' for g in queue for i in g):
                            emit_items(A, queue.pop(0))
                        A.wait_vm(f'x{c}'); A('s_barrier')
                    if nn < 160: emit_items(A, xread(nn))
                    if L == 0 and rb == 0 and s % 4 == 0: A.wait_vm(f'wA{s}')
                    if n == 159:
                        src = vr(XL, 4)
                    else:
                        A.wait_lg(f'r{n}'); src = vr(RING + 4 * (n % 8), 4)
                    A(f'v_mfma_f32_32x32x16_bf16 {ac}, {wreg(T, s)}, {src}, {"0" if s == 0 else ac}')
                else:
                    emit_items(A, flat(fill)); fill = []
                    if L == 0 and rb == 0: A.wait_vm('wc')
                    A(f'v_mfma_f32_32x32x16_bf16 {ac}, {vr(WCR[T],4)}, {vr(NM,4)}, {ac}')
                    break
                bud = o['FB']
                gcount += 1
                if queue and gcount % o['DMA_EVERY'] == 0:
                    g = queue.pop(0); emit_items(A, g); bud -= 3
                if s >= 1:
                    while fill and bud > 0:
                        it = fill.pop(0); emit_items(A, flat([it])); bud -= cost(it)
            if rb >= 1:
                if rb == 1:
                    while any(isinstance(i, tuple) and i[2] == 'x19' for g in queue for i in g):
                        emit_items(A, queue.pop(0))
                    A.wait_vm('x19')
                if rb == 3:
                    for g in queue: emit_items(A, g)
                    queue = []
                    A.wait_vm('clr')
                A.wait_lg('rec'); A.wait_lg('kvr')
                self.stamp(f'b{rb}_')
                A('s_barrier')
        for g in self.wo_dma(66, 100): emit_items(A, g)
        rd, mm = self.kv(T, 2)
        ep = self.epilogue(T, 3)
        emit_items(A, flat(rd + ep[:12] + mm + ep[12:]))
        VKP = [TMP + k for k in range(len(TRA[T]))]
        A(f'v_and_b32 v{X1}, 15, v0'); A(f'v_lshrrev_b32 v{X2}, 4, v0')
        A('s_lshr_b32 s30, s3, 1'); A('s_mul_i32 s30, s30, 24'); A('s_and_b32 s31, s3, 1'); A('s_lshl_b32 s31, s31, 4')
        A(f'v_add_u32 v{X1}, s31, v{X1}')
        A(f'v_cmp_gt_u32 s[32:33], 24, v{X1}')
        A(f'v_add_u32 v{X1}, s30, v{X1}')
        A(f'v_mul_u32_u24 v{X1}, {NG}, v{X1}')
        A(f'v_add_u32 v{X1}, v{X1}, v{X2}')
        A(f'v_mov_b32 v{X5}, {OOB}')
        for mt, r in enumerate(VKP):
            A(f'v_add_u32 v{X3}, {4*mt}, v{X1}')
            A(f'v_lshrrev_b32 v{X4}, 3, v{X3}')
            A(f'v_and_b32 v{X3}, 7, v{X3}')
            A(f'v_lshlrev_b32 v{X4}, 11, v{X4}')
            A(f'v_lshl_add_u32 v{X3}, v{X3}, 4, v{X4}')
            A(f'v_cndmask_b32 v{r}, v{X5}, v{X3}, s[32:33]')
            if 4 * mt + 4 > NG:
                A(f'v_cmp_gt_u32 vcc, {NG-4*mt}, v{X2}')
                A(f'v_cndmask_b32 v{r}, v{X5}, v{r}, vcc')
        A(f's_mul_i32 s34, s{S_HP}, {KVPS(L)}'); A(f's_add_u32 s34, s34, {KVP(L)}')
        A(f's_lshl_b32 s31, s{S_RG}, 7'); A('s_add_u32 s35, s34, s31')
        A.wait_lg()
        self.stamp('ep3_')
        A('s_barrier')
        rd, mm = self.kv(T, 3)
        emit_items(A, flat(rd + mm))
        for mt, r in enumerate(VKP):
            A(f'buffer_store_dwordx4 {vr(KC+4*mt,4)}, v{r}, s[8:11], s35 offen sc1')
        self.stamp('kvp')
        QF = RING; KF = TMP; RD = 104; GQ = 136
        nks = 3 if T == 'B' else 2
        for hd in range(2):
            for ks in range(nks):
                q = QF + 12 * hd + 4 * ks
                if ks < nks - 1:
                    A(f'ds_read_b128 {vr(q,4)}, v{VPQ} offset:{128*hd+16*ks}', tag='qf')
                else:
                    A(f'ds_read_b64 {vr(q,2)}, v{VPQ} offset:{128*hd+16*ks}', tag='qf')
                    A(f'v_mov_b32 v{q+2}, 0'); A(f'v_mov_b32 v{q+3}, 0')
        A('s_lshl_b32 s30, s3, 4'); A(f's_add_u32 s30, s30, s{S_RG}')
        A('s_lshl_b32 s31, s30, 11'); A('s_add_u32 s34, s34, s31')
        A(f's_lshl_b32 s35, s{S_HP}, 12'); A(f's_add_u32 s35, s35, {KVF(L)}')
        A('s_lshl_b32 s31, s30, 6'); A('s_add_u32 s36, s35, s31')
        VO = PK
        A(f'v_and_b32 v{X1}, 7, v0'); A(f'v_lshrrev_b32 v{X2}, 5, v0')
        A(f'v_lshlrev_b32 v{X1}, 3, v{X1}'); A(f'v_lshl_add_u32 v{X1}, v{X2}, 2, v{X1}')
        A(f'v_and_b32 v{X2}, 24, v0'); A(f'v_cmp_eq_u32 vcc, 0, v{X2}')
        A(f'v_cndmask_b32 v{VO}, v{X5}, v{X1}, vcc')
        A(f'v_cmp_gt_u32 vcc, {NR}, v0')
        A(f'v_cndmask_b32 v{VO+1}, v{X5}, v{L16}, vcc')
        A(f's_mul_i32 s31, s3, {16*NR}')
        A('s_add_u32 s35, s35, s31')
        A(f'v_add_u32 v{X1}, s31, v{L16}'); A(f'v_add_u32 v{X2}, 0x1000, v{L16}')
        A(f'v_cndmask_b32 v{VO+2}, v{X2}, v{X1}, vcc')
        for hd in range(2):
            k = KF + 12 * hd + 4 * (nks - 1)
            A(f'v_mov_b32 v{k+2}, 0'); A(f'v_mov_b32 v{k+3}, 0')
        if L == 0:
            A(f'v_and_b32 v{X1}, 15, v0'); A(f'v_lshlrev_b32 v{X1}, 2, v{X1}')
            A(f's_lshl_b32 s31, s{S_RG}, 6'); A(f's_add_u32 s31, s31, {XI}')
            self.poll([f'buffer_load_dword v{X2}, v{X1}, s[8:11], s31 offen sc1'], [X2], None)
            A(f'v_cmp_ne_u32 vcc, s{S_XCC}, v{X2}')
            A('s_cmp_eq_u64 vcc, 0')
            A(f's_cselect_b32 s{S_SAME}, 1, 0')
            if o.get('FORCE_SLOW'): A(f's_mov_b32 s{S_SAME}, 0')
        lsk = self.lab('nored')
        A(f's_cmp_ge_u32 s30, {NR}')
        A(f's_cbranch_scc1 {lsk}')
        self.poll([f'buffer_load_dwordx4 {vr(RD,4)}, v{L16}, s[8:11], s34 offen sc1',
                   f'buffer_load_dwordx4 {vr(RD+4,4)}, v{L16}, s[8:11], s34 offen offset:1024 sc1'], [RD + k for k in range(8)], X1)
        for k in range(4): A(f'v_add_f32 v{RD+k}, v{RD+k}, v{RD+4+k}')
        A(f'v_permlane32_swap_b32 v{RD}, v{RD+2}')
        A(f'v_permlane32_swap_b32 v{RD+1}, v{RD+3}')
        A(f'v_add_f32 v{RD}, v{RD}, v{RD+2}')
        A(f'v_add_f32 v{RD+1}, v{RD+1}, v{RD+3}')
        A(f'v_add_f32_dpp v{RD+2}, v{RD}, v{RD} row_ror:8 row_mask:0xf bank_mask:0xf')
        A(f'v_add_f32_dpp v{RD+3}, v{RD+1}, v{RD+1} row_ror:8 row_mask:0xf bank_mask:0xf')
        A(f'v_mov_b32 v{RD}, v{RD+2}'); A(f'v_mov_b32 v{RD+1}, v{RD+3}')
        A(f'v_permlane16_swap_b32 v{RD}, v{RD+2}')
        A(f'v_permlane16_swap_b32 v{RD+1}, v{RD+3}')
        A(f'v_add_f32 v{RD}, v{RD}, v{RD+2}')
        A(f'v_add_f32 v{RD+1}, v{RD+1}, v{RD+3}')
        A(f'v_cvt_pk_bf16_f32 v{RD}, v{RD}, v{RD+1}')
        A(f'buffer_store_dword v{RD}, v{VO}, s[8:11], s36 offen sc1')
        A.label(lsk)
        self.stamp('red')
        self.poll([f'buffer_load_dwordx4 {vr(RD+4,4)}, v{VO+1}, s[8:11], s35 offen sc1'], [RD + 4 + k for k in range(4)], X1)
        A(f'ds_write_b128 v{VO+2}, {vr(RD+4,4)}')
        A(f'v_bfe_u32 v{X1}, v0, 4, 1'); A(f'v_mul_u32_u24 v{X1}, 20480, v{X1}')
        A(f'v_and_b32 v{X2}, 15, v0'); A(f'v_lshl_add_u32 v{X1}, v{X2}, 4, v{X1}')
        A(f'v_lshrrev_b32 v{X2}, 5, v0')
        A(f'v_lshl_add_u32 v{VO}, v{X2}, 8, v{X1}')
        A(f'v_lshl_add_u32 v{VO+1}, v{X2}, 3, v{X1}')
        A.wait_lg()
        self.stamp('kvf')
        A('s_barrier')
        for hd in range(2):
            for ks in range(nks):
                k = KF + 12 * hd + 4 * ks
                o8 = 24 * NG * hd + 2 * ks
                if ks < nks - 1:
                    A(f'ds_read2_b64 {vr(k,4)}, v{VKA[T]} offset0:{o8} offset1:{o8+1}', tag=f'kf{hd}{ks}')
                else:
                    A(f'ds_read_b64 {vr(k,2)}, v{VKA[T]} offset:{8*o8}', tag=f'kf{hd}{ks}')
        A(f's_lshl_b32 s30, s{S_RG}, 2'); A('s_add_u32 s30, s30, s3')
        A('s_mul_i32 s31, s30, 40960'); A(f's_mul_i32 s32, s{S_HP}, 1280'); A('s_add_u32 s31, s31, s32')
        A(f's_add_u32 s31, s31, {O(L)}')
        A('s_lshl_b32 s30, s30, 11'); A(f's_lshl_b32 s32, s{S_HP}, 7'); A('s_add_u32 s30, s30, s32')
        A(f's_add_u32 s30, s30, {F2(L)}')
        for ks in range(nks):
            for hd in range(2):
                d = vr(ACC + 16 * hd, 16)
                A.wait_lg(f'kf{hd}{ks}')
                A(f'v_mfma_f32_32x32x16_bf16 {d}, {vr(KF+12*hd+4*ks,4)}, {vr(QF+12*hd+4*ks,4)}, {"0" if ks == 0 else d}')
        OPK = 140
        for hd in range(2):
            d = ACC + 16 * hd
            A(f'v_add_f32 v{d+10}, s{S_EPS}, v{d+10}')
            A(f'v_rcp_f32 v{d+10}, v{d+10}')
            A(f'v_mov_b32 v{d+11}, v{d+10}')
            for k in range(0, 10, 2):
                A(f'v_pk_mul_f32 {vr(d+k,2)}, {vr(d+k,2)}, {vr(d+10,2)}')
            for k in range(5):
                dst = OPK + 4 * hd + k if k < 4 else OPK + 8 + hd
                A(f'v_cvt_pk_bf16_f32 v{dst}, v{d+2*k}, v{d+2*k+1}')
        self.fstore([f'buffer_store_dwordx4 {vr(OPK,4)}, v{VO}, s[8:11], s31 offen',
                     f'buffer_store_dwordx4 {vr(OPK+4,4)}, v{VO}, s[8:11], s31 offen offset:512',
                     f'buffer_store_dwordx2 {vr(OPK+8,2)}, v{VO+1}, s[8:11], s31 offen offset:1024'])
        OF = 48; WR = 128; YA = 168
        def woread(f):
            r, off = dsaddr(WOL + 1024 * f)
            return ('i', f'ds_read_b128 {vr(WR+4*(f%10),4)}, v{r} offset:{off}', f'wr{f}')
        for k in range(10):
            A(f'v_lshlrev_b32 v{YA+2*k}, 16, v{XOLD+k}')
            A(f'v_and_b32 v{YA+2*k+1}, 0xffff0000, v{XOLD+k}')
        A(f'v_and_b32 v{T0}, 15, v0'); A(f'v_lshlrev_b32 v{T0}, 7, v{T0}')
        A(f's_lshr_b32 s32, s{S_RBY}, 1'); A('s_lshl_b32 s32, s32, 11'); A(f's_add_u32 s32, s32, {F2(L)}')
        A(f's_mul_i32 s33, s{S_RBY}, 20480'); A(f's_add_u32 s33, s33, {O(L)}')
        A.wait_vm()
        A('s_mov_b64 exec, 1')
        self.fstore([f'buffer_store_dword v{L16}, off, s[8:11], s30'])
        A('s_mov_b64 exec, -1')
        self.stamp('f2')
        for f in range(9): emit_items(A, [woread(f)])
        self.poll([f'buffer_load_dword v{T1}, v{T0}, s[8:11], s32 offen sc1'], [T1], None)
        self.stamp('e2')
        for kk in range(20):
            if kk % 4 == 0 and kk: A('s_add_u32 s33, s33, 4096')
            A(f'buffer_load_dwordx4 {vr(OF+4*kk,4)}, v{L16}, s[8:11], s33 offen offset:{1024*(kk%4)} sc1', tag=f'o{kk}')
        if final:
            A('s_mov_b32 s16, s6'); A('s_and_b32 s17, s7, 0xffff'); A(f's_mov_b32 s18, {2048*640*2}')
            A(f'v_and_b32 v{T0}, 15, v0'); A(f'v_mul_u32_u24 v{T0}, 1280, v{T0}'); A(f'v_lshrrev_b32 v{T1}, 4, v0')
            A(f'v_lshl_add_u32 v{VR[0]}, v{T1}, 4, v{T0}'); A(f'v_lshl_add_u32 v{VR[1]}, v{T1}, 3, v{T0}')
            A(f's_mul_i32 s30, s{S_RBY}, 20480'); A(f's_mul_i32 s31, s{S_CG}, 160'); A('s_add_u32 s30, s30, s31')
        else:
            if DBG[0]: self.srd_x(L + 1)
            A(f's_bfe_u32 s30, s{S_RBY}, 0x20001'); A('s_mul_i32 s30, s30, 40960'); A(f's_mul_i32 s31, s{S_CG}, 5120')
            A('s_add_u32 s30, s30, s31')
            A(f's_lshl_b32 s31, s{S_RBY}, 10'); A(f's_lshl_b32 s32, s{S_CG}, 7'); A('s_add_u32 s31, s31, s32')
            A(f's_add_u32 s31, s31, {ST(L+1)}')
            A(f'v_lshlrev_b32 v{T0}, 3, v0')
        for kk in range(20):
            A.wait_vm(f'o{kk}')
            if kk == 0: self.stamp('o0_')
            for mt in range(5):
                f = 5 * kk + mt
                if f + 9 < 100: emit_items(A, [woread(f + 9)])
                A.wait_lg(f'wr{f}')
                A(f'v_mfma_f32_16x16x32_bf16 {vr(YA+4*mt,4)}, {vr(WR+4*(f%10),4)}, {vr(OF+4*kk,4)}, {vr(YA+4*mt,4)}')
        self.stamp('y')
        for k in range(10):
            A(f'v_cvt_pk_bf16_f32 v{XOLD+k}, v{YA+2*k}, v{YA+2*k+1}')
        if final:
            A(f'buffer_store_dwordx4 {vr(XOLD,4)}, v{VR[0]}, s[16:19], s30 offen')
            A(f'buffer_store_dwordx4 {vr(XOLD+4,4)}, v{VR[0]}, s[16:19], s30 offen offset:64')
            A(f'buffer_store_dwordx2 {vr(XOLD+8,2)}, v{VR[1]}, s[16:19], s30 offen offset:128')
            return
        self.fstore([f'buffer_store_dwordx4 {vr(XOLD,4)}, v{VX}, s[12:15], s30 offen',
                     f'buffer_store_dwordx4 {vr(XOLD+4,4)}, v{VX}, s[12:15], s30 offen offset:2048',
                     f'buffer_store_dwordx2 {vr(XOLD+8,2)}, v{VX3}, s[12:15], s30 offen'])
        U = OF; a = OF + 20; b = OF + 22; c = OF + 24
        for k in range(10):
            A(f'v_lshlrev_b32 v{U+2*k}, 16, v{XOLD+k}')
            A(f'v_and_b32 v{U+2*k+1}, 0xffff0000, v{XOLD+k}')
        A(f'v_pk_add_f32 {vr(a,2)}, {vr(U,2)}, {vr(U+2,2)}')
        A(f'v_pk_add_f32 {vr(b,2)}, {vr(U+4,2)}, {vr(U+6,2)}')
        for k in range(4, 10, 2):
            A(f'v_pk_add_f32 {vr(a,2)}, {vr(a,2)}, {vr(U+2*k,2)}')
            A(f'v_pk_add_f32 {vr(b,2)}, {vr(b,2)}, {vr(U+2*k+2,2)}')
        A(f'v_pk_add_f32 {vr(a,2)}, {vr(a,2)}, {vr(b,2)}')
        def allsum(x, y):
            A(f'v_mov_b32 v{y}, v{x}')
            A(f'v_permlane16_swap_b32 v{x}, v{y}')
            A(f'v_add_f32 v{x}, v{x}, v{y}')
            A(f'v_mov_b32 v{y}, v{x}')
            A(f'v_permlane32_swap_b32 v{x}, v{y}')
            A(f'v_add_f32 v{x}, v{x}, v{y}')
        A(f'v_add_f32 v{a}, v{a}, v{a+1}')
        allsum(a, a + 1)
        A(f'v_mul_f32 v{a}, 0x3c4ccccd, v{a}')
        A(f'v_mul_f32 v{b}, -1.0, v{a}')
        A(f'v_mul_f32 v{b+1}, -1.0, v{a}')
        for k in range(10):
            A(f'v_pk_add_f32 {vr(U+2*k,2)}, {vr(U+2*k,2)}, {vr(b,2)}')
        A(f'v_pk_mul_f32 {vr(b,2)}, {vr(U,2)}, {vr(U,2)}')
        A(f'v_pk_mul_f32 {vr(c,2)}, {vr(U+2,2)}, {vr(U+2,2)}')
        for k in range(2, 10, 2):
            A(f'v_pk_fma_f32 {vr(b,2)}, {vr(U+2*k,2)}, {vr(U+2*k,2)}, {vr(b,2)}')
            A(f'v_pk_fma_f32 {vr(c,2)}, {vr(U+2*k+2,2)}, {vr(U+2*k+2,2)}, {vr(c,2)}')
        A(f'v_pk_add_f32 {vr(b,2)}, {vr(b,2)}, {vr(c,2)}')
        A(f'v_add_f32 v{a+1}, v{b}, v{b+1}')
        allsum(a + 1, b)
        A(f'v_mov_b32 v{VC+3}, 0x3f80')
        for k in range(4): A(f'v_mov_b32 v{SENT+k}, -1')
        A.wait_vm()
        A('s_mov_b64 exec, 0xffff')
        self.fstore([f'buffer_store_dwordx2 {vr(a,2)}, v{T0}, s[8:11], s31 offen'])
        A('s_mov_b64 exec, -1')
        self.stamp('xs')

    def gen(self):
        self.prologue()
        for L in range(self.nl): self.layer(L)
        A = self.A
        A.prof_end()
        A.label(f'{self.name}_END')
        A('s_endpgm')
        return A.text()

def make(path, prof=False, nl=4, dbg=False, sl=(0, 1, 2, 3), opt=None):
    import gen, k0b, json, emit
    DBG[0] = dbg
    ks = [('k0_kernel', k0b.gen_k0(), 256, 256)]
    ls = [('k0_kernel', k0b.K0_GRID, k0b.K0_LDS)]
    p = P('pk', prof=1 if prof else None, nl=nl, stamp_layers=sl, opt=opt)
    ks.append(('pk_kernel', p.gen(), 512, 256))
    ls.append(('pk_kernel', 256, P_LDS))
    gen.build(ks, ls, path)
    if prof: json.dump(emit.PROF_NAMES, open(path + '.names', 'w'))
    print('nops', p.A.nops, 'lines', len(p.A.lines))

if __name__ == '__main__':
    import sys
    kw = eval('dict(' + (sys.argv[2] if len(sys.argv) > 2 else '') + ')')
    make(sys.argv[1], **kw)
```

```python
import re

REG_RE = re.compile(r'\b([vas])(\d+)\b|\b([vas])\[(\d+):(\d+)\]|\b(vcc|exec|m0|scc)\b')

def regs_of(tok):
    out = []
    for m in REG_RE.finditer(tok):
        if m.group(1):
            out.append((m.group(1), int(m.group(2))))
        elif m.group(3):
            for i in range(int(m.group(4)), int(m.group(5)) + 1):
                out.append((m.group(3), i))
        else:
            out.append((m.group(6), 0))
    return out

TRANS = ('v_exp_f32', 'v_log_f32', 'v_rcp_f32', 'v_rsq_f32', 'v_sqrt_f32', 'v_sin_f32', 'v_cos_f32')

def split_ops(s):
    ops, d, cur = [], 0, ''
    for ch in s:
        if ch == '[': d += 1
        if ch == ']': d -= 1
        if ch == ',' and d == 0:
            ops.append(cur.strip()); cur = ''
        else:
            cur += ch
    if cur.strip(): ops.append(cur.strip())
    return ops

class Ins:
    __slots__ = ('op', 'text', 'kind', 'w', 'r', 'passes', 'srcC', 'srcAB', 'wide_store', 'trans', 'dpp', 'dot')

def parse(text):
    t = text.split(';')[0].strip()
    sp = t.split(None, 1)
    op = sp[0]
    rest = sp[1] if len(sp) > 1 else ''
    ops = split_ops(rest)
    I = Ins(); I.op = op; I.text = text; I.passes = 0; I.srcC = []; I.srcAB = []; I.wide_store = []
    I.trans = op.replace('_e32', '').replace('_e64', '') in TRANS
    I.dpp = ('row_' in t or 'quad_perm' in t or 'wave_' in t or '_dpp' in op)
    I.dot = op.startswith('v_dot')
    w, r = [], []
    if op.startswith('v_mfma'):
        I.kind = 'mfma'
        I.passes = 8 if '32x32x16' in op else 4
        w = regs_of(ops[0]); I.srcAB = regs_of(ops[1]) + regs_of(ops[2]); I.srcC = regs_of(ops[3])
        r = I.srcAB + I.srcC
    elif op.startswith('v_'):
        I.kind = 'valu'
        if op.startswith('v_permlane32_swap') or op.startswith('v_permlane16_swap') or op.startswith('v_swap'):
            w = regs_of(ops[0]) + regs_of(ops[1]); r = list(w)
        elif op.startswith('v_cmp'):
            w = regs_of(ops[0]); r = [x for o in ops[1:] for x in regs_of(o)]
        elif '_co_' in op:
            w = regs_of(ops[0]) + regs_of(ops[1]); r = [x for o in ops[2:] for x in regs_of(o)]
        elif op.startswith('v_nop'):
            pass
        else:
            w = regs_of(ops[0]); r = [x for o in ops[1:] for x in regs_of(o)]
            if op.startswith('v_fmac') or op.startswith('v_mac') or op.startswith('v_dot2c') or op.startswith('v_writelane'):
                r += w
            if op.startswith('v_cndmask') and len(ops) == 3:
                r.append(('vcc', 0))
            if I.dpp: r += w
    elif op.startswith(('buffer_', 'global_', 'flat_', 'scratch_')):
        I.kind = 'vmem'
        islds = (' lds' in t) or ('_lds_' in op)
        if 'load' in op and not islds:
            w = regs_of(ops[0]); r = [x for o in ops[1:] for x in regs_of(o)]
        elif 'atomic' in op and ' sc0' in t:
            w = regs_of(ops[0]); r = [x for o in ops for x in regs_of(o)]
        else:
            r = [x for o in ops for x in regs_of(o)]
            if islds: r.append(('m0', 0))
            if 'store' in op and ('x3' in op or 'x4' in op):
                I.wide_store = regs_of(ops[1]) if op.startswith('global_') else regs_of(ops[0])
    elif op.startswith('ds_'):
        I.kind = 'ds'
        if 'read' in op or 'permute' in op or 'swizzle' in op or '_rtn' in op:
            w = regs_of(ops[0]); r = [x for o in ops[1:] for x in regs_of(o)]
        else:
            r = [x for o in ops for x in regs_of(o)]
    elif op.startswith('s_load') or op.startswith('s_memtime') or op.startswith('s_memrealtime') or op.startswith('s_buffer_load'):
        I.kind = 'smem'
        w = regs_of(ops[0]); r = [x for o in ops[1:] for x in regs_of(o)]
    elif op.startswith('s_'):
        I.kind = 'salu'
        if op.startswith(('s_nop', 's_waitcnt', 's_barrier', 's_endpgm', 's_branch', 's_cbranch', 's_setprio', 's_sleep')):
            pass
        elif op.startswith('s_cmp') or op.startswith('s_bitcmp'):
            r = [x for o in ops for x in regs_of(o)]
        else:
            w = regs_of(ops[0]); r = [x for o in ops[1:] for x in regs_of(o)]
            if 'saveexec' in op: w.append(('exec', 0))
    else:
        raise ValueError('unknown instr ' + text)
    I.w = set(w); I.r = set(r)
    return I

class Asm:
    def __init__(self):
        self.lines = []
        self.hist = []
        self.pos = 0
        self.vm = []
        self.lg = []
        self.sm = []
        self.nops = 0
    def raw(self, s):
        self.lines.append(s)
    def comment(self, s):
        self.lines.append('    ; ' + s)
    def label(self, name):
        self.lines.append(name + ':')
    def need(self, I):
        n = 0
        for (P, ppos) in self.hist:
            d = self.pos - ppos - 1
            req = 0
            pw = P.w
            if P.kind == 'valu':
                vw = {x for x in pw if x[0] in 'va'}
                sw = {x for x in pw if x[0] in ('s', 'vcc', 'exec')}
                if I.kind == 'mfma' and vw & I.r: req = max(req, 2)
                if I.kind == 'valu':
                    if P.trans and (vw & I.r) and not I.trans: req = max(req, 1)
                    if P.trans and (vw & I.r) and I.trans: req = max(req, 1)
                    if I.op.startswith(('v_readlane', 'v_readfirstlane')) and vw & I.r: req = max(req, 1)
                    if I.op.startswith('v_permlane') and vw & I.r: req = max(req, 2)
                    if I.dpp and vw & I.r: req = max(req, 2)
                    if sw & I.r: req = max(req, 4 if I.op.startswith(('v_readlane', 'v_writelane')) else 2)
                    if P.dot and (vw & (I.r | I.w)):
                        if not (I.op == P.op): req = max(req, 3)
                        else: req = max(req, 3 if False else 0)
                    if ('exec', 0) in sw: req = max(req, 5)
                if P.dot and I.kind in ('vmem', 'ds', 'mfma') and (vw & I.r): req = max(req, 3)
                if P.trans and I.kind in ('vmem', 'ds') and (vw & I.r): req = max(req, 1)
                if I.kind == 'vmem' and sw & I.r: req = max(req, 5)
                if I.kind == 'salu' and sw & I.r: req = max(req, 1)
                if I.kind == 'mfma' and ('exec', 0) in sw: req = max(req, 4)
            elif P.kind == 'mfma':
                big = 12 if P.passes == 8 else 8
                if I.kind == 'mfma':
                    if pw & set(I.srcAB): req = max(req, big)
                    c = set(I.srcC)
                    if pw & c:
                        if c == pw and I.passes == P.passes: pass
                        else: req = max(req, big - 2)
                    elif pw & I.w: req = max(req, big)
                elif I.kind in ('valu', 'vmem', 'ds'):
                    if pw & (I.r | I.w): req = max(req, big)
                if I.kind in ('valu',) and set(P.srcC) & I.w: req = max(req, 7 if P.passes == 8 else 3)
                if I.kind in ('vmem', 'ds') and set(P.srcC) & I.w: req = max(req, 7 if P.passes == 8 else 3)
            elif P.kind == 'vmem':
                if P.wide_store and (set(P.wide_store) & I.w): req = max(req, 2)
            elif P.kind == 'salu':
                if ('m0', 0) in pw and ('m0', 0) in I.r and I.kind == 'vmem': req = max(req, 1)
            n = max(n, req - d)
        return n
    def check_pending(self, I):
        touched = I.r | I.w
        for q, nm in ((self.vm, 'vm'), (self.lg, 'lgkm')):
            for tag, regs in q:
                if regs & touched:
                    raise RuntimeError(f'pending {nm} load {tag} regs touched by: {I.text}')
        if self.sm and (set(self.sm) & touched):
            raise RuntimeError(f'pending smem regs touched by: {I.text}')
    def I(self, text, tag=None):
        I = parse(text)
        self.check_pending(I)
        n = self.need(I)
        while n > 0:
            k = min(n, 8)
            self.lines.append(f'    s_nop {k-1}')
            self.pos += k; n -= k; self.nops += k
        self.lines.append('    ' + text)
        if I.op == 's_nop':
            self.pos += int(text.split()[1]) + 1
        else:
            self.hist.append((I, self.pos))
            self.pos += 1
        self.hist = [(p, q) for (p, q) in self.hist if self.pos - q < 16]
        if I.kind == 'vmem':
            self.vm.append((tag, {x for x in I.w}))
        elif I.kind == 'ds':
            self.lg.append((tag, {x for x in I.w}))
        elif I.kind == 'smem':
            self.sm += list(I.w)
        return I
    def __call__(self, text, tag=None):
        for ln in text.strip().split('\n'):
            ln = ln.strip()
            if ln: self.I(ln, tag)
    def _cnt(self, q, tag):
        idx = [i for i, (t, _) in enumerate(q) if t == tag]
        if not idx: return None
        return len(q) - 1 - max(idx)
    def wait_vm(self, tag=None):
        n = 0 if tag is None else self._cnt(self.vm, tag)
        if n is None: return
        n = min(n, 63)
        self.I(f's_waitcnt vmcnt({n})')
        self.vm = self.vm[len(self.vm) - n:] if n else []
    def wait_lg(self, tag=None):
        n = 0 if tag is None else self._cnt(self.lg, tag)
        if n is None: return
        if self.sm: n = 0
        n = min(n, 15)
        self.I(f's_waitcnt lgkmcnt({n})')
        self.lg = self.lg[len(self.lg) - n:] if n else []
        if n == 0: self.sm = []
    def wait_all(self):
        self.I('s_waitcnt vmcnt(0) lgkmcnt(0)')
        self.vm = []; self.lg = []; self.sm = []
    def text(self):
        return '\n'.join(self.lines) + '\n'
    prof = None
    pv = 191
    def flush_stamps(self, force=False):
        keep = []
        for (k, sreg) in self.unfl:
            if ('s', sreg) in self.sm and not force:
                keep.append((k, sreg)); continue
            self.I(f'v_writelane_b32 v{self.pv + (k >> 6)}, s{sreg}, {k & 63}')
        self.unfl = keep
    def stamp(self, name='', real=False):
        if self.prof is None: return
        k = len(self.stamps) if hasattr(self, 'stamps') else 0
        if k == 0: self.stamps = []; self.unfl = []
        assert k < 64
        self.flush_stamps()
        assert len(self.unfl) < 28
        self.stamps.append(name)
        sreg = 40 + 2 * (k % 30)
        self.I(f's_{"memrealtime" if real else "memtime"} s[{sreg}:{sreg+1}]')
        self.unfl.append((k, sreg))
    def prof_end(self, wave_sgpr='s3', srd='s[8:11]'):
        if self.prof is None: return
        self.stamp('end')
        self.stamp('rend', real=True)
        self.wait_all()
        self.stamp('drained')
        self.wait_all()
        self.flush_stamps()
        self.I('s_mov_b64 exec, -1')
        self.I('v_mbcnt_lo_u32_b32 v3, -1, 0')
        self.I('v_mbcnt_hi_u32_b32 v3, -1, v3')
        self.I('v_lshlrev_b32 v3, 2, v3')
        self.I('s_lshl_b32 s100, s2, 11')
        self.I(f's_lshl_b32 s101, {wave_sgpr}, 9')
        self.I('s_add_u32 s100, s100, s101')
        self.I(f's_add_u32 s100, s100, {0x2000000 + self.prof * 0x80000}')
        self.I(f'buffer_store_dword v{self.pv}, v3, {srd}, s100 offen')
        PROF_NAMES[self.prof] = list(self.stamps)
PROF_NAMES = {}

def vr(b, n=1, p='v'):
    return f'{p}{b}' if n == 1 else f'{p}[{b}:{b+n-1}]'
def ar(b, n=1):
    return vr(b, n, 'a')
def sr(b, n=1):
    return vr(b, n, 's')

def kernel_text(name, body, vgpr, accum, sgpr=102):
    code = f'.globl {name}\n.p2align 8\n.type {name},@function\n{name}:\n' + body
    desc = f'''.p2align 6
.amdhsa_kernel {name}
  .amdhsa_next_free_vgpr {vgpr}
  .amdhsa_next_free_sgpr {sgpr}
  .amdhsa_accum_offset {accum}
  .amdhsa_group_segment_fixed_size 0
  .amdhsa_kernarg_size 80
  .amdhsa_user_sgpr_count 2
  .amdhsa_user_sgpr_kernarg_segment_ptr 1
  .amdhsa_system_sgpr_workgroup_id_x 1
.end_amdhsa_kernel
'''
    return code, desc
```

```python
from emit import *
from lay2 import *
from k1 import emit_items

P_LDS = 163840
RS = 288
KREC = [0, 9216]
def PQ(rb): return 18432 + 9216 * rb
WOL = 55296
SC = 162816
LANE = 0; L16 = 1
VR = [2, 3]; VRL = [4, 5]; T0 = 6; T1 = 7
NM = 8; WCR = {'A': 12, 'B': 16}; XOLD = 20
DS1 = 30; DS2 = 31; REC0 = 32; REC = 33
TRA = {'B': [34, 35, 36], 'A': [37, 38]}; TRB0 = 39; TRB = 40
VSC = 41; VSTP = 42; VX = 43; VX3 = 44; VKA = {'A': 45, 'B': 46}; VPQ = 47
ACC = 48; RING = 80; TMP = 112; X1 = 132; X2 = 133; X3 = 134; X4 = 135; X5 = 136; X6 = 137
PK = 138; VC = 148; KFA = 152; KFB = 164; KC = 168; XL = 180; SENT = 184; STR = 112
S_RG = 20; S_HP = 21; S_BUD = 22; S_SAME = 23; S_EPS = 24; S_W2K = 25; S_XCC = 26
S_RBY = 27; S_CG = 28; S_W1K = 37
VKP = [188, 189, 190]
BUDGET = 400000

def cost(it):
    if isinstance(it, str):
        if it.startswith(('v_exp', 'v_rcp', 'v_sqrt', 'v_rsq')): return 2
        if it.startswith('v_mfma'): return 4
        return 1
    if isinstance(it, list): return sum(cost(x) for x in it)
    return 1

def flat(items):
    out = []
    for it in items:
        if isinstance(it, list): out += flat(it)
        else: out.append(it)
    return out

def wreg(T, s):
    if T == 'A': return ar(4 * s, 4)
    return ar(160 + 4 * s, 4) if s < 24 else vr(192 + 4 * (s - 24), 4)

def dsaddr(off):
    return [L16, DS1, DS2][off >> 16], off & 0xffff

class P:
    def __init__(self, name, prof=None, nl=4, stamp_layers=(0, 1, 2, 3), opt=None):
        self.name = name; self.nl = nl; self.sl = stamp_layers
        self.A = Asm(); self.A.prof = prof
        self.nlab = 0
        self.opt = dict(FB=4, PRE=9, DMA_EVERY=3, YFB=1, MASK=1, WO1=100, W2=1, DCOST=2, RMIN=2.0, RX=1.1)
        if opt: self.opt.update(opt)
        self.L = 0
    def lab(self, s):
        self.nlab += 1
        return f'{self.name}_{s}{self.nlab}'
    def stamp(self, n):
        if self.L in self.sl: self.A.stamp(f'{n}{self.L}')
    def poll(self, loads, regs, tmp, sleep=0, pre=0):
        A = self.A
        lp, lg = self.lab('poll'), self.lab('go')
        A('s_nop 4')
        if pre: A(f's_sleep {pre}')
        if sleep:
            l1 = self.lab('p1')
            A(f's_branch {l1}')
            A.label(lp)
            A(f's_sleep {sleep}')
            A.label(l1)
        else:
            A.label(lp)
        for t in loads: A(t)
        A.wait_vm()
        r = list(regs)
        if len(r) == 1: m = r[0]
        else:
            m = tmp
            if len(r) == 2:
                A(f'v_max_u32 v{m}, v{r[0]}, v{r[1]}'); r = []
            else:
                A(f'v_max3_u32 v{m}, v{r[0]}, v{r[1]}, v{r[2]}'); r = r[3:]
            while len(r) >= 2:
                A(f'v_max3_u32 v{m}, v{m}, v{r[0]}, v{r[1]}'); r = r[2:]
            if r: A(f'v_max_u32 v{m}, v{m}, v{r[0]}')
        A(f'v_cmp_eq_u32 vcc, -1, v{m}')
        A(f's_sub_u32 s{S_BUD}, s{S_BUD}, 1')
        A(f's_cbranch_scc1 {lg}')
        if self.opt['MASK']: A('s_mov_b64 exec, vcc')
        A(f's_cbranch_vccnz {lp}')
        A.label(lg)
        if self.opt['MASK']: A('s_mov_b64 exec, -1')
        A(f's_max_i32 s{S_BUD}, s{S_BUD}, 0')
    def fstore(self, stores, tag=None):
        A = self.A
        ls, lj = self.lab('slow'), self.lab('join')
        A(f's_cmp_eq_u32 s{S_SAME}, 0')
        A(f's_cbranch_scc1 {ls}')
        n0 = len(A.lines)
        for t in stores: A(t, tag=tag)
        body = A.lines[n0:]
        A(f's_branch {lj}')
        A.label(ls)
        for ln in body:
            A.raw(ln + ' sc1' if 'buffer_store' in ln else ln)
        A.raw('    s_nop 0')
        A.label(lj)
    def srd_x(self, L):
        A = self.A
        A(f's_mul_i32 s30, s{S_RG}, 163840')
        A(f's_add_u32 s30, s30, {X(L)}')
        A('s_add_u32 s12, s4, s30')
        A('s_addc_u32 s13, s5, 0')
        A('s_and_b32 s13, s13, 0xffff')
    def srd_wo_items(self, T):
        return [f's_mul_i32 s30, s{S_CG}, 102400', f's_add_u32 s30, s30, {WOF[T] - WOL}',
                's_add_u32 s16, s4, s30', 's_addc_u32 s17, s5, 0', 's_and_b32 s17, s17, 0xffff']

    def prologue(self):
        A = self.A
        A('s_load_dwordx2 s[6:7], s[0:1], 56')
        A('s_load_dwordx2 s[4:5], s[0:1], 72')
        A('s_cmp_ge_u32 s2, 256')
        A(f's_cbranch_scc1 {self.name}_END')
        A.stamp('rstart', real=True); A.stamp('start')
        A('v_lshrrev_b32 v2, 6, v0')
        A('v_and_b32 v0, 63, v0')
        A('v_readfirstlane_b32 s3, v2')
        A(f'v_lshlrev_b32 v{L16}, 4, v0')
        A('s_and_b32 s30, s2, 7')
        A('s_lshr_b32 s31, s2, 3')
        A(f's_lshl_b32 s{S_RG}, s30, 1')
        A('s_and_b32 s30, s31, 1')
        A(f's_add_u32 s{S_RG}, s{S_RG}, s30')
        A(f's_lshr_b32 s{S_HP}, s31, 1')
        A(f's_lshr_b32 s{S_CG}, s{S_HP}, 1')
        A(f's_and_b32 s30, s{S_HP}, 1')
        A('s_lshl_b32 s30, s30, 2')
        A(f's_lshl_b32 s{S_RBY}, s{S_RG}, 3')
        A(f's_add_u32 s{S_RBY}, s{S_RBY}, s30')
        A(f's_add_u32 s{S_RBY}, s{S_RBY}, s3')
        A(f's_lshl_b32 s{S_W2K}, s3, 11')
        A(f's_lshl_b32 s{S_W1K}, s3, 10')
        A(f's_mov_b32 s{S_BUD}, {BUDGET}')
        A(f's_mov_b32 s{S_EPS}, 0x358637bd')
        A(f's_getreg_b32 s{S_XCC}, hwreg(HW_REG_XCC_ID, 0, 16)')
        A('s_mov_b32 s10, %d' % WS_SIZE); A('s_mov_b32 s11, 0x00020000')
        A('s_mov_b32 s14, 163840'); A('s_mov_b32 s15, 0x00020000')
        A(f's_mov_b32 s18, {WOL + 102400}'); A('s_mov_b32 s19, 0x00020000')
        A(f'v_bfe_u32 v{T0}, v0, 4, 1')
        A(f'v_lshrrev_b32 v{T1}, 5, v0')
        A(f'v_lshlrev_b32 v{T0}, 10, v{T0}')
        A(f'v_lshl_add_u32 v{T0}, v{T1}, 9, v{T0}')
        A(f'v_and_b32 v{T1}, 15, v0')
        A(f'v_lshl_add_u32 v{VSTP}, v{T1}, 3, v{T0}')
        A('s_and_b32 s30, s3, 1')
        A('s_lshl_b32 s30, s30, 8')
        A(f'v_lshlrev_b32 v{T1}, 4, v{T1}')
        A(f'v_add_u32 v{T1}, s30, v{T1}')
        A(f'v_lshrrev_b32 v{T0}, 4, v0')
        A(f'v_lshl_add_u32 v{VX}, v{T0}, 9, v{T1}')
        A(f'v_lshrrev_b32 v2, 5, v0')
        A(f'v_lshl_add_u32 v{T1}, v2, 9, v{T1}')
        A(f'v_and_b32 v{T0}, 1, v{T0}')
        A(f'v_lshl_add_u32 v{T1}, v{T0}, 3, v{T1}')
        A(f'v_add_u32 v{VX3}, 0x1000, v{T1}')
        A.wait_lg()
        A('s_mov_b32 s8, s4')
        A('s_and_b32 s9, s5, 0xffff')
        self.srd_x(0)

    def setup_addr(self):
        it = []
        a = it.append
        a(f'v_add_u32 v{DS1}, 0x10000, v{L16}')
        a(f'v_add_u32 v{DS2}, 0x20000, v{L16}')
        a(f'v_and_b32 v{T0}, 31, v0')
        a(f'v_lshrrev_b32 v{T1}, 5, v0')
        a(f'v_lshlrev_b32 v{VSC}, 3, v{T0}')
        a(f'v_add_u32 v{VSC}, {SC}, v{VSC}')
        a(f'v_mul_u32_u24 v{T0}, {RS}, v{T0}')
        a(f'v_lshl_add_u32 v{T0}, v{T1}, 6, v{T0}')
        a('s_and_b32 s30, s3, 1')
        a('s_lshl_b32 s30, s30, 7')
        a(f'v_add_u32 v{REC0}, s30, v{T0}')
        a('s_mul_i32 s30, s3, 9216')
        a(f's_add_u32 s30, s30, {PQ(0)}')
        a(f'v_add_u32 v{VPQ}, s30, v{T0}')
        a(f'v_lshrrev_b32 v{T0}, 2, v0')
        a(f'v_mul_u32_u24 v{T0}, {RS}, v{T0}')
        a('s_lshr_b32 s30, s3, 1')
        a('s_lshl_b32 s30, s30, 7')
        a(f'v_add_u32 v{T0}, s30, v{T0}')
        a(f'v_and_b32 v{T1}, 3, v0')
        for T, nch in (('B', 5), ('A', 3)):
            for mt, r in enumerate(TRA[T]):
                a(f'v_add_u32 v{X1}, {4*mt}, v{T1}')
                a(f'v_min_u32 v{X1}, {2*nch-1}, v{X1}')
                a(f'v_cmp_le_u32 vcc, {nch}, v{X1}')
                a(f'v_cndmask_b32 v{X2}, 0, {64-8*nch}, vcc')
                a(f'v_lshl_add_u32 v{X1}, v{X1}, 3, v{X2}')
                a(f'v_add_u32 v{r}, v{X1}, v{T0}')
        a(f'v_lshrrev_b32 v{X1}, 1, v{T1}')
        a(f'v_and_b32 v{X2}, 1, v{T1}')
        a(f'v_lshlrev_b32 v{X1}, 6, v{X1}')
        a(f'v_lshl_add_u32 v{X1}, v{X2}, 3, v{X1}')
        a(f'v_lshlrev_b32 v{X2}, 6, v{X2}')
        a('s_bitcmp1_b32 s3, 0')
        a('s_cselect_b64 vcc, -1, 0')
        a(f'v_cndmask_b32 v{X1}, v{X1}, v{X2}, vcc')
        a(f'v_add3_u32 v{TRB0}, v{X1}, v{T0}, 48')
        a(f'v_bfe_u32 v{X1}, v0, 3, 2')
        a(f'v_and_b32 v{X2}, 3, v0')
        a(f'v_lshl_add_u32 v{X1}, v{X1}, 2, v{X2}')
        a(f'v_bfe_u32 v{X2}, v0, 2, 1')
        a(f'v_mul_u32_u24 v{X2}, 10, v{X2}')
        a(f'v_add_u32 v{X2}, v{X2}, v{X1}')
        a(f'v_cmp_le_u32 vcc, 6, v{X2}')
        a(f'v_cndmask_b32 v{X3}, 0, 2, vcc')
        a(f'v_cmp_le_u32 vcc, 12, v{X2}')
        a(f'v_cndmask_b32 v{X4}, 0, 2, vcc')
        a(f'v_add3_u32 v{X2}, v{X2}, v{X3}, v{X4}')
        a(f'v_cmp_gt_u32 vcc, 10, v{X1}')
        a(f'v_cndmask_b32 v{X2}, 6, v{X2}, vcc')
        a(f'v_lshrrev_b32 v{X1}, 5, v0')
        a(f'v_lshrrev_b32 v{X3}, 3, v{X2}')
        a(f'v_lshl_add_u32 v{X1}, v{X3}, 1, v{X1}')
        a(f'v_and_b32 v{X2}, 7, v{X2}')
        a(f'v_lshlrev_b32 v{X2}, 3, v{X2}')
        a(f'v_mul_u32_u24 v{X3}, 0xc0, v{X1}')
        a(f'v_mul_u32_u24 v{X4}, 0x140, v{X1}')
        a(f'v_add_u32 v{VKA["A"]}, v{X3}, v{X2}')
        a(f'v_add_u32 v{VKA["B"]}, v{X4}, v{X2}')
        for k in range(4): a(f'v_mov_b32 v{SENT+k}, -1')
        a(f'v_mov_b32 v{VC+3}, 0x3f80')
        return it

    def stats_items(self):
        S = STR
        return [
        f'v_add_f32 v{X1}, v{S}, v{S+2}', f'v_add_f32 v{X2}, v{S+4}, v{S+6}',
        f'v_add_f32 v{X1}, v{X1}, v{X2}', f'v_mov_b32 v{X2}, v{X1}',
        f'v_add_f32 v{X3}, v{S+1}, v{S+3}',
        f'v_add_f32 v{X4}, v{S+5}, v{S+7}',
        f'v_permlane32_swap_b32 v{X1}, v{X2}',
        f'v_add_f32 v{X3}, v{X3}, v{X4}',
        f'v_add_f32 v{X1}, v{X1}, v{X2}',
        f'v_mul_f32 v{X1}, 0.125, v{X1}',
        f'v_sub_f32 v{S}, v{S}, v{X1}', f'v_sub_f32 v{S+2}, v{S+2}, v{X1}',
        f'v_sub_f32 v{S+4}, v{S+4}, v{X1}', f'v_sub_f32 v{S+6}, v{S+6}, v{X1}',
        f'v_mul_f32 v{X2}, v{S}, v{S}', f'v_fmac_f32 v{X2}, v{S+2}, v{S+2}',
        f'v_fmac_f32 v{X2}, v{S+4}, v{S+4}', f'v_fmac_f32 v{X2}, v{S+6}, v{S+6}',
        f'v_fmac_f32 v{X3}, 0x42a00000, v{X2}',
        f'v_mov_b32 v{X4}, v{X3}',
        f'v_cvt_pk_bf16_f32 v{X5}, -v{X1}, -v{X1}',
        f's_lshl_b32 s30, s3, 8',
        f'v_permlane32_swap_b32 v{X3}, v{X4}',
        f'v_add_u32 v{X1}, s30, v{VSC}',
        f'v_add_f32 v{X3}, v{X3}, v{X4}',
        f'v_mul_f32 v{X3}, 0x3acccccd, v{X3}',
        f'v_cvt_pk_bf16_f32 v{X3}, v{X3}, v{X3}',
        f'v_lshlrev_b32 v{X3}, 16, v{X3}',
        f'v_add_f32 v{X3}, 0x3727c5ac, v{X3}',
        f'v_cvt_pk_bf16_f32 v{X3}, v{X3}, v{X3}',
        f'v_lshlrev_b32 v{X3}, 16, v{X3}',
        f'v_sqrt_f32 v{X3}, v{X3}',
        f'v_cvt_pk_bf16_f32 v{X3}, v{X3}, v{X3}',
        f'v_lshlrev_b32 v{X3}, 16, v{X3}',
        f'v_rcp_f32 v{X6}, v{X3}',
        ('i', f'ds_write_b64 v{X1}, v[{X5}:{X6}]', 'sc')]
    def st_loads(self, L):
        return [f'buffer_load_dwordx2 {vr(STR+2*c,2)}, v{VSTP}, s[8:11], s31 offen offset:{128*c} sc1' for c in range(4)]
    def st_soff(self, L):
        return [f's_lshl_b32 s31, s{S_RG}, 13', f's_add_u32 s31, s31, s{S_W2K}', f's_add_u32 s31, s31, {ST(L)}']
    def xchunk(self, c):
        it = [f's_add_u32 m0, s{S_W1K}, {4096*c}']
        if c == 39: it.append(f's_min_u32 m0, m0, {158*1024}')
        it += [('i', f'buffer_load_dwordx4 v{L16}, s[12:15], m0 offen sc1 lds', f'x{c}')]
        if c == 39:
            it += [f's_mov_b32 s30, {159*1024}',
                   ('i', f'buffer_load_dwordx4 {vr(XL,4)}, v{L16}, s[12:15], s30 offen sc1', f'x{c}')]
        return it
    def wloads(self, T, s0, n):
        it = [f's_add_u32 s30, s29, {WF[T] + 1024*s0}']
        for k in range(n):
            it.append(('i', f'buffer_load_dwordx4 {wreg(T, s0+k)}, v{L16}, s[8:11], s30 offen offset:{1024*k}', f'w{T}{s0}'))
        return it
    def wo_dma(self, f0, f1):
        gs = []
        f = f0
        while f < f1:
            it = [f's_add_u32 m0, s{S_W1K}, {WOL + 1024*f}']
            if f + 4 > f1: it.append(f's_min_u32 m0, m0, {WOL + 1024*(f1-1)}')
            it += [('i', f'buffer_load_dwordx4 v{L16}, s[16:19], m0 offen lds', 'wo')]
            gs.append(it); f += 4
        return gs
    def scread(self, rb):
        b = rb & 1
        return [('i', f'ds_read_b64 v[{T0}:{T1}], v{VSC} offset:{256*rb}', 'scr'), ('wlg', 'scr'),
                f'v_mov_b32 v{NM}, v{T0}', f'v_mov_b32 v{NM+1}, v{T0}', f'v_mov_b32 v{NM+2}, v{T0}', f'v_mov_b32 v{NM+3}, v{T0}',
                f'v_mov_b32 v{VR[b]}, v{T1}', f'v_mul_f32 v{VRL[b]}, 0x3fb8aa3b, v{T1}']
    def epilogue(self, T, rb):
        b = rb & 1
        ac = ACC + 16 * b; R = VR[b]; RL = VRL[b]
        it = []
        a = it.append
        a(['s_cmp_ge_u32 s3, 2', f's_cselect_b32 s30, {PQ(rb)-KREC[b]}, 0', f'v_add_u32 v{REC}, s30, v{REC0}'])
        KO = KREC[b]
        for k in range(10, 16): a(f'v_mul_f32 v{ac+k}, v{ac+k}, v{R}')
        for k in range(3): a(f'v_cvt_pk_bf16_f32 v{VC+k}, v{ac+10+2*k}, v{ac+11+2*k}')
        a(('i', f'ds_write_b128 v{REC}, {vr(VC,4)} offset:{KO+48}', 'rec'))
        if T == 'A':
            for b0, n in ((0, 4), (4, 4), (8, 2)):
                blk = [ac + b0 + k for k in range(n)]
                t = [TMP + 2 * k for k in range(n)]
                for x, tt in zip(blk, t): a(f'v_mul_f32 v{tt}, v{x}, v{RL}')
                for x, tt in zip(blk, t): a(f'v_max_f32 v{tt+1}, 0, v{x}')
                for x, tt in zip(blk, t): a(f'v_exp_f32_e64 v{tt}, v{tt} clamp')
                for x, tt in zip(blk, t): a(f'v_fma_f32 v{tt+1}, v{tt+1}, v{R}, s{S_EPS}')
                for x, tt in zip(blk, t): a(f'v_add_f32 v{tt}, v{tt}, v{tt+1}')
                for k in range(0, n, 2): a(f'v_cvt_pk_bf16_f32 v{PK+(b0+k)//2}, v{t[k]}, v{t[k+1]}')
                if b0 == 4: a(('i', f'ds_write_b128 v{REC}, {vr(PK,4)} offset:{KO}', 'rec'))
            a(f'v_mov_b32 v{PK+5}, 0')
            a(('i', f'ds_write_b64 v{REC}, {vr(PK+4,2)} offset:{KO+16}', 'rec'))
        else:
            s = [ac + k for k in range(10)]
            a(f'v_max3_f32 v{X1}, v{s[0]}, v{s[1]}, v{s[2]}')
            a(f'v_max3_f32 v{X2}, -v{s[0]}, -v{s[1]}, -v{s[2]}')
            for k in (3, 5, 7):
                a(f'v_max3_f32 v{X1}, v{X1}, v{s[k]}, v{s[k+1]}')
                a(f'v_max3_f32 v{X2}, v{X2}, -v{s[k]}, -v{s[k+1]}')
            a(f'v_max_f32 v{X1}, v{X1}, v{s[9]}')
            a(f'v_max_f32_e64 v{X2}, v{X2}, -v{s[9]}')
            a(f'v_permlane32_swap_b32 v{X1}, v{X2}')
            a(f'v_max_f32 v{X1}, v{X1}, v{X2}')
            a(f'v_mul_f32_e64 v{X1}, -v{X1}, v{RL}')
            a(f'v_mov_b32 v{X2}, v{X1}')
            a(f'v_permlane32_swap_b32 v{X1}, v{X2}')
            Pp = [TMP + k for k in range(10)]; N = [TMP + 10 + k for k in range(10)]
            prev = None
            def addblk(ks):
                for k in ks:
                    if k == 0: continue
                    if k == 1:
                        a(f'v_add_f32 v{X3}, v{Pp[0]}, v{Pp[1]}'); a(f'v_add_f32 v{X4}, v{N[0]}, v{N[1]}')
                    else:
                        a(f'v_add_f32 v{X3}, v{X3}, v{Pp[k]}'); a(f'v_add_f32 v{X4}, v{X4}, v{N[k]}')
            for ks in ((0, 1, 2, 3), (4, 5, 6, 7), (8, 9)):
                for k in ks:
                    a(f'v_fma_f32 v{Pp[k]}, v{s[k]}, v{RL}, v{X1}')
                    a(f'v_fma_f32 v{N[k]}, -v{s[k]}, v{RL}, v{X2}')
                for k in ks:
                    a(f'v_exp_f32 v{Pp[k]}, v{Pp[k]}')
                    a(f'v_exp_f32 v{N[k]}, v{N[k]}')
                if prev: addblk(prev)
                prev = ks
            addblk(prev)
            a(f'v_permlane32_swap_b32 v{X3}, v{X4}')
            a(f'v_add_f32 v{X3}, v{X3}, v{X4}')
            a(f'v_rcp_f32 v{X3}, v{X3}')
            a(f'v_mov_b32 v{X4}, v{X3}')
            a(f'v_permlane32_swap_b32 v{X3}, v{X4}')
            for half, (regs, sc) in enumerate(((Pp, X3), (N, X4))):
                for k in range(0, 10, 2):
                    a(f'v_mul_f32 v{regs[k]}, v{regs[k]}, v{sc}')
                    a(f'v_mul_f32 v{regs[k+1]}, v{regs[k+1]}, v{sc}')
                    a(f'v_cvt_pk_bf16_f32 v{PK+5*half+k//2}, v{regs[k]}, v{regs[k+1]}')
                    n = 5 * half + k // 2
                    if n == 3: a(('i', f'ds_write_b128 v{REC}, {vr(PK,4)} offset:{KO}', 'rec'))
                    if n == 7: a(('i', f'ds_write_b128 v{REC}, {vr(PK+4,4)} offset:{KO+16}', 'rec'))
                    if n == 9: a(('i', f'ds_write_b64 v{REC}, {vr(PK+8,2)} offset:{KO+32}', 'rec'))
        return it
    def kv(self, T, rb):
        b = rb & 1
        rd = [['s_bitcmp1_b32 s3, 0', f's_cselect_b32 s30, {PQ(rb)-KREC[b]}, 0', f'v_add_u32 v{TRB}, s30, v{TRB0}']]
        for jh in range(2):
            rd.append(('i', f'ds_read_b64_tr_b16 {vr(KFB+2*jh,2)}, v{TRB} offset:{KREC[b]+16*jh*RS}', 'kvr'))
        for mt, r in enumerate(TRA[T]):
            for jh in range(2):
                rd.append(('i', f'ds_read_b64_tr_b16 {vr(KFA+4*mt+2*jh,2)}, v{r} offset:{KREC[b]+16*jh*RS}', 'kvr'))
        mm = [('wlg', 'kvr')]
        for mt in range(len(TRA[T])):
            c = '0' if rb == 0 else vr(KC + 4 * mt, 4)
            mm.append(f'v_mfma_f32_16x16x32_bf16 {vr(KC+4*mt,4)}, {vr(KFA+4*mt,4)}, {vr(KFB,4)}, {c}')
        return rd, mm
    def kvp_addr(self, T):
        NG = 6 if T == 'A' else 10
        it = [f'v_bfe_u32 v{X1}, v0, 3, 1', f'v_lshrrev_b32 v{X2}, 4, v0',
              ['s_lshr_b32 s30, s3, 1', 's_mul_i32 s30, s30, 3', 's_and_b32 s31, s3, 1', 's_lshl_b32 s31, s31, 1',
               f'v_add_u32 v{X1}, s31, v{X1}', f'v_cmp_gt_u32 s[32:33], 3, v{X1}', f'v_add_u32 v{X1}, s30, v{X1}'],
              f'v_mul_u32_u24 v{X1}, {NG}, v{X1}', f'v_add_u32 v{X1}, v{X1}, v{X2}', f'v_mov_b32 v{X5}, {OOB}',
              f'v_and_b32 v{X3}, 7, v0', f'v_lshlrev_b32 v{X3}, 4, v{X3}', f'v_lshl_add_u32 v{X1}, v{X1}, 11, v{X3}',
              f'v_cndmask_b32 v{VKP[0]}, v{X5}, v{X1}, s[32:33]']
        nmt = len(TRA[T])
        for mt in range(1, nmt): it.append(f'v_add_u32 v{VKP[mt]}, {8192*mt}, v{VKP[0]}')
        it += [f'v_cmp_gt_u32 vcc, {NG-4*(nmt-1)}, v{X2}', f'v_cndmask_b32 v{VKP[nmt-1]}, v{X5}, v{VKP[nmt-1]}, vcc']
        return it
    def clears(self, L):
        n = L + 1
        g1 = [f'v_lshrrev_b32 v{X5}, 3, v0', f'v_and_b32 v{X6}, 7, v0', f'v_lshlrev_b32 v{X5}, 11, v{X5}',
              f'v_lshl_add_u32 v{X5}, v{X6}, 4, v{X5}',
              f's_mul_i32 s30, s{S_HP}, {KVPS(n)}', f's_lshl_b32 s31, s{S_RG}, 7', 's_add_u32 s30, s30, s31',
              's_lshl_b32 s31, s3, 15', 's_add_u32 s30, s30, s31', f's_add_u32 s30, s30, {KVP(n)}',
              ('i', f'buffer_store_dwordx4 {vr(SENT,4)}, v{X5}, s[8:11], s30 offen sc1', 'clr'),
              's_add_u32 s30, s30, 16384',
              ('i', f'buffer_store_dwordx4 {vr(SENT,4)}, v{X5}, s[8:11], s30 offen sc1', 'clr')]
        g2 = [f'v_lshrrev_b32 v{X5}, 3, v0', f'v_lshlrev_b32 v{X5}, 17, v{X5}', f'v_lshl_add_u32 v{X5}, v{X6}, 4, v{X5}',
              f's_lshl_b32 s30, s{S_HP}, 13', f's_lshl_b32 s31, s{S_RG}, 7', 's_add_u32 s30, s30, s31',
              f's_add_u32 s30, s30, s{S_W2K}', f's_add_u32 s30, s30, {KVF(n)}',
              ('i', f'buffer_store_dwordx4 {vr(SENT,4)}, v{X5}, s[8:11], s30 offen sc1', 'clr'),
              f's_lshl_b32 s31, s{S_RG}, 13', f's_add_u32 s31, s31, s{S_W2K}', f's_lshl_b32 s32, s{S_HP}, 7',
              's_add_u32 s31, s31, s32', f's_add_u32 s31, s31, {F2(n)}',
              f's_lshl_b32 s32, s{S_RBY}, 10', f's_lshl_b32 s33, s{S_CG}, 7', 's_add_u32 s32, s32, s33',
              f's_add_u32 s32, s32, {ST(n)}',
              ['s_mov_b64 exec, 0xff',
               ('i', f'buffer_store_dwordx4 {vr(SENT,4)}, v{L16}, s[8:11], s32 offen sc1', 'clr'),
               's_mov_b64 exec, 0xf',
               ('i', f'buffer_store_dwordx4 {vr(SENT,4)}, v{L16}, s[8:11], s31 offen sc1', 'clr'),
               's_mov_b64 exec, -1']]
        return [g1, g2]

    def layer(self, L):
        A = self.A; o = self.opt
        self.L = L
        T = 'AB'[L & 1]
        NG = 6 if T == 'A' else 10
        NR = 6 * NG
        last = (L == self.nl - 1)
        final = (L == 3)
        PF = 7
        queue = []
        if L == 0:
            emit_items(A, self.st_soff(0))
            for t in self.st_loads(0): A(t, tag='st')
            A(f's_lshl_b32 s29, s{S_HP}, 2'); A('s_add_u32 s29, s29, s3'); A('s_mul_i32 s29, s29, 40960')
            emit_items(A, self.xchunk(0)); emit_items(A, self.xchunk(1)); emit_items(A, self.wloads('A', 0, 4)); emit_items(A, self.wloads('A', 4, 4))
            A(f's_lshl_b32 s30, s{S_RG}, 6'); A(f's_lshl_b32 s31, s{S_HP}, 2'); A('s_add_u32 s30, s30, s31')
            A(f's_add_u32 s30, s30, {XI}')
            A(f'v_mov_b32 v{T0}, s{S_XCC}')
            A('s_mov_b64 exec, 1')
            A(f'buffer_store_dword v{T0}, off, s[8:11], s30 sc1')
            A('s_mov_b64 exec, -1')
            A(f's_lshl_b32 s30, s{S_HP}, 12'); A('s_lshl_b32 s31, s3, 10'); A('s_add_u32 s30, s30, s31')
            A(f's_add_u32 s31, s30, {WC["A"]}'); A(f's_add_u32 s30, s30, {WC["B"]}')
            A(f'buffer_load_dwordx4 {vr(WCR["A"],4)}, v{L16}, s[8:11], s31 offen', tag='wc')
            A(f'buffer_load_dwordx4 {vr(WCR["B"],4)}, v{L16}, s[8:11], s30 offen', tag='wc')
            for c in range(1, 5):
                emit_items(A, self.xchunk(2*c)); emit_items(A, self.xchunk(2*c+1)); emit_items(A, self.wloads('A', 8*c, 4)); emit_items(A, self.wloads('A', 8*c+4, 4))
                if c == 1: emit_items(A, self.setup_addr())
            queue = [self.xchunk(c) for c in range(10, 40)]
            xo = [f's_bfe_u32 s30, s{S_RBY}, 0x20001', 's_mul_i32 s30, s30, 40960', f's_mul_i32 s31, s{S_CG}, 5120', 's_add_u32 s30, s30, s31',
                  ('i', f'buffer_load_dwordx4 {vr(XOLD,4)}, v{VX}, s[12:15], s30 offen', 'xo'),
                  ('i', f'buffer_load_dwordx4 {vr(XOLD+4,4)}, v{VX}, s[12:15], s30 offen offset:2048', 'xo'),
                  ('i', f'buffer_load_dwordx2 {vr(XOLD+8,2)}, v{VX3}, s[12:15], s30 offen', 'xo')]
            queue.append(xo)
            if self.nl > 1: queue += [self.wloads('B', 4*k, 4) for k in range(10)]
            A.wait_vm('st')
            emit_items(A, self.stats_items())
        else:
            emit_items(A, self.st_soff(L))
            self.poll(self.st_loads(L), [STR + k for k in range(8)], X1)
            self.stamp('st')
            A('s_barrier')
            for c in range(o['PRE']): emit_items(A, self.xchunk(c))
            emit_items(A, self.stats_items())
            queue = [self.xchunk(c) for c in range(o['PRE'], 40)]
        def xread(n):
            if n == 159: return []
            r, off = dsaddr(1024 * n)
            return [('i', f'ds_read_b128 {vr(RING+4*(n%8),4)}, v{r} offset:{off}', f'r{n}')]
        bar = o.get('BAR', {8: 16, 16: 24, 24: 32, 32: 40, 40: 56, 56: 72, 72: 88, 104: 128, 144: 160})
        bend = o.get('BEND', {1: 104, 2: 144})
        def xwait(q):
            c = q // 4 - 1
            while any(isinstance(i, tuple) and i[2] == f'x{c}' for g in queue for i in g):
                emit_items(A, queue.pop(0))
            A.wait_vm(f'x{c}')
        A.wait_vm('x1'); A.wait_lg('sc'); self.stamp('x0'); A('s_barrier')
        for n in range(PF): emit_items(A, xread(n))
        gcount = 0
        for rb in range(4):
            ac = vr(ACC + 16 * (rb & 1), 16)
            fill = []
            if rb >= 2:
                rd, mm = self.kv(T, rb - 2)
                fill += rd
            if rb >= 1:
                ep = self.epilogue(T, rb - 1)
                if rb >= 2: ep = ep[:12] + mm + ep[12:]
                fill += ep
            scr = self.scread(rb)
            if rb == 0:
                fill += self.kvp_addr(T)
                if not last: fill += self.clears(L)
                fill += [self.srd_wo_items(T)]
            fill = scr[:1] + fill + scr[1:]
            if rb == 2: queue += self.wo_dma(0, 26)
            if rb == 3: queue += self.wo_dma(42, 66)
            rate = max(o['RMIN'], (cost(fill) * o['RX'] + o['DCOST'] * 40 / o['DMA_EVERY']) / 38); credit = -rate
            for s in range(41):
                n = 40 * rb + s
                if s < 40:
                    nn = n + PF
                    if nn in bar:
                        xwait(bar[nn]); A('s_barrier')
                        if nn == 104: queue += self.wo_dma(26, 42)
                        if nn == 144: queue += self.wo_dma(66, 82)
                    if nn < 160: emit_items(A, xread(nn))
                    if L == 0 and rb == 0 and s % 4 == 0: A.wait_vm(f'wA{s}')
                    if n == 159:
                        src = vr(XL, 4)
                    else:
                        if o['W2'] and n % 2 == 0 and n < 158: A.wait_lg(f'r{n+1}')
                        A.wait_lg(f'r{n}'); src = vr(RING + 4 * (n % 8), 4)
                    A(f'v_mfma_f32_32x32x16_bf16 {ac}, {wreg(T, s)}, {src}, {"0" if s == 0 else ac}')
                else:
                    emit_items(A, flat(fill)); fill = []
                    if L == 0 and rb == 0: A.wait_vm('wc')
                    A(f'v_mfma_f32_32x32x16_bf16 {ac}, {vr(WCR[T],4)}, {vr(NM,4)}, {ac}')
                    break
                gcount += 1
                credit += rate
                if queue and gcount % o['DMA_EVERY'] == 0:
                    g = queue.pop(0); emit_items(A, g); credit -= o['DCOST']
                if s >= 1:
                    while fill and credit >= 0.5 * cost(fill[0]):
                        it = fill.pop(0); p0 = A.pos; c0 = cost(it) - len(flat([it]))
                        emit_items(A, flat([it])); credit -= (A.pos - p0) + c0
            if rb >= 1:
                if rb in bend: xwait(bend[rb])
                if rb == 3:
                    for g in queue: emit_items(A, g)
                    queue = []
                    A.wait_vm('clr')
                A.wait_lg('rec'); A.wait_lg('kvr')
                self.stamp(f'b{rb}_')
                A('s_barrier')
        rd, mm = self.kv(T, 2)
        ep = self.epilogue(T, 3)
        if o.get('FINE'):
            self.stamp('ea'); emit_items(A, flat(rd)); self.stamp('eb'); emit_items(A, flat(ep[:11])); self.stamp('ec')
            h = 11 + (len(ep) - 11) // 2
            emit_items(A, flat(ep[11:h])); self.stamp('ed'); emit_items(A, flat(ep[h:])); self.stamp('ee'); emit_items(A, flat(mm)); self.stamp('ef')
            print(T, 'counts', len(flat(rd)), len(flat(ep[:11])), len(flat(ep[11:h])), len(flat(ep[h:])))
        else:
            emit_items(A, flat(rd + ep[:12] + mm + ep[12:]))
        A(f's_mul_i32 s34, s{S_HP}, {KVPS(L)}'); A(f's_add_u32 s34, s34, {KVP(L)}')
        A(f's_lshl_b32 s31, s{S_RG}, 7'); A('s_add_u32 s35, s34, s31')
        A(f'v_mov_b32 v{X5}, {OOB}')
        A.wait_lg()
        self.stamp('ep3_')
        A('s_barrier')
        rd, mm = self.kv(T, 3)
        emit_items(A, flat(rd + mm))
        for mt in range(len(TRA[T])):
            A(f'buffer_store_dwordx4 {vr(KC+4*mt,4)}, v{VKP[mt]}, s[8:11], s35 offen sc1')
        self.stamp('kvp')
        for g in self.wo_dma(82, o['WO1']): emit_items(A, g)
        QF = RING; KF = TMP; RD = 104; GQ = 136
        nks = 3 if T == 'B' else 2
        for hd in range(2):
            for ks in range(nks):
                q = QF + 12 * hd + 4 * ks
                if ks < nks - 1:
                    A(f'ds_read_b128 {vr(q,4)}, v{VPQ} offset:{128*hd+16*ks}', tag='qf')
                else:
                    A(f'ds_read_b64 {vr(q,2)}, v{VPQ} offset:{128*hd+16*ks}', tag='qf')
                    A(f'v_mov_b32 v{q+2}, 0'); A(f'v_mov_b32 v{q+3}, 0')
        A('s_lshl_b32 s30, s3, 4'); A(f's_add_u32 s30, s30, s{S_RG}')
        A('s_lshl_b32 s31, s30, 11'); A('s_add_u32 s34, s34, s31')
        A(f's_lshl_b32 s35, s{S_HP}, 13'); A(f's_add_u32 s35, s35, {KVF(L)}')
        A('s_lshl_b32 s31, s30, 7'); A('s_add_u32 s36, s35, s31')
        VO = PK
        A(f'v_and_b32 v{X1}, 7, v0'); A(f'v_lshrrev_b32 v{X2}, 5, v0')
        A(f'v_lshlrev_b32 v{X1}, 3, v{X1}'); A(f'v_lshl_add_u32 v{X1}, v{X2}, 2, v{X1}')
        A(f'v_bfe_u32 v{X2}, v0, 3, 2'); A(f'v_lshl_add_u32 v{VO}, v{X2}, 17, v{X1}')
        A(f'v_add_u32 v{VO+3}, {4*KVC}, v{VO}')
        A(f'v_lshrrev_b32 v{X1}, 2, v0'); A(f'v_and_b32 v{X2}, 3, v0'); A(f'v_lshlrev_b32 v{X2}, 4, v{X2}')
        A(f'v_lshl_add_u32 v{X1}, v{X1}, 7, v{X2}')
        A(f'v_cmp_gt_u32 vcc, {NR}, v0')
        A(f'v_cndmask_b32 v{VO+1}, v{X5}, v{X1}, vcc')
        A(f's_mul_i32 s31, s3, {16*NR}')
        A('s_add_u32 s35, s35, s31'); A('s_add_u32 s35, s35, s31')
        A(f's_lshr_b32 s32, s{S_RG}, 1'); A('s_lshl_b32 s32, s32, 17'); A('s_add_u32 s35, s35, s32')
        A(f'v_add_u32 v{X1}, s31, v{L16}'); A(f'v_add_u32 v{X2}, 0x1000, v{L16}')
        A(f'v_cndmask_b32 v{VO+2}, v{X2}, v{X1}, vcc')
        for hd in range(2):
            k = KF + 12 * hd + 4 * (nks - 1)
            A(f'v_mov_b32 v{k+2}, 0'); A(f'v_mov_b32 v{k+3}, 0')
        if L == 0:
            A(f'v_and_b32 v{X1}, 15, v0'); A(f'v_lshlrev_b32 v{X1}, 2, v{X1}')
            A(f's_lshl_b32 s31, s{S_RG}, 6'); A(f's_add_u32 s31, s31, {XI}')
            self.poll([f'buffer_load_dword v{X2}, v{X1}, s[8:11], s31 offen sc1'], [X2], None)
            A(f'v_cmp_ne_u32 vcc, s{S_XCC}, v{X2}')
            A('s_cmp_eq_u64 vcc, 0')
            A(f's_cselect_b32 s{S_SAME}, 1, 0')
            if o.get('FORCE_SLOW'): A(f's_mov_b32 s{S_SAME}, 0')
        lsk = self.lab('nored')
        A(f's_cmp_ge_u32 s30, {NR}')
        A(f's_cbranch_scc1 {lsk}')
        self.poll([f'buffer_load_dwordx4 {vr(RD,4)}, v{L16}, s[8:11], s34 offen sc1',
                   f'buffer_load_dwordx4 {vr(RD+4,4)}, v{L16}, s[8:11], s34 offen offset:1024 sc1'], [RD + k for k in range(8)], X1, sleep=o.get('SL1', 0), pre=o.get('PRE1', 0))
        for k in range(4): A(f'v_add_f32 v{RD+k}, v{RD+k}, v{RD+4+k}')
        A(f'v_permlane32_swap_b32 v{RD}, v{RD+2}')
        A(f'v_permlane32_swap_b32 v{RD+1}, v{RD+3}')
        A(f'v_add_f32 v{RD}, v{RD}, v{RD+2}')
        A(f'v_add_f32 v{RD+1}, v{RD+1}, v{RD+3}')
        A(f'v_add_f32_dpp v{RD+2}, v{RD}, v{RD} row_ror:8 row_mask:0xf bank_mask:0xf')
        A(f'v_add_f32_dpp v{RD+3}, v{RD+1}, v{RD+1} row_ror:8 row_mask:0xf bank_mask:0xf')
        A(f'v_mov_b32 v{RD}, v{RD+2}'); A(f'v_mov_b32 v{RD+1}, v{RD+3}')
        A(f'v_permlane16_swap_b32 v{RD}, v{RD+2}')
        A(f'v_permlane16_swap_b32 v{RD+1}, v{RD+3}')
        A(f'v_add_f32 v{RD}, v{RD}, v{RD+2}')
        A(f'v_add_f32 v{RD+1}, v{RD+1}, v{RD+3}')
        A(f'v_cvt_pk_bf16_f32 v{RD}, v{RD}, v{RD+1}')
        A(f'buffer_store_dword v{RD}, v{VO}, s[8:11], s36 offen sc1')
        A(f'buffer_store_dword v{RD}, v{VO+3}, s[8:11], s36 offen sc1')
        A.label(lsk)
        self.stamp('red')
        if o.get('RBAR', 1): A('s_barrier')
        for g in self.wo_dma(o['WO1'], 100): emit_items(A, g)
        self.poll([f'buffer_load_dwordx4 {vr(RD+4,4)}, v{VO+1}, s[8:11], s35 offen sc1'], [RD + 4 + k for k in range(4)], X1, sleep=o.get('SL2', 0), pre=o.get('PRE2', 0))
        A(f'ds_write_b128 v{VO+2}, {vr(RD+4,4)}')
        A(f'v_bfe_u32 v{X1}, v0, 4, 1'); A(f'v_mul_u32_u24 v{X1}, 20480, v{X1}')
        A(f'v_and_b32 v{X2}, 15, v0'); A(f'v_lshl_add_u32 v{X1}, v{X2}, 4, v{X1}')
        A(f'v_lshrrev_b32 v{X2}, 5, v0')
        A(f'v_lshl_add_u32 v{VO}, v{X2}, 8, v{X1}')
        A(f'v_lshl_add_u32 v{VO+1}, v{X2}, 3, v{X1}')
        A.wait_lg()
        self.stamp('kvf')
        A('s_barrier')
        for hd in range(2):
            for ks in range(nks):
                k = KF + 12 * hd + 4 * ks
                o8 = 192 * NG * hd + 128 * ks
                A(f'ds_read_b64 {vr(k,2)}, v{VKA[T]} offset:{o8}', tag=f'kf{hd}{ks}')
                if ks < nks - 1:
                    A(f'ds_read_b64 {vr(k+2,2)}, v{VKA[T]} offset:{o8+64}', tag=f'kf{hd}{ks}')
        A(f's_lshl_b32 s30, s{S_RG}, 2'); A('s_add_u32 s30, s30, s3')
        A('s_mul_i32 s31, s30, 40960'); A(f's_mul_i32 s32, s{S_HP}, 1280'); A('s_add_u32 s31, s31, s32')
        A(f's_add_u32 s31, s31, {O(L)}')
        A('s_lshl_b32 s30, s30, 11'); A(f's_lshl_b32 s32, s{S_HP}, 7'); A('s_add_u32 s30, s30, s32')
        A(f's_add_u32 s30, s30, {F2(L)}')
        for ks in range(nks):
            for hd in range(2):
                d = vr(ACC + 16 * hd, 16)
                A.wait_lg(f'kf{hd}{ks}')
                A(f'v_mfma_f32_32x32x16_bf16 {d}, {vr(KF+12*hd+4*ks,4)}, {vr(QF+12*hd+4*ks,4)}, {"0" if ks == 0 else d}')
        OPK = 140
        for hd in range(2):
            d = ACC + 16 * hd
            A(f'v_add_f32 v{d+10}, s{S_EPS}, v{d+10}')
            A(f'v_rcp_f32 v{d+10}, v{d+10}')
            A(f'v_mov_b32 v{d+11}, v{d+10}')
            for k in range(0, 10, 2):
                A(f'v_pk_mul_f32 {vr(d+k,2)}, {vr(d+k,2)}, {vr(d+10,2)}')
            for k in range(5):
                dst = OPK + 4 * hd + k if k < 4 else OPK + 8 + hd
                A(f'v_cvt_pk_bf16_f32 v{dst}, v{d+2*k}, v{d+2*k+1}')
        self.fstore([f'buffer_store_dwordx4 {vr(OPK,4)}, v{VO}, s[8:11], s31 offen',
                     f'buffer_store_dwordx4 {vr(OPK+4,4)}, v{VO}, s[8:11], s31 offen offset:512',
                     f'buffer_store_dwordx2 {vr(OPK+8,2)}, v{VO+1}, s[8:11], s31 offen offset:1024'])
        OF = 48; WR = 128; YA = 168
        def woread(f):
            r, off = dsaddr(WOL + 1024 * f)
            return ('i', f'ds_read_b128 {vr(WR+4*(f%10),4)}, v{r} offset:{off}', f'wr{f}')
        for k in range(10):
            A(f'v_lshlrev_b32 v{YA+2*k}, 16, v{XOLD+k}')
            A(f'v_and_b32 v{YA+2*k+1}, 0xffff0000, v{XOLD+k}')
        A(f'v_and_b32 v{T0}, 15, v0'); A(f'v_lshlrev_b32 v{T0}, 7, v{T0}')
        A(f's_lshr_b32 s32, s{S_RBY}, 1'); A('s_lshl_b32 s32, s32, 11'); A(f's_add_u32 s32, s32, {F2(L)}')
        A(f's_mul_i32 s33, s{S_RBY}, 20480'); A(f's_add_u32 s33, s33, {O(L)}')
        A.wait_vm()
        A('s_mov_b64 exec, 1')
        self.fstore([f'buffer_store_dword v{L16}, off, s[8:11], s30'])
        A('s_mov_b64 exec, -1')
        self.stamp('f2')
        for f in range(9): emit_items(A, [woread(f)])
        self.poll([f'buffer_load_dword v{T1}, v{T0}, s[8:11], s32 offen sc1'], [T1], None)
        self.stamp('e2')
        for kk in range(20):
            if kk % 4 == 0 and kk: A('s_add_u32 s33, s33, 4096')
            A(f'buffer_load_dwordx4 {vr(OF+4*kk,4)}, v{L16}, s[8:11], s33 offen offset:{1024*(kk%4)} sc1', tag=f'o{kk}')
        if final:
            A('s_mov_b32 s16, s6'); A('s_and_b32 s17, s7, 0xffff'); A(f's_mov_b32 s18, {2048*640*2}')
            A(f'v_and_b32 v{T0}, 15, v0'); A(f'v_mul_u32_u24 v{T0}, 1280, v{T0}'); A(f'v_lshrrev_b32 v{T1}, 4, v0')
            A(f'v_lshl_add_u32 v{VR[0]}, v{T1}, 4, v{T0}'); A(f'v_lshl_add_u32 v{VR[1]}, v{T1}, 3, v{T0}')
            A(f's_mul_i32 s30, s{S_RBY}, 20480'); A(f's_mul_i32 s31, s{S_CG}, 160'); A('s_add_u32 s30, s30, s31')
        else:
            if DBG[0]: self.srd_x(L + 1)
            A(f's_bfe_u32 s30, s{S_RBY}, 0x20001'); A('s_mul_i32 s30, s30, 40960'); A(f's_mul_i32 s31, s{S_CG}, 5120')
            A('s_add_u32 s30, s30, s31')
            A(f's_lshl_b32 s31, s{S_RBY}, 10'); A(f's_lshl_b32 s32, s{S_CG}, 7'); A('s_add_u32 s31, s31, s32')
            A(f's_add_u32 s31, s31, {ST(L+1)}')
            A(f'v_lshlrev_b32 v{T0}, 3, v0')
        for kk in range(20):
            A.wait_vm(f'o{kk}')
            if kk == 0: self.stamp('o0_')
            for mt in range(5):
                f = 5 * kk + mt
                if f + 9 < 100: emit_items(A, [woread(f + 9)])
                A.wait_lg(f'wr{f}')
                A(f'v_mfma_f32_16x16x32_bf16 {vr(YA+4*mt,4)}, {vr(WR+4*(f%10),4)}, {vr(OF+4*kk,4)}, {vr(YA+4*mt,4)}')
        self.stamp('y')
        for k in range(10):
            A(f'v_cvt_pk_bf16_f32 v{XOLD+k}, v{YA+2*k}, v{YA+2*k+1}')
        if final:
            A(f'buffer_store_dwordx4 {vr(XOLD,4)}, v{VR[0]}, s[16:19], s30 offen')
            A(f'buffer_store_dwordx4 {vr(XOLD+4,4)}, v{VR[0]}, s[16:19], s30 offen offset:64')
            A(f'buffer_store_dwordx2 {vr(XOLD+8,2)}, v{VR[1]}, s[16:19], s30 offen offset:128')
            return
        self.fstore([f'buffer_store_dwordx4 {vr(XOLD,4)}, v{VX}, s[12:15], s30 offen',
                     f'buffer_store_dwordx4 {vr(XOLD+4,4)}, v{VX}, s[12:15], s30 offen offset:2048',
                     f'buffer_store_dwordx2 {vr(XOLD+8,2)}, v{VX3}, s[12:15], s30 offen'])
        U = OF; a = OF + 20; b = OF + 22; c = OF + 24
        for k in range(10):
            A(f'v_lshlrev_b32 v{U+2*k}, 16, v{XOLD+k}')
            A(f'v_and_b32 v{U+2*k+1}, 0xffff0000, v{XOLD+k}')
        A(f'v_pk_add_f32 {vr(a,2)}, {vr(U,2)}, {vr(U+2,2)}')
        A(f'v_pk_add_f32 {vr(b,2)}, {vr(U+4,2)}, {vr(U+6,2)}')
        for k in range(4, 10, 2):
            A(f'v_pk_add_f32 {vr(a,2)}, {vr(a,2)}, {vr(U+2*k,2)}')
            A(f'v_pk_add_f32 {vr(b,2)}, {vr(b,2)}, {vr(U+2*k+2,2)}')
        A(f'v_pk_add_f32 {vr(a,2)}, {vr(a,2)}, {vr(b,2)}')
        def allsum(x, y):
            A(f'v_mov_b32 v{y}, v{x}')
            A(f'v_permlane16_swap_b32 v{x}, v{y}')
            A(f'v_add_f32 v{x}, v{x}, v{y}')
            A(f'v_mov_b32 v{y}, v{x}')
            A(f'v_permlane32_swap_b32 v{x}, v{y}')
            A(f'v_add_f32 v{x}, v{x}, v{y}')
        A(f'v_add_f32 v{a}, v{a}, v{a+1}')
        allsum(a, a + 1)
        A(f'v_mul_f32 v{a}, 0x3c4ccccd, v{a}')
        A(f'v_mul_f32 v{b}, -1.0, v{a}')
        A(f'v_mul_f32 v{b+1}, -1.0, v{a}')
        for k in range(10):
            A(f'v_pk_add_f32 {vr(U+2*k,2)}, {vr(U+2*k,2)}, {vr(b,2)}')
        A(f'v_pk_mul_f32 {vr(b,2)}, {vr(U,2)}, {vr(U,2)}')
        A(f'v_pk_mul_f32 {vr(c,2)}, {vr(U+2,2)}, {vr(U+2,2)}')
        for k in range(2, 10, 2):
            A(f'v_pk_fma_f32 {vr(b,2)}, {vr(U+2*k,2)}, {vr(U+2*k,2)}, {vr(b,2)}')
            A(f'v_pk_fma_f32 {vr(c,2)}, {vr(U+2*k+2,2)}, {vr(U+2*k+2,2)}, {vr(c,2)}')
        A(f'v_pk_add_f32 {vr(b,2)}, {vr(b,2)}, {vr(c,2)}')
        A(f'v_add_f32 v{a+1}, v{b}, v{b+1}')
        allsum(a + 1, b)
        A(f'v_mov_b32 v{VC+3}, 0x3f80')
        for k in range(4): A(f'v_mov_b32 v{SENT+k}, -1')
        A.wait_vm()
        A('s_mov_b64 exec, 0xffff')
        self.fstore([f'buffer_store_dwordx2 {vr(a,2)}, v{T0}, s[8:11], s31 offen'])
        A('s_mov_b64 exec, -1')
        self.stamp('xs')

    def gen(self):
        self.prologue()
        for L in range(self.nl): self.layer(L)
        A = self.A
        A.prof_end()
        A.label(f'{self.name}_END')
        A('s_endpgm')
        return A.text()

def make(path, prof=False, nl=4, dbg=False, sl=(0, 1, 2, 3), opt=None):
    import gen, k0b, json, emit
    DBG[0] = dbg
    ks = [('k0_kernel', k0b.gen_k0(), 256, 256)]
    ls = [('k0_kernel', k0b.K0_GRID, k0b.K0_LDS)]
    p = P('pk', prof=1 if prof else None, nl=nl, stamp_layers=sl, opt=opt)
    ks.append(('pk_kernel', p.gen(), 512, 256))
    ls.append(('pk_kernel', 256, P_LDS))
    gen.build(ks, ls, path)
    if prof: json.dump(emit.PROF_NAMES, open(path + '.names', 'w'))
    print('nops', p.A.nops, 'lines', len(p.A.lines))

if __name__ == '__main__':
    import sys
    kw = eval('dict(' + (sys.argv[2] if len(sys.argv) > 2 else '') + ')')
    make(sys.argv[1], **kw)
```

```python
import re

REG_RE = re.compile(r'\b([vas])(\d+)\b|\b([vas])\[(\d+):(\d+)\]|\b(vcc|exec|m0|scc)\b')

def regs_of(tok):
    out = []
    for m in REG_RE.finditer(tok):
        if m.group(1):
            out.append((m.group(1), int(m.group(2))))
        elif m.group(3):
            for i in range(int(m.group(4)), int(m.group(5)) + 1):
                out.append((m.group(3), i))
        else:
            out.append((m.group(6), 0))
    return out

TRANS = ('v_exp_f32', 'v_log_f32', 'v_rcp_f32', 'v_rsq_f32', 'v_sqrt_f32', 'v_sin_f32', 'v_cos_f32')

def split_ops(s):
    ops, d, cur = [], 0, ''
    for ch in s:
        if ch == '[': d += 1
        if ch == ']': d -= 1
        if ch == ',' and d == 0:
            ops.append(cur.strip()); cur = ''
        else:
            cur += ch
    if cur.strip(): ops.append(cur.strip())
    return ops

class Ins:
    __slots__ = ('op', 'text', 'kind', 'w', 'r', 'passes', 'srcC', 'srcAB', 'wide_store', 'trans', 'dpp', 'dot')

def parse(text):
    t = text.split(';')[0].strip()
    sp = t.split(None, 1)
    op = sp[0]
    rest = sp[1] if len(sp) > 1 else ''
    ops = split_ops(rest)
    I = Ins(); I.op = op; I.text = text; I.passes = 0; I.srcC = []; I.srcAB = []; I.wide_store = []
    I.trans = op.replace('_e32', '').replace('_e64', '') in TRANS
    I.dpp = ('row_' in t or 'quad_perm' in t or 'wave_' in t or '_dpp' in op)
    I.dot = op.startswith('v_dot')
    w, r = [], []
    if op.startswith('v_mfma'):
        I.kind = 'mfma'
        I.passes = 8 if '32x32x16' in op else 4
        w = regs_of(ops[0]); I.srcAB = regs_of(ops[1]) + regs_of(ops[2]); I.srcC = regs_of(ops[3])
        r = I.srcAB + I.srcC
    elif op.startswith('v_'):
        I.kind = 'valu'
        if op.startswith('v_permlane32_swap') or op.startswith('v_permlane16_swap') or op.startswith('v_swap'):
            w = regs_of(ops[0]) + regs_of(ops[1]); r = list(w)
        elif op.startswith('v_cmp'):
            w = regs_of(ops[0]); r = [x for o in ops[1:] for x in regs_of(o)]
        elif '_co_' in op:
            w = regs_of(ops[0]) + regs_of(ops[1]); r = [x for o in ops[2:] for x in regs_of(o)]
        elif op.startswith('v_nop'):
            pass
        else:
            w = regs_of(ops[0]); r = [x for o in ops[1:] for x in regs_of(o)]
            if op.startswith('v_fmac') or op.startswith('v_mac') or op.startswith('v_dot2c') or op.startswith('v_writelane'):
                r += w
            if op.startswith('v_cndmask') and len(ops) == 3:
                r.append(('vcc', 0))
            if I.dpp: r += w
    elif op.startswith(('buffer_', 'global_', 'flat_', 'scratch_')):
        I.kind = 'vmem'
        islds = (' lds' in t) or ('_lds_' in op)
        if 'load' in op and not islds:
            w = regs_of(ops[0]); r = [x for o in ops[1:] for x in regs_of(o)]
        elif 'atomic' in op and ' sc0' in t:
            w = regs_of(ops[0]); r = [x for o in ops for x in regs_of(o)]
        else:
            r = [x for o in ops for x in regs_of(o)]
            if islds: r.append(('m0', 0))
            if 'store' in op and ('x3' in op or 'x4' in op):
                I.wide_store = regs_of(ops[1]) if op.startswith('global_') else regs_of(ops[0])
    elif op.startswith('ds_'):
        I.kind = 'ds'
        if 'read' in op or 'permute' in op or 'swizzle' in op or '_rtn' in op:
            w = regs_of(ops[0]); r = [x for o in ops[1:] for x in regs_of(o)]
        else:
            r = [x for o in ops for x in regs_of(o)]
    elif op.startswith('s_load') or op.startswith('s_memtime') or op.startswith('s_memrealtime') or op.startswith('s_buffer_load'):
        I.kind = 'smem'
        w = regs_of(ops[0]); r = [x for o in ops[1:] for x in regs_of(o)]
    elif op.startswith('s_'):
        I.kind = 'salu'
        if op.startswith(('s_nop', 's_waitcnt', 's_barrier', 's_endpgm', 's_branch', 's_cbranch', 's_setprio', 's_sleep')):
            pass
        elif op.startswith('s_cmp') or op.startswith('s_bitcmp'):
            r = [x for o in ops for x in regs_of(o)]
        else:
            w = regs_of(ops[0]); r = [x for o in ops[1:] for x in regs_of(o)]
            if 'saveexec' in op: w.append(('exec', 0))
    else:
        raise ValueError('unknown instr ' + text)
    I.w = set(w); I.r = set(r)
    return I

class Asm:
    def __init__(self):
        self.lines = []
        self.hist = []
        self.pos = 0
        self.vm = []
        self.lg = []
        self.sm = []
        self.nops = 0
    def raw(self, s):
        self.lines.append(s)
    def comment(self, s):
        self.lines.append('    ; ' + s)
    def label(self, name):
        self.lines.append(name + ':')
    def need(self, I):
        n = 0
        for (P, ppos) in self.hist:
            d = self.pos - ppos - 1
            req = 0
            pw = P.w
            if P.kind == 'valu':
                vw = {x for x in pw if x[0] in 'va'}
                sw = {x for x in pw if x[0] in ('s', 'vcc', 'exec')}
                if I.kind == 'mfma' and vw & I.r: req = max(req, 2)
                if I.kind == 'valu':
                    if P.trans and (vw & I.r) and not I.trans: req = max(req, 1)
                    if P.trans and (vw & I.r) and I.trans: req = max(req, 1)
                    if I.op.startswith(('v_readlane', 'v_readfirstlane')) and vw & I.r: req = max(req, 1)
                    if I.op.startswith('v_permlane') and vw & I.r: req = max(req, 2)
                    if I.dpp and vw & I.r: req = max(req, 2)
                    if sw & I.r: req = max(req, 4 if I.op.startswith(('v_readlane', 'v_writelane')) else 2)
                    if P.dot and (vw & (I.r | I.w)):
                        if not (I.op == P.op): req = max(req, 3)
                        else: req = max(req, 3 if False else 0)
                    if ('exec', 0) in sw: req = max(req, 5)
                if P.dot and I.kind in ('vmem', 'ds', 'mfma') and (vw & I.r): req = max(req, 3)
                if P.trans and I.kind in ('vmem', 'ds') and (vw & I.r): req = max(req, 1)
                if I.kind == 'vmem' and sw & I.r: req = max(req, 5)
                if I.kind == 'salu' and sw & I.r: req = max(req, 1)
                if I.kind == 'mfma' and ('exec', 0) in sw: req = max(req, 4)
            elif P.kind == 'mfma':
                big = 12 if P.passes == 8 else 8
                if I.kind == 'mfma':
                    if pw & set(I.srcAB): req = max(req, big)
                    c = set(I.srcC)
                    if pw & c:
                        if c == pw and I.passes == P.passes: pass
                        else: req = max(req, big - 2)
                    elif pw & I.w: req = max(req, big)
                elif I.kind in ('valu', 'vmem', 'ds'):
                    if pw & (I.r | I.w): req = max(req, big)
                if I.kind in ('valu',) and set(P.srcC) & I.w: req = max(req, 7 if P.passes == 8 else 3)
                if I.kind in ('vmem', 'ds') and set(P.srcC) & I.w: req = max(req, 7 if P.passes == 8 else 3)
            elif P.kind == 'vmem':
                if P.wide_store and (set(P.wide_store) & I.w): req = max(req, 2)
            elif P.kind == 'salu':
                if ('m0', 0) in pw and ('m0', 0) in I.r and I.kind == 'vmem': req = max(req, 1)
            n = max(n, req - d)
        return n
    def check_pending(self, I):
        touched = I.r | I.w
        for q, nm in ((self.vm, 'vm'), (self.lg, 'lgkm')):
            for tag, regs in q:
                if regs & touched:
                    raise RuntimeError(f'pending {nm} load {tag} regs touched by: {I.text}')
        if self.sm and (set(self.sm) & touched):
            raise RuntimeError(f'pending smem regs touched by: {I.text}')
    def I(self, text, tag=None):
        I = parse(text)
        self.check_pending(I)
        n = self.need(I)
        while n > 0:
            k = min(n, 8)
            self.lines.append(f'    s_nop {k-1}')
            self.pos += k; n -= k; self.nops += k
        self.lines.append('    ' + text)
        if I.op == 's_nop':
            self.pos += int(text.split()[1]) + 1
        else:
            self.hist.append((I, self.pos))
            self.pos += 1
        self.hist = [(p, q) for (p, q) in self.hist if self.pos - q < 16]
        if I.kind == 'vmem':
            self.vm.append((tag, {x for x in I.w}))
        elif I.kind == 'ds':
            self.lg.append((tag, {x for x in I.w}))
        elif I.kind == 'smem':
            self.sm += list(I.w)
        return I
    def __call__(self, text, tag=None):
        for ln in text.strip().split('\n'):
            ln = ln.strip()
            if ln: self.I(ln, tag)
    def _cnt(self, q, tag):
        idx = [i for i, (t, _) in enumerate(q) if t == tag]
        if not idx: return None
        return len(q) - 1 - max(idx)
    def wait_vm(self, tag=None):
        n = 0 if tag is None else self._cnt(self.vm, tag)
        if n is None: return
        n = min(n, 63)
        self.I(f's_waitcnt vmcnt({n})')
        self.vm = self.vm[len(self.vm) - n:] if n else []
    def wait_lg(self, tag=None):
        n = 0 if tag is None else self._cnt(self.lg, tag)
        if n is None: return
        if self.sm: n = 0
        n = min(n, 15)
        self.I(f's_waitcnt lgkmcnt({n})')
        self.lg = self.lg[len(self.lg) - n:] if n else []
        if n == 0: self.sm = []
    def wait_all(self):
        self.I('s_waitcnt vmcnt(0) lgkmcnt(0)')
        self.vm = []; self.lg = []; self.sm = []
    def text(self):
        return '\n'.join(self.lines) + '\n'
    prof = None
    pv = 191
    def flush_stamps(self, force=False):
        keep = []
        for (k, sreg) in self.unfl:
            if ('s', sreg) in self.sm and not force:
                keep.append((k, sreg)); continue
            self.I(f'v_writelane_b32 v{self.pv + (k >> 6)}, s{sreg}, {k & 63}')
        self.unfl = keep
    def stamp(self, name='', real=False):
        if self.prof is None: return
        k = len(self.stamps) if hasattr(self, 'stamps') else 0
        if k == 0: self.stamps = []; self.unfl = []
        assert k < 64
        self.flush_stamps()
        assert len(self.unfl) < 10
        self.stamps.append(name)
        sreg = 40 + 2 * (k % 11)
        self.I(f's_{"memrealtime" if real else "memtime"} s[{sreg}:{sreg+1}]')
        self.unfl.append((k, sreg))
    def fstamp(self, name):
        if self.prof is None: return
        if name not in self.stamps: self.stamps.append(name)
        k = self.stamps.index(name)
        self.raw('    s_memtime s[62:63]'); self.raw('    s_waitcnt lgkmcnt(0)')
        self.raw(f'    v_writelane_b32 v{self.pv}, s62, {k}')
    def prof_end(self, wave_sgpr='s3', srd='s[8:11]'):
        if self.prof is None: return
        self.stamp('end')
        self.stamp('rend', real=True)
        self.wait_all()
        self.stamp('drained')
        self.wait_all()
        self.flush_stamps()
        self.I('s_mov_b64 exec, -1')
        self.I('v_mbcnt_lo_u32_b32 v3, -1, 0')
        self.I('v_mbcnt_hi_u32_b32 v3, -1, v3')
        self.I('v_lshlrev_b32 v3, 2, v3')
        self.I('s_lshl_b32 s100, s2, 11')
        self.I(f's_lshl_b32 s101, {wave_sgpr}, 9')
        self.I('s_add_u32 s100, s100, s101')
        self.I(f's_add_u32 s100, s100, {0x2000000 + self.prof * 0x80000}')
        self.I(f'buffer_store_dword v{self.pv}, v3, {srd}, s100 offen')
        PROF_NAMES[self.prof] = list(self.stamps)
PROF_NAMES = {}

def vr(b, n=1, p='v'):
    return f'{p}{b}' if n == 1 else f'{p}[{b}:{b+n-1}]'
def ar(b, n=1):
    return vr(b, n, 'a')
def sr(b, n=1):
    return vr(b, n, 's')

def kernel_text(name, body, vgpr, accum, sgpr=102):
    code = f'.globl {name}\n.p2align 8\n.type {name},@function\n{name}:\n' + body
    desc = f'''.p2align 6
.amdhsa_kernel {name}
  .amdhsa_next_free_vgpr {vgpr}
  .amdhsa_next_free_sgpr {sgpr}
  .amdhsa_accum_offset {accum}
  .amdhsa_group_segment_fixed_size 0
  .amdhsa_kernarg_size 80
  .amdhsa_user_sgpr_count 2
  .amdhsa_user_sgpr_kernarg_segment_ptr 1
  .amdhsa_system_sgpr_workgroup_id_x 1
.end_amdhsa_kernel
'''
    return code, desc
```

```python
import re
from emit import *
from lay2 import *
LB = 122880
SM = {4: 64, 5: 65, 6: 66, 7: 67, 8: 68, 9: 69, 12: 72, 13: 73, 14: 74, 15: 75, 16: 76, 17: 77,
      24: 8, 25: 9, 26: 10, 27: 11, 28: 84, 29: 85, 30: 86, 31: 87, 32: 88, 33: 89, 34: 90, 35: 91,
      36: 92, 37: 93, 38: 94, 39: 95, 40: 96, 41: 97, 42: 30, 43: 31, 44: 32, 45: 33, 46: 34, 47: 35, 48: 98, 49: 99,
      2: 82, 3: 3}
def ren(t):
    def f(m):
        if m.group(1) is not None: return f's{SM[int(m.group(1))]}'
        a, b = int(m.group(2)), int(m.group(3))
        assert SM[b] - SM[a] == b - a
        return f's[{SM[a]}:{SM[b]}]'
    return re.sub(r'\bs(\d+)\b|\bs\[(\d+):(\d+)\]', f, t)

def part_a(A0, join, hookE, hookX):
    A = lambda t, tag=None: A0(ren(t), tag=tag)
    A('s_cmp_ge_u32 s2, 80')
    A('s_cselect_b32 s36, 1, 0')
    A('s_cselect_b32 s28, s12, s6')
    A('s_cselect_b32 s29, s13, s7')
    A('s_and_b32 s29, s29, 0xffff')
    A(f's_mov_b32 s30, {640*1920*2}')
    A('s_mov_b32 s31, 0x00020000')
    A('s_mov_b32 s32, s14'); A('s_and_b32 s33, s15, 0xffff'); A(f's_mov_b32 s34, {32*400*2}'); A('s_mov_b32 s35, 0x00020000')
    A('s_mul_i32 s37, s36, 80')
    A('s_sub_u32 s37, s2, s37')
    A('s_mul_i32 s38, s37, 205')
    A('s_lshr_b32 s38, s38, 10')
    A('s_mul_i32 s39, s38, 5')
    A('s_sub_u32 s39, s37, s39')
    A('v_and_b32 v3, 31, v1')
    A('v_lshrrev_b32 v4, 5, v1')
    A('v_and_b32 v5, 0x13, v3')
    A('v_bfe_u32 v6, v3, 2, 1')
    A('v_lshl_or_b32 v5, v6, 3, v5')
    A('v_bfe_u32 v6, v3, 3, 1')
    A('v_lshl_or_b32 v5, v6, 2, v5')
    A('s_lshl_b32 s40, s39, 2')
    A('s_add_u32 s40, s40, s3')
    A('s_lshl_b32 s41, s40, 5')
    A('v_add_u32 v5, s41, v5')
    A('v_mul_u32_u24 v5, 3840, v5')
    A('v_lshl_add_u32 v6, v4, 4, v5')
    def off(cc):
        part = cc // 5
        base = [1280, 2560, 0][part]
        return base + 16 * (cc % 5)
    A(f'v_mul_u32_u24 v7, {off(5)-off(4)}, v4')
    A('v_add_u32 v7, v7, v5')
    A('s_mul_i32 s42, s38, 80')
    A('s_mul_i32 s43, s38, 1600')
    A('v_lshlrev_b32 v8, 1, v0')
    for rr in range(4):
        A(f'buffer_load_ushort v{48+rr}, v8, s[32:35], s43 offen offset:{512*rr}', tag='wp')
    for u in range(8):
        va = 'v7' if u == 2 else ('v5' if u == 7 else 'v6')
        A(f'buffer_load_dwordx4 {vr(16+4*u,4)}, {va}, s[28:31], s42 offen offset:{off(2*u)}', tag='wa')
    A0.fstamp('p10')
    hookE()
    A('v_lshlrev_b32 v9, 4, v0')
    A(f'v_add_u32 v9, {LB}, v9')
    for k in range(4): A(f'v_mov_b32 v{52+k}, 0')
    for k in range(9):
        A(f'ds_write_b128 v9, v[52:55] offset:{4096*k}')
    A('v_bfe_u32 v10, v0, 5, 1')
    A('v_bfe_u32 v11, v0, 3, 2')
    A('v_and_b32 v12, 3, v0')
    A('v_lshl_add_u32 v12, v11, 2, v12')
    A('v_bfe_u32 v13, v0, 6, 1')
    A('v_bfe_u32 v14, v0, 2, 1')
    A('v_mul_u32_u24 v15, 80, v13')
    A('v_mul_u32_u24 v57, 10, v14')
    A('v_add_u32 v15, v15, v57')
    A('v_mul_u32_u24 v57, 6, v14')
    A('v_lshl_add_u32 v58, v14, 2, 12')
    A('v_cmp_eq_u32 vcc, 1, v13')
    A('v_cndmask_b32 v57, v57, v58, vcc')
    A('v_add_u32 v57, 30, v57')
    A('v_cmp_gt_u32 s[46:47], 10, v12')
    A('v_cndmask_b32 v15, v57, v15, s[46:47]')
    A('v_mul_u32_u24 v57, 20, v10')
    A('v_add3_u32 v14, v15, v57, v12')
    A('v_mul_u32_u24 v15, 272, v0')
    A('v_lshl_add_u32 v15, v14, 1, v15')
    A(f'v_add_u32 v15, {LB}, v15')
    A('v_lshl_add_u32 v57, v13, 1, v12')
    A('v_cmp_gt_u32 s[44:45], 16, v57')
    A('v_cmp_gt_u32 vcc, 0x80, v0')
    A('s_not_b64 s[46:47], s[46:47]')
    A('s_cmp_eq_u32 s36, 0')
    A('s_cselect_b64 s[48:49], -1, s[46:47]')
    A('s_and_b64 s[44:45], s[44:45], vcc')
    A('s_and_b64 s[44:45], s[44:45], s[48:49]')
    A('v_mov_b32 v56, 0x3f80')
    A0.wait_lg()
    A('s_barrier')
    A('s_mov_b64 exec, s[44:45]')
    A('ds_write_b16 v15, v56')
    A('s_mov_b64 exec, -1')
    A0.fstamp('p20')
    hookX()
    A0.fstamp('p30')
    A('s_cmp_eq_u32 s36, 0')
    A('s_cbranch_scc1 KZ_A_NOPHI')
    sv = list(A0.vm)
    A0.wait_vm('wp')
    for rr in range(4):
        A(f'v_add_u32 v10, {256*rr}, v0')
        A('v_cmp_le_u32 vcc, 400, v10')
        A('v_cndmask_b32 v11, 0, 1, vcc')
        A('v_mul_u32_u24 v12, 400, v11')
        A('v_sub_u32 v12, v10, v12')
        A('v_mul_u32_u24 v13, 205, v12')
        A('v_lshrrev_b32 v13, 12, v13')
        A('v_mul_u32_u24 v14, 20, v13')
        A('v_sub_u32 v14, v12, v14')
        A('v_mul_u32_u24 v15, 20, v11')
        A('v_add_u32 v15, v15, v13')
        if rr == 3:
            A('v_cmp_gt_u32 vcc, 800, v10')
            A('s_mov_b64 exec, vcc')
        A('v_cmp_le_u32 s[46:47], 10, v14')
        A('v_cndmask_b32 v58, 0, 1, s[46:47]')
        A('v_mul_u32_u24 v57, 10, v58')
        A('v_sub_u32 v57, v14, v57')
        A('v_lshrrev_b32 v59, 2, v57')
        A('v_and_b32 v57, 3, v57')
        A('v_lshl_add_u32 v57, v59, 3, v57')
        A('v_lshl_add_u32 v57, v58, 2, v57')
        A('v_lshl_add_u32 v57, v11, 5, v57')
        A('v_mul_u32_u24 v57, 272, v57')
        A('v_lshl_add_u32 v57, v15, 1, v57')
        A(f'v_add_u32 v57, {LB}, v57')
        A(f'ds_write_b16 v57, v{48+rr}')
        A(f'ds_write_b16 v57, v{48+rr} offset:{160+64*272}')
        if rr == 3:
            A('s_mov_b64 exec, -1')
    A0.label('KZ_A_NOPHI')
    A0.vm = sv
    A('v_mul_u32_u24 v9, 272, v3')
    A('v_lshl_add_u32 v9, v4, 4, v9')
    A(f'v_add_u32 v9, {LB}, v9')
    A0.wait_lg()
    A('s_barrier')
    need = {0: [0, 1, 2, 3], 1: [1, 2, 3, 4], 2: [3, 5, 6], 3: [4, 6, 7]}
    lst = [(t, u) for t in range(4) for u in need[t]]
    for n, (t, u) in enumerate(lst):
        A(f'ds_read_b128 {vr(128+4*n,4)}, v9 offset:{8704*t+32*u}', tag=f'b{n}')
    A('s_lshl_b32 s43, s38, 2')
    A('s_mul_i32 s43, s43, 40')
    A('s_lshl_b32 s44, s40, 1')
    A('s_add_u32 s43, s43, s44')
    A('s_lshl_b32 s43, s43, 10')
    A(f's_mul_i32 s44, s36, {WF["B"]-WF["A"]}')
    A('s_add_u32 s43, s43, s44')
    A('v_lshlrev_b32 v8, 4, v1')
    A('v_lshrrev_b32 v10, 5, v0')
    A('v_lshlrev_b32 v10, 9, v10')
    A('v_lshl_add_u32 v10, v3, 2, v10')
    A(f'v_add_u32 v10, {LB}, v10')
    A0.fstamp('p40')
    A0.wait_vm('wa')
    A0.fstamp('p50')
    for n, (t, u) in enumerate(lst):
        A0.wait_lg(f'b{n}')
        c = '0' if u == need[t][0] else vr(64+16*t, 16)
        A(f'v_mfma_f32_32x32x16_bf16 {vr(64+16*t,16)}, {vr(16+4*u,4)}, {vr(128+4*n,4)}, {c}')
    for t in range(4):
        pk = 200 + 8 * t
        for x in range(8):
            A(f'v_cvt_pk_bf16_f32 v{pk+x}, v{64+16*t+2*x}, v{64+16*t+2*x+1}')
        A(f'buffer_store_dwordx4 {vr(pk,4)}, v8, s[24:27], s43 offen sc1')
        A(f'buffer_store_dwordx4 {vr(pk+4,4)}, v8, s[24:27], s43 offen offset:1024 sc1')
        A(f's_add_u32 s43, s43, {40*1024}')
    for t in range(4):
        pk = 200 + 8 * t
        A(f'v_mov_b32 v{11+t}, 0')
    for x in range(8):
        for t in range(4):
            A(f'v_dot2c_f32_bf16 v{11+t}, 0x3f803f80, v{200+8*t+x}')
    for t in range(4):
        A(f'ds_write_b32 v10, v{11+t} offset:{36864+128*t}')
    A0.wait_lg()
    A('s_barrier')
    A('s_cmp_ge_u32 s3, 2')
    A(f's_cbranch_scc1 {join}')
    A('v_lshlrev_b32 v10, 2, v0')
    A(f'v_add_u32 v10, {LB}, v10')
    for k in range(8):
        A(f'ds_read_b32 v{16+k}, v10 offset:{36864+512*k}')
    A('v_lshrrev_b32 v10, 5, v0')
    A('v_lshlrev_b32 v10, 10, v10')
    A('v_lshl_add_u32 v10, v3, 4, v10')
    A('s_lshl_b32 s43, s38, 12')
    A(f's_mul_i32 s44, s36, {WC["B"]-WC["A"]}')
    A('s_add_u32 s43, s43, s44')
    A(f's_add_u32 s43, s43, {WC["A"]}')
    A('s_mul_i32 s44, s39, 3')
    A0.wait_lg()
    for k in range(1, 8):
        A(f'v_add_f32 v16, v16, v{16+k}')
    A('v_cvt_pk_bf16_f32 v17, v16, v16')
    A('v_lshlrev_b32 v18, 16, v17')
    A('v_sub_f32 v16, v16, v18')
    A('v_cvt_pk_bf16_f32 v19, v16, v16')
    A('v_lshlrev_b32 v18, 16, v19')
    A('v_sub_f32 v16, v16, v18')
    A('v_cvt_pk_bf16_f32 v20, v16, v16')
    A('v_mov_b32 v21, 0')
    for k, reg in ((0, 17), (1, 19), (2, 20), (3, 21)):
        if k == 3:
            A('s_cmp_lg_u32 s39, 4')
            A(f's_cbranch_scc1 {join}')
        A(f's_add_u32 s45, s44, {k}')
        A('s_lshr_b32 s46, s45, 3')
        A('s_lshl_b32 s46, s46, 9')
        A('s_and_b32 s45, s45, 7')
        A('s_lshl_b32 s45, s45, 1')
        A('s_add_u32 s45, s45, s46')
        A('s_add_u32 s45, s45, s43')
        A(f'buffer_store_short v{reg}, v10, s[24:27], s45 offen sc1')
    A(f's_branch {join}')

def part_b(A0, join, hookE, hookX):
    A = lambda t, tag=None: A0(ren(t), tag=tag)
    A('s_mov_b32 s37, s2')
    A('s_cmp_ge_u32 s37, 40')
    A('s_cselect_b32 s36, 1, 0')
    A('s_cselect_b32 s28, s16, s8')
    A('s_cselect_b32 s29, s17, s9')
    A('s_and_b32 s29, s29, 0xffff')
    A(f's_mov_b32 s30, {640*640*2}')
    A('s_mov_b32 s31, 0x00020000')
    A('s_mul_i32 s38, s36, 40')
    A('s_sub_u32 s37, s37, s38')
    A('s_cmp_ge_u32 s37, 20')
    A('s_cselect_b32 s38, 1, 0')
    A('s_mul_i32 s39, s38, 20')
    A('s_sub_u32 s37, s37, s39')
    A('s_lshl_b32 s41, s38, 2')
    A('s_add_u32 s41, s41, s3')
    A('v_lshrrev_b32 v3, 4, v1')
    A('v_and_b32 v4, 15, v1')
    A('s_lshl_b32 s39, s37, 2')
    A('v_add_u32 v3, s39, v3')
    A('v_mul_u32_u24 v5, 205, v3')
    A('v_lshrrev_b32 v5, 10, v5')
    A('v_mul_u32_u24 v6, 5, v5')
    A('v_sub_u32 v6, v3, v6')
    A('v_mul_u32_u24 v5, 40, v5')
    A('v_mul_u32_u24 v7, 10, v6')
    A('v_add_u32 v7, v7, v5')
    A('v_add_u32 v5, 8, v5')
    A('v_mul_u32_u24 v7, 1280, v7')
    A('v_mul_u32_u24 v5, 1280, v5')
    A('v_lshrrev_b32 v9, 2, v4')
    A('v_and_b32 v10, 3, v4')
    A('v_lshl_add_u32 v9, v9, 3, v10')
    A('v_sub_u32 v10, v4, v9')
    A('v_lshlrev_b32 v10, 1, v10')
    A('v_lshl_add_u32 v7, v9, 1, v7')
    A('v_lshl_add_u32 v5, v9, 1, v5')
    A('v_cmp_eq_u32 vcc, 4, v6')
    A('s_mul_i32 s42, s41, 160')
    for j in range(8):
        o4 = 20 * ((j >> 1) & 1) + 10 * (j >> 2) + (j & 1)
        A(f'v_add_u32 v11, {1280*j}, v7')
        A(f'v_add_u32 v12, {1280*o4}, v5')
        A(f'v_cndmask_b32 v{96+2*j}, v11, v12, vcc')
        A(f'v_add_u32 v{97+2*j}, v{96+2*j}, v10')
        for mt in range(5):
            if mt < 4:
                A(f'buffer_load_ushort v{16+8*mt+j}, v{96+2*j}, s[28:31], s42 offen offset:{2*(32*(mt>>1)+4*(mt&1))}', tag='wa')
            else:
                A(f'buffer_load_ushort v{16+8*mt+j}, v{97+2*j}, s[28:31], s42 offen offset:128', tag='wa')
    A0.fstamp('p10'); hookE(); A0.fstamp('p20'); hookX(); A0.fstamp('p30')
    A('s_mul_i32 s44, s41, 20')
    A('s_add_u32 s44, s44, s37')
    A('s_mul_i32 s44, s44, 5120')
    A(f's_mul_i32 s45, s36, {WOF["B"]-WOF["A"]}')
    A('s_add_u32 s44, s44, s45')
    A(f's_add_u32 s44, s44, {WOF["A"]}')
    A('v_lshlrev_b32 v8, 4, v1')
    A0.fstamp('p40')
    A0.wait_vm('wa')
    A0.fstamp('p50')
    for mt in range(5):
        for x in range(4):
            A(f'v_lshl_or_b32 v{64+4*mt+x}, v{16+8*mt+2*x+1}, 16, v{16+8*mt+2*x}')
        if mt < 4:
            A(f'buffer_store_dwordx4 {vr(64+4*mt,4)}, v8, s[24:27], s44 offen offset:{1024*mt} sc1')
        else:
            A('s_add_u32 s44, s44, 4096')
            A(f'buffer_store_dwordx4 {vr(64+4*mt,4)}, v8, s[24:27], s44 offen sc1')
    A(f's_branch {join}')
```

```python
from emit import *
from lay2 import *
from k1 import emit_items

P_LDS = 163840
RS = 288
KREC = [0, 9216]
def PQ(rb): return 18432 + 9216 * rb
WOL = 55296
SC = 162816
LANE = 0; L16 = 1
VR = [2, 3]; VRL = [4, 5]; T0 = 6; T1 = 7
NM = 8; WCR = {'A': 12, 'B': 16}; XOLD = 20
DS1 = 30; DS2 = 31; REC0 = 32; REC = 33
TRA = {'B': [34, 35, 36], 'A': [37, 38]}; TRB0 = 39; TRB = 40
VSC = 41; VSTP = 42; VX = 43; VX3 = 44; VKA = {'A': 45, 'B': 46}; VPQ = 47
ACC = 48; RING = 80; TMP = 112; X1 = 132; X2 = 133; X3 = 134; X4 = 135; X5 = 136; X6 = 137
PK = 138; VC = 148; KFA = 152; KFB = 164; KC = 168; XL = 180; SENT = 184; STR = 112
S_RG = 20; S_HP = 21; S_BUD = 22; S_SAME = 23; S_EPS = 24; S_W2K = 25; S_XCC = 26
S_RBY = 27; S_CG = 28; S_W1K = 37
VKP = [188, 189, 190]
S_N = 80; S_M = 81; XS = 48; XL4 = 240; VXE = 192; VXO = 193; VXD = 194; VXR = 195
KR2 = WOL + 82 * 1024
BUDGET = 400000

def cost(it):
    if isinstance(it, str):
        if it.startswith(('v_exp', 'v_rcp', 'v_sqrt', 'v_rsq')): return 2
        if it.startswith('v_mfma'): return 4
        return 1
    if isinstance(it, list): return sum(cost(x) for x in it)
    return 1

def flat(items):
    out = []
    for it in items:
        if isinstance(it, list): out += flat(it)
        else: out.append(it)
    return out

def wreg(T, s):
    if T == 'A': return ar(4 * s, 4)
    return ar(160 + 4 * s, 4) if s < 24 else vr(192 + 4 * (s - 24), 4)

def dsaddr(off):
    return [L16, DS1, DS2][off >> 16], off & 0xffff

class P:
    def __init__(self, name, prof=None, nl=4, stamp_layers=(0, 1, 2, 3), opt=None):
        self.name = name; self.nl = nl; self.sl = stamp_layers
        self.A = Asm(); self.A.prof = prof
        self.nlab = 0
        self.opt = dict(FB=4, PRE=9, DMA_EVERY=3, YFB=1, MASK=1, WO1=100, W2=1, DCOST=2, RMIN=2.0, RX=1.1)
        if opt: self.opt.update(opt)
        self.L = 0
        self.wsc = ' sc1' if self.opt.get('WSC', 1) else ''
    def lab(self, s):
        self.nlab += 1
        return f'{self.name}_{s}{self.nlab}'
    def stamp(self, n):
        if self.L in self.sl: self.A.stamp(f'{n}{self.L}')
    def poll(self, loads, regs, tmp, sleep=0, pre=0):
        A = self.A
        lp, lg = self.lab('poll'), self.lab('go')
        A('s_nop 4')
        if pre: A(f's_sleep {pre}')
        if sleep:
            l1 = self.lab('p1')
            A(f's_branch {l1}')
            A.label(lp)
            A(f's_sleep {sleep}')
            A.label(l1)
        else:
            A.label(lp)
        for t in loads: A(t)
        A.wait_vm()
        r = list(regs)
        if len(r) == 1: m = r[0]
        else:
            m = tmp
            if len(r) == 2:
                A(f'v_max_u32 v{m}, v{r[0]}, v{r[1]}'); r = []
            else:
                A(f'v_max3_u32 v{m}, v{r[0]}, v{r[1]}, v{r[2]}'); r = r[3:]
            while len(r) >= 2:
                A(f'v_max3_u32 v{m}, v{m}, v{r[0]}, v{r[1]}'); r = r[2:]
            if r: A(f'v_max_u32 v{m}, v{m}, v{r[0]}')
        A(f'v_cmp_eq_u32 vcc, -1, v{m}')
        A(f's_sub_u32 s{S_BUD}, s{S_BUD}, 1')
        A(f's_cbranch_scc1 {lg}')
        if self.opt['MASK']: A('s_mov_b64 exec, vcc')
        A(f's_cbranch_vccnz {lp}')
        A.label(lg)
        if self.opt['MASK']: A('s_mov_b64 exec, -1')
        A(f's_max_i32 s{S_BUD}, s{S_BUD}, 0')
    def fstore(self, stores, tag=None):
        A = self.A
        ls, lj = self.lab('slow'), self.lab('join')
        A(f's_cmp_eq_u32 s{S_SAME}, 0')
        A(f's_cbranch_scc1 {ls}')
        n0 = len(A.lines)
        for t in stores: A(t, tag=tag)
        body = A.lines[n0:]
        A(f's_branch {lj}')
        A.label(ls)
        for ln in body:
            A.raw(ln + ' sc1' if 'buffer_store' in ln else ln)
        A.raw('    s_nop 0')
        A.label(lj)
    def srd_x(self, L):
        A = self.A
        A(f's_mul_i32 s30, s{S_RG}, 163840')
        A(f's_add_u32 s30, s30, {X(L)}')
        A('s_add_u32 s12, s4, s30')
        A('s_addc_u32 s13, s5, 0')
        A('s_and_b32 s13, s13, 0xffff')
    def srd_wo_items(self, T):
        return [f's_mul_i32 s30, s{S_CG}, 102400', f's_add_u32 s30, s30, {WOF[T] - WOL}',
                's_add_u32 s16, s4, s30', 's_addc_u32 s17, s5, 0', 's_and_b32 s17, s17, 0xffff']

    def prologue(self):
        import kz
        A = self.A; o = self.opt
        nm = self.name
        A('s_load_dwordx2 s[4:5], s[0:1], 72')
        A('s_load_dwordx16 s[64:79], s[0:1], 0')
        A(f's_memrealtime s[{S_N}:{S_N+1}]')
        A('s_cmp_ge_u32 s2, 256')
        A(f's_cbranch_scc1 {nm}_END')
        A.stamp('rstart', real=True); A.stamp('start')
        A('v_lshrrev_b32 v2, 6, v0')
        A('v_and_b32 v1, 63, v0')
        A('v_readfirstlane_b32 s3, v2')
        A('s_and_b32 s30, s2, 7')
        A('s_lshr_b32 s31, s2, 3')
        A(f's_lshl_b32 s{S_RG}, s30, 1')
        A('s_and_b32 s30, s31, 1')
        A(f's_add_u32 s{S_RG}, s{S_RG}, s30')
        A(f's_lshr_b32 s{S_HP}, s31, 1')
        A('s_mov_b32 s10, %d' % WS_SIZE); A('s_mov_b32 s11, 0x00020000')
        A(f's_lshl_b32 s83, s{S_RG}, 4'); A(f's_add_u32 s83, s83, s{S_HP}'); A('s_lshl_b32 s83, s83, 3')
        A('s_lshr_b32 s39, s83, 1'); A(f's_add_u32 s39, s39, {AR}')
        A(f's_lshr_b32 s{S_CG}, s{S_HP}, 1')
        A(f's_and_b32 s30, s{S_HP}, 1')
        A('s_lshl_b32 s30, s30, 2')
        A(f's_lshl_b32 s{S_RBY}, s{S_RG}, 3')
        A(f's_add_u32 s{S_RBY}, s{S_RBY}, s30')
        A(f's_add_u32 s{S_RBY}, s{S_RBY}, s3')
        A(f's_lshl_b32 s{S_W2K}, s3, 11')
        A(f's_lshl_b32 s{S_W1K}, s3, 10')
        A(f's_mov_b32 s{S_BUD}, {BUDGET}')
        A(f's_mov_b32 s{S_EPS}, 0x358637bd')
        A(f's_getreg_b32 s{S_XCC}, hwreg(HW_REG_XCC_ID, 0, 16)')
        A('s_mov_b32 s14, 163840'); A('s_mov_b32 s15, 0x00020000')
        A(f's_mov_b32 s18, {WOL + 102400}'); A('s_mov_b32 s19, 0x00020000')
        A(f's_mul_i32 s30, s{S_RG}, 163840')
        A('s_lshl_b32 s38, s2, 2'); A('s_add_u32 s38, s38, s3')
        A.wait_lg()
        A('s_mov_b32 s8, s4')
        A('s_and_b32 s9, s5, 0xffff')
        A(f'v_mov_b32 v2, s{S_N}')
        A('s_cmp_lg_u32 s3, 2')
        A(f's_cbranch_scc1 {nm}_noar')
        A('s_mov_b64 exec, 1')
        A('buffer_store_dword v2, off, s[8:11], s39 sc1')
        A('s_mov_b64 exec, -1')
        A.label(f'{nm}_noar')
        A.vm = []
        A('s_mov_b32 s6, s78'); A('s_mov_b32 s7, s79')
        A('s_add_u32 s12, s64, s30')
        A('s_addc_u32 s13, s65, 0')
        A('s_and_b32 s13, s13, 0xffff')
        H = 232
        def hookE():
            A(f'v_lshlrev_b32 v{H}, 4, v1')
            for k in range(4): A(f'v_mov_b32 v{H+4+k}, -1')
            for g in self.clears(-1, lane=1, l16=H, x5=H+1, x6=H+2, sent=H+4): emit_items(A, flat(g))
            A(f'v_and_b32 v{H+1}, 31, v1'); A(f'v_mul_u32_u24 v{H+1}, 1280, v{H+1}')
            A(f'v_lshrrev_b32 v{H+2}, 5, v1'); A(f'v_lshl_add_u32 v{VXR}, v{H+2}, 4, v{H+1}')
            A(f'v_lshrrev_b32 v{H+1}, 3, v1'); A(f'v_and_b32 v{H+2}, 6, v{H+1}'); A(f'v_mul_u32_u24 v{H+1}, 1280, v{H+1}')
            A(f'v_and_b32 v{H+3}, 7, v1'); A(f'v_xor_b32 v{H+2}, v{H+2}, v{H+3}')
            A(f'v_lshl_add_u32 v{VXE}, v{H+2}, 4, v{H+1}'); A(f'v_xor_b32 v{VXO}, 16, v{VXE}')
            A('s_and_b32 s30, s3, 1'); A('s_lshl_b32 s30, s30, 4'); A(f'v_xor_b32 v{VXD}, s30, v{VXE}')
        def hookX():
            for rb in range(3):
                A('s_mul_i32 s31, s3, 10240'); A(f's_add_u32 s31, s31, {40960*rb}')
                for sg in range(10):
                    A(f's_add_u32 m0, s{S_W1K}, {40960*rb + 3968*sg}')
                    A(f'buffer_load_dwordx4 v{VXD}, s[12:15], s31 offen offset:{128*sg} lds', tag='xd')
        join = f'{nm}_pj'
        A('s_cmp_lt_u32 s2, 16')
        A(f's_cbranch_scc1 {nm}_pc')
        A('s_cmp_ge_u32 s2, 176')
        A(f's_cbranch_scc1 {nm}_pb')
        A('s_sub_u32 s82, s2, 16')
        kz.part_a(A, join, hookE, hookX)
        A.label(f'{nm}_pb'); A.vm = []; A.lg = []
        A('s_sub_u32 s82, s2, 176')
        kz.part_b(A, join, hookE, hookX)
        A.label(f'{nm}_pc'); A.vm = []; A.lg = []
        hookE()
        A.label(join)
        A('s_nop 7'); A('s_nop 7')
        A.vm = [('pst', set())]; A.lg = []
        self.stamp('pc')
        E = RING
        A(f's_add_u32 s39, s83, {EC}')
        A(f'buffer_load_dwordx2 {vr(E+8,2)}, off, s[8:11], s39 sc1')
        def xsl():
            for k in range(4):
                A(f'buffer_load_dwordx4 {vr(XS+4*k,4)}, v{VXR}, s[12:15], s101 offen offset:{(36+k)*32}')
        A('s_mov_b32 s100, s3')
        A('s_mul_i32 s101, s3, 40960')
        xsl()
        A('v_and_b32 v0, 63, v0')
        A(f'v_lshlrev_b32 v{L16}, 4, v0')
        emit_items(A, self.setup0() + self.setup_addr() + self.xa_items(TMP))
        A(f'v_lshlrev_b32 v{E+12}, 5, v0')
        A(f's_add_u32 s36, s83, {FL}')
        A(f's_mov_b32 s32, {FL}')
        A(f'v_mov_b32 v{E+11}, s{S_XCC}')
        A.wait_vm()
        self.stamp('dr')
        A('s_barrier')
        A(f'v_readfirstlane_b32 s33, v{E+8}')
        A(f'v_mov_b32 v{E+10}, v{E+9}')
        A('s_mov_b32 s34, 0')
        A('s_cmp_eq_u32 s38, 1')
        A(f's_cbranch_scc1 {nm}_mst')
        A('s_cmp_lg_u32 s3, 2')
        A(f's_cbranch_scc1 {nm}_nf')
        A(f's_cmp_lg_u32 s33, s{S_N}')
        A(f's_cbranch_scc1 {nm}_nf')
        A('s_mov_b32 s34, 1')
        A('s_mov_b64 exec, 1')
        A(f'buffer_store_dwordx2 {vr(E+10,2)}, off, s[8:11], s36 sc1')
        A('s_mov_b64 exec, -1')
        A.label(f'{nm}_nf')
        A(f's_branch {nm}_xq')
        A.label(f'{nm}_xe')
        A('s_mov_b32 s101, 40960')
        xsl()
        A.label(f'{nm}_xq')
        A('s_cmp_lt_u32 s2, 16'); A('s_cselect_b32 s30, 3, s3')
        A('s_cmp_lg_u32 s30, 3')
        A(f's_cbranch_scc1 {nm}_xp')
        for sg in range(10):
            if sg == 9:
                A('s_cmp_eq_u32 s100, 3')
                A(f's_cbranch_scc1 {nm}_xw')
            for q in range(4):
                A(f's_add_u32 s31, s101, {10240*q}')
                A(f's_add_u32 m0, s101, {3968*sg + 1024*q}')
                A(f'buffer_load_dwordx4 v{VXO if q & 1 else VXE}, s[12:15], s31 offen offset:{128*sg} lds')
        A.label(f'{nm}_xw')
        A.wait_vm()
        A.label(f'{nm}_xp')
        A('s_sub_u32 s30, s3, 2'); A('s_or_b32 s30, s30, s34')
        A('s_cmp_lg_u32 s30, 0')
        A(f's_cbranch_scc1 {nm}_st')
        A.label(f'{nm}_ec')
        A(f'buffer_load_dwordx2 {vr(E+8,2)}, off, s[8:11], s39 sc1')
        A.wait_vm()
        A(f'v_readfirstlane_b32 s33, v{E+8}')
        A(f'v_mov_b32 v{E+10}, v{E+9}')
        A(f's_sub_u32 s{S_BUD}, s{S_BUD}, 1')
        A(f's_cbranch_scc1 {nm}_ex')
        A(f's_cmp_lg_u32 s33, s{S_N}')
        A(f's_cbranch_scc1 {nm}_ec')
        A.label(f'{nm}_ex')
        A(f's_max_i32 s{S_BUD}, s{S_BUD}, 0')
        A('s_mov_b64 exec, 1')
        A(f'buffer_store_dwordx2 {vr(E+10,2)}, off, s[8:11], s36 sc1')
        A('s_mov_b64 exec, -1')
        A.label(f'{nm}_st')
        A(f'v_readfirstlane_b32 s{S_M}, v{E+10}')
        self.stats0()
        A('s_or_b32 s30, s38, s100')
        A('s_mov_b32 s100, 1')
        A('s_cmp_eq_u32 s30, 0')
        A(f's_cbranch_scc1 {nm}_xe')
        A('s_cmp_lg_u32 s3, 2')
        A(f's_cbranch_scc1 {nm}_go')
        A(f'v_lshlrev_b32 v{E+12}, 5, v0')
        def flchk(m):
            for k in (0, 2, 4, 6): A(f'v_xor_b32 v{E+k}, s{m}, v{E+k}')
            A(f'v_or3_b32 v{E}, v{E}, v{E+2}, v{E+4}'); A(f'v_or_b32 v{E}, v{E}, v{E+6}')
            A(f'v_cmp_ne_u32 vcc, 0, v{E}')
        A.label(f'{nm}_val')
        A(f'buffer_load_dwordx4 {vr(E,4)}, v{E+12}, s[8:11], s32 offen sc1')
        A(f'buffer_load_dwordx4 {vr(E+4,4)}, v{E+12}, s[8:11], s32 offen offset:16 sc1')
        A.wait_vm()
        flchk(S_M)
        A(f's_sub_u32 s{S_BUD}, s{S_BUD}, 1')
        A(f's_cbranch_scc1 {nm}_vx')
        A('s_nop 4')
        A(f's_cbranch_vccnz {nm}_val')
        A(f's_branch {nm}_vx')
        A.label(f'{nm}_mst'); A.vm = []
        A(f's_mov_b32 s30, {AR}'); A(f's_mov_b32 s31, {EC}')
        for k in range(4): A(f'v_mov_b32 v{E+17+2*k}, s{S_N}')
        A.label(f'{nm}_ml')
        A(f'buffer_load_dwordx4 {vr(E+8,4)}, v{L16}, s[8:11], s30 offen sc1')
        A(f'buffer_load_dwordx4 {vr(E,4)}, v{E+12}, s[8:11], s32 offen sc1')
        A(f'buffer_load_dwordx4 {vr(E+4,4)}, v{E+12}, s[8:11], s32 offen offset:16 sc1')
        A.wait_vm()
        for k in range(4): A(f'v_mov_b32 v{E+16+2*k}, v{E+8+k}')
        A(f'buffer_store_dwordx4 {vr(E+16,4)}, v{E+12}, s[8:11], s31 offen sc1')
        A(f'buffer_store_dwordx4 {vr(E+20,4)}, v{E+12}, s[8:11], s31 offen offset:16 sc1')
        flchk(S_N)
        A(f's_sub_u32 s{S_BUD}, s{S_BUD}, 1')
        A(f's_cbranch_scc1 {nm}_vx')
        A('s_nop 4')
        A(f's_cbranch_vccnz {nm}_ml')
        A.label(f'{nm}_vx')
        A(f's_max_i32 s{S_BUD}, s{S_BUD}, 0')
        A.label(f'{nm}_go')
        A('s_nop 4')
        A.wait_all()
        self.stamp('go')
        A('s_barrier')
    def xa_items(self, dst):
        return [f'v_and_b32 v{X1}, 31, v0', f'v_lshlrev_b32 v{X1}, 7, v{X1}',
                f'v_and_b32 v{X2}, 6, v0', f'v_bfe_u32 v{X3}, v0, 3, 1', f'v_lshrrev_b32 v{X4}, 5, v0',
                f'v_xor_b32 v{X2}, v{X2}, v{X3}', f'v_xor_b32 v{X2}, v{X2}, v{X4}',
                f'v_lshl_add_u32 v{dst}, v{X2}, 4, v{X1}'] + [f'v_xor_b32 v{dst+j}, {32*j}, v{dst}' for j in (1, 2, 3)]
    def stats0(self):
        A = self.A
        SA = TMP + 12; XB = TMP + 4
        for j in range(4): A(f'v_add_u32 v{XB+j}, s101, v{TMP+j}')
        for k in range(8): A(f'v_mov_b32 v{SA+k}, 0')
        def srd(s_): A(f'ds_read_b128 {vr(RING+4*(s_%8),4)}, v{XB+(s_&3)} offset:{4096*(s_>>2)}', tag=f'q{s_}')
        for s_ in range(7): srd(s_)
        for s_ in list(range(36, 40)) + list(range(36)):
            if s_ < 36:
                if s_ + 7 < 36: srd(s_ + 7)
                A.wait_lg(f'q{s_}'); src = RING + 4 * (s_ % 8)
            else: src = XS + 4 * (s_ - 36)
            for k in range(4): A(f'v_dot2c_f32_bf16 v{SA+k}, 0x3f803f80, v{src+k}')
            for k in range(4): A(f'v_dot2c_f32_bf16 v{SA+4+k}, v{src+k}, v{src+k}')
        A(f'v_add_f32 v{X1}, v{SA}, v{SA+1}'); A(f'v_add_f32 v{X2}, v{SA+2}, v{SA+3}')
        A(f'v_add_f32 v{X3}, v{SA+4}, v{SA+5}'); A(f'v_add_f32 v{X4}, v{SA+6}, v{SA+7}')
        A(f'v_add_f32 v{X1}, v{X1}, v{X2}'); A(f'v_add_f32 v{X3}, v{X3}, v{X4}')
        A(f'v_mov_b32 v{X2}, v{X1}'); A(f'v_mov_b32 v{X4}, v{X3}')
        A(f'v_permlane32_swap_b32 v{X1}, v{X2}'); A(f'v_permlane32_swap_b32 v{X3}, v{X4}')
        A(f'v_add_f32 v{X2}, v{X1}, v{X2}')
        A(f'v_add_f32 v{X3}, v{X3}, v{X4}')
        A(f'v_mul_f32 v{X1}, 0x3acccccd, v{X2}')
        A(f'v_fma_f32 v{X3}, -v{X1}, v{X2}, v{X3}')
        A(f'v_max_f32 v{X3}, 0, v{X3}')
        A(f'v_cvt_pk_bf16_f32 v{X5}, -v{X1}, -v{X1}')
        A('s_lshl_b32 s30, s100, 8')
        A(f'v_add_u32 v{X1}, s30, v{VSC}')
        st = self.stats_items()
        emit_items(A, st[st.index(f'v_mul_f32 v{X3}, 0x3acccccd, v{X3}'):])

    def setup0(self):
        it = []
        a = it.append
        a(f'v_bfe_u32 v{T0}, v0, 4, 1')
        a(f'v_lshrrev_b32 v{T1}, 5, v0')
        a(f'v_lshlrev_b32 v{T0}, 10, v{T0}')
        a(f'v_lshl_add_u32 v{T0}, v{T1}, 9, v{T0}')
        a(f'v_and_b32 v{T1}, 15, v0')
        a(f'v_lshl_add_u32 v{VSTP}, v{T1}, 3, v{T0}')
        a('s_and_b32 s30, s3, 1')
        a('s_lshl_b32 s30, s30, 8')
        a(f'v_lshlrev_b32 v{T1}, 4, v{T1}')
        a(f'v_add_u32 v{T1}, s30, v{T1}')
        a(f'v_lshrrev_b32 v{T0}, 4, v0')
        a(f'v_lshl_add_u32 v{VX}, v{T0}, 9, v{T1}')
        a(f'v_lshrrev_b32 v2, 5, v0')
        a(f'v_lshl_add_u32 v{T1}, v2, 9, v{T1}')
        a(f'v_and_b32 v{T0}, 1, v{T0}')
        a(f'v_lshl_add_u32 v{T1}, v{T0}, 3, v{T1}')
        a(f'v_add_u32 v{VX3}, 0x1000, v{T1}')
        return it

    def setup_addr(self):
        it = []
        a = it.append
        a(f'v_add_u32 v{DS1}, 0x10000, v{L16}')
        a(f'v_add_u32 v{DS2}, 0x20000, v{L16}')
        a(f'v_and_b32 v{T0}, 31, v0')
        a(f'v_lshrrev_b32 v{T1}, 5, v0')
        a(f'v_lshlrev_b32 v{VSC}, 3, v{T0}')
        a(f'v_add_u32 v{VSC}, {SC}, v{VSC}')
        a(f'v_mul_u32_u24 v{T0}, {RS}, v{T0}')
        a(f'v_lshl_add_u32 v{T0}, v{T1}, 6, v{T0}')
        a('s_and_b32 s30, s3, 1')
        a('s_lshl_b32 s30, s30, 7')
        a(f'v_add_u32 v{REC0}, s30, v{T0}')
        a('s_mul_i32 s30, s3, 9216')
        a(f's_add_u32 s30, s30, {PQ(0)}')
        a(f'v_add_u32 v{VPQ}, s30, v{T0}')
        a(f'v_lshrrev_b32 v{T0}, 2, v0')
        a(f'v_mul_u32_u24 v{T0}, {RS}, v{T0}')
        a('s_lshr_b32 s30, s3, 1')
        a('s_lshl_b32 s30, s30, 7')
        a(f'v_add_u32 v{T0}, s30, v{T0}')
        a(f'v_and_b32 v{T1}, 3, v0')
        for T, nch in (('B', 5), ('A', 3)):
            for mt, r in enumerate(TRA[T]):
                a(f'v_add_u32 v{X1}, {4*mt}, v{T1}')
                a(f'v_min_u32 v{X1}, {2*nch-1}, v{X1}')
                a(f'v_cmp_le_u32 vcc, {nch}, v{X1}')
                a(f'v_cndmask_b32 v{X2}, 0, {64-8*nch}, vcc')
                a(f'v_lshl_add_u32 v{X1}, v{X1}, 3, v{X2}')
                a(f'v_add_u32 v{r}, v{X1}, v{T0}')
        a(f'v_lshrrev_b32 v{X1}, 1, v{T1}')
        a(f'v_and_b32 v{X2}, 1, v{T1}')
        a(f'v_lshlrev_b32 v{X1}, 6, v{X1}')
        a(f'v_lshl_add_u32 v{X1}, v{X2}, 3, v{X1}')
        a(f'v_lshlrev_b32 v{X2}, 6, v{X2}')
        a('s_bitcmp1_b32 s3, 0')
        a('s_cselect_b64 vcc, -1, 0')
        a(f'v_cndmask_b32 v{X1}, v{X1}, v{X2}, vcc')
        a(f'v_add3_u32 v{TRB0}, v{X1}, v{T0}, 48')
        a(f'v_bfe_u32 v{X1}, v0, 3, 2')
        a(f'v_and_b32 v{X2}, 3, v0')
        a(f'v_lshl_add_u32 v{X1}, v{X1}, 2, v{X2}')
        a(f'v_bfe_u32 v{X2}, v0, 2, 1')
        a(f'v_mul_u32_u24 v{X2}, 10, v{X2}')
        a(f'v_add_u32 v{X2}, v{X2}, v{X1}')
        a(f'v_cmp_le_u32 vcc, 6, v{X2}')
        a(f'v_cndmask_b32 v{X3}, 0, 2, vcc')
        a(f'v_cmp_le_u32 vcc, 12, v{X2}')
        a(f'v_cndmask_b32 v{X4}, 0, 2, vcc')
        a(f'v_add3_u32 v{X2}, v{X2}, v{X3}, v{X4}')
        a(f'v_cmp_gt_u32 vcc, 10, v{X1}')
        a(f'v_cndmask_b32 v{X2}, 6, v{X2}, vcc')
        a(f'v_lshrrev_b32 v{X1}, 5, v0')
        a(f'v_lshrrev_b32 v{X3}, 3, v{X2}')
        a(f'v_lshl_add_u32 v{X1}, v{X3}, 1, v{X1}')
        a(f'v_and_b32 v{X2}, 7, v{X2}')
        a(f'v_lshlrev_b32 v{X2}, 3, v{X2}')
        a(f'v_mul_u32_u24 v{X3}, 0xc0, v{X1}')
        a(f'v_mul_u32_u24 v{X4}, 0x140, v{X1}')
        a(f'v_add_u32 v{VKA["A"]}, v{X3}, v{X2}')
        a(f'v_add_u32 v{VKA["B"]}, v{X4}, v{X2}')
        for k in range(4): a(f'v_mov_b32 v{SENT+k}, -1')
        a(f'v_mov_b32 v{VC+3}, 0x3f80')
        return it

    def stats_items(self):
        S = STR
        return [
        f'v_add_f32 v{X1}, v{S}, v{S+2}', f'v_add_f32 v{X2}, v{S+4}, v{S+6}',
        f'v_add_f32 v{X1}, v{X1}, v{X2}', f'v_mov_b32 v{X2}, v{X1}',
        f'v_add_f32 v{X3}, v{S+1}, v{S+3}',
        f'v_add_f32 v{X4}, v{S+5}, v{S+7}',
        f'v_permlane32_swap_b32 v{X1}, v{X2}',
        f'v_add_f32 v{X3}, v{X3}, v{X4}',
        f'v_add_f32 v{X1}, v{X1}, v{X2}',
        f'v_mul_f32 v{X1}, 0.125, v{X1}',
        f'v_sub_f32 v{S}, v{S}, v{X1}', f'v_sub_f32 v{S+2}, v{S+2}, v{X1}',
        f'v_sub_f32 v{S+4}, v{S+4}, v{X1}', f'v_sub_f32 v{S+6}, v{S+6}, v{X1}',
        f'v_mul_f32 v{X2}, v{S}, v{S}', f'v_fmac_f32 v{X2}, v{S+2}, v{S+2}',
        f'v_fmac_f32 v{X2}, v{S+4}, v{S+4}', f'v_fmac_f32 v{X2}, v{S+6}, v{S+6}',
        f'v_fmac_f32 v{X3}, 0x42a00000, v{X2}',
        f'v_mov_b32 v{X4}, v{X3}',
        f'v_cvt_pk_bf16_f32 v{X5}, -v{X1}, -v{X1}',
        f's_lshl_b32 s30, s3, 8',
        f'v_permlane32_swap_b32 v{X3}, v{X4}',
        f'v_add_u32 v{X1}, s30, v{VSC}',
        f'v_add_f32 v{X3}, v{X3}, v{X4}',
        f'v_mul_f32 v{X3}, 0x3acccccd, v{X3}',
        f'v_cvt_pk_bf16_f32 v{X3}, v{X3}, v{X3}',
        f'v_lshlrev_b32 v{X3}, 16, v{X3}',
        f'v_add_f32 v{X3}, 0x3727c5ac, v{X3}',
        f'v_cvt_pk_bf16_f32 v{X3}, v{X3}, v{X3}',
        f'v_lshlrev_b32 v{X3}, 16, v{X3}',
        f'v_sqrt_f32 v{X3}, v{X3}',
        f'v_cvt_pk_bf16_f32 v{X3}, v{X3}, v{X3}',
        f'v_lshlrev_b32 v{X3}, 16, v{X3}',
        f'v_rcp_f32 v{X6}, v{X3}',
        ('i', f'ds_write_b64 v{X1}, v[{X5}:{X6}]', 'sc')]
    def st_loads(self, L):
        return [f'buffer_load_dwordx2 {vr(STR+2*c,2)}, v{VSTP}, s[8:11], s31 offen offset:{128*c} sc1' for c in range(4)]
    def st_soff(self, L):
        return [f's_lshl_b32 s31, s{S_RG}, 13', f's_add_u32 s31, s31, s{S_W2K}', f's_add_u32 s31, s31, {ST(L)}']
    def xchunk(self, c):
        it = [f's_add_u32 m0, s{S_W1K}, {4096*c}']
        if c == 39: it.append(f's_min_u32 m0, m0, {158*1024}')
        it += [('i', f'buffer_load_dwordx4 v{L16}, s[12:15], m0 offen sc1 lds', f'x{c}')]
        if c == 39:
            it += [f's_mov_b32 s30, {159*1024}',
                   ('i', f'buffer_load_dwordx4 {vr(XL,4)}, v{L16}, s[12:15], s30 offen sc1', f'x{c}')]
        return it
    def wloads(self, T, s0, n):
        it = [f's_add_u32 s30, s29, {WF[T] + 1024*s0}']
        for k in range(n):
            it.append(('i', f'buffer_load_dwordx4 {wreg(T, s0+k)}, v{L16}, s[8:11], s30 offen offset:{1024*k}{self.wsc}', f'w{T}{s0}'))
        return it
    def wo_dma(self, f0, f1):
        gs = []
        f = f0
        while f < f1:
            it = [f's_add_u32 m0, s{S_W1K}, {WOL + 1024*f}']
            if f + 4 > f1: it.append(f's_min_u32 m0, m0, {WOL + 1024*(f1-1)}')
            it += [('i', f'buffer_load_dwordx4 v{L16}, s[16:19], m0 offen{self.wsc} lds', 'wo')]
            gs.append(it); f += 4
        return gs
    def scread(self, rb):
        b = rb & 1
        return [('i', f'ds_read_b64 v[{T0}:{T1}], v{VSC} offset:{256*rb}', 'scr'), ('wlg', 'scr'),
                f'v_mov_b32 v{NM}, v{T0}', f'v_mov_b32 v{NM+1}, v{T0}', f'v_mov_b32 v{NM+2}, v{T0}', f'v_mov_b32 v{NM+3}, v{T0}',
                f'v_mov_b32 v{VR[b]}, v{T1}', f'v_mul_f32 v{VRL[b]}, 0x3fb8aa3b, v{T1}']
    def epilogue(self, T, rb, ac=None, kadd=0):
        b = rb & 1
        if ac is None: ac = ACC + 16 * b
        R = VR[b]; RL = VRL[b]
        it = []
        a = it.append
        if kadd: a([f's_mov_b32 s31, {kadd}', 's_cmp_ge_u32 s3, 2', f's_cselect_b32 s30, {PQ(rb)-KREC[b]}, s31', f'v_add_u32 v{REC}, s30, v{REC0}'])
        else: a(['s_cmp_ge_u32 s3, 2', f's_cselect_b32 s30, {PQ(rb)-KREC[b]}, 0', f'v_add_u32 v{REC}, s30, v{REC0}'])
        KO = KREC[b]
        for k in range(10, 16): a(f'v_mul_f32 v{ac+k}, v{ac+k}, v{R}')
        for k in range(3): a(f'v_cvt_pk_bf16_f32 v{VC+k}, v{ac+10+2*k}, v{ac+11+2*k}')
        a(('i', f'ds_write_b128 v{REC}, {vr(VC,4)} offset:{KO+48}', 'rec'))
        if T == 'A':
            for b0, n in ((0, 4), (4, 4), (8, 2)):
                blk = [ac + b0 + k for k in range(n)]
                t = [TMP + 2 * k for k in range(n)]
                for x, tt in zip(blk, t): a(f'v_mul_f32 v{tt}, v{x}, v{RL}')
                for x, tt in zip(blk, t): a(f'v_max_f32 v{tt+1}, 0, v{x}')
                for x, tt in zip(blk, t): a(f'v_exp_f32_e64 v{tt}, v{tt} clamp')
                for x, tt in zip(blk, t): a(f'v_fma_f32 v{tt+1}, v{tt+1}, v{R}, s{S_EPS}')
                for x, tt in zip(blk, t): a(f'v_add_f32 v{tt}, v{tt}, v{tt+1}')
                for k in range(0, n, 2): a(f'v_cvt_pk_bf16_f32 v{PK+(b0+k)//2}, v{t[k]}, v{t[k+1]}')
                if b0 == 4: a(('i', f'ds_write_b128 v{REC}, {vr(PK,4)} offset:{KO}', 'rec'))
            a(f'v_mov_b32 v{PK+5}, 0')
            a(('i', f'ds_write_b64 v{REC}, {vr(PK+4,2)} offset:{KO+16}', 'rec'))
        else:
            s = [ac + k for k in range(10)]
            a(f'v_max3_f32 v{X1}, v{s[0]}, v{s[1]}, v{s[2]}')
            a(f'v_max3_f32 v{X2}, -v{s[0]}, -v{s[1]}, -v{s[2]}')
            for k in (3, 5, 7):
                a(f'v_max3_f32 v{X1}, v{X1}, v{s[k]}, v{s[k+1]}')
                a(f'v_max3_f32 v{X2}, v{X2}, -v{s[k]}, -v{s[k+1]}')
            a(f'v_max_f32 v{X1}, v{X1}, v{s[9]}')
            a(f'v_max_f32_e64 v{X2}, v{X2}, -v{s[9]}')
            a(f'v_permlane32_swap_b32 v{X1}, v{X2}')
            a(f'v_max_f32 v{X1}, v{X1}, v{X2}')
            a(f'v_mul_f32_e64 v{X1}, -v{X1}, v{RL}')
            a(f'v_mov_b32 v{X2}, v{X1}')
            a(f'v_permlane32_swap_b32 v{X1}, v{X2}')
            Pp = [TMP + k for k in range(10)]; N = [TMP + 10 + k for k in range(10)]
            prev = None
            def addblk(ks):
                for k in ks:
                    if k == 0: continue
                    if k == 1:
                        a(f'v_add_f32 v{X3}, v{Pp[0]}, v{Pp[1]}'); a(f'v_add_f32 v{X4}, v{N[0]}, v{N[1]}')
                    else:
                        a(f'v_add_f32 v{X3}, v{X3}, v{Pp[k]}'); a(f'v_add_f32 v{X4}, v{X4}, v{N[k]}')
            for ks in ((0, 1, 2, 3), (4, 5, 6, 7), (8, 9)):
                for k in ks:
                    a(f'v_fma_f32 v{Pp[k]}, v{s[k]}, v{RL}, v{X1}')
                    a(f'v_fma_f32 v{N[k]}, -v{s[k]}, v{RL}, v{X2}')
                for k in ks:
                    a(f'v_exp_f32 v{Pp[k]}, v{Pp[k]}')
                    a(f'v_exp_f32 v{N[k]}, v{N[k]}')
                if prev: addblk(prev)
                prev = ks
            addblk(prev)
            a(f'v_permlane32_swap_b32 v{X3}, v{X4}')
            a(f'v_add_f32 v{X3}, v{X3}, v{X4}')
            a(f'v_rcp_f32 v{X3}, v{X3}')
            a(f'v_mov_b32 v{X4}, v{X3}')
            a(f'v_permlane32_swap_b32 v{X3}, v{X4}')
            for half, (regs, sc) in enumerate(((Pp, X3), (N, X4))):
                for k in range(0, 10, 2):
                    a(f'v_mul_f32 v{regs[k]}, v{regs[k]}, v{sc}')
                    a(f'v_mul_f32 v{regs[k+1]}, v{regs[k+1]}, v{sc}')
                    a(f'v_cvt_pk_bf16_f32 v{PK+5*half+k//2}, v{regs[k]}, v{regs[k+1]}')
                    n = 5 * half + k // 2
                    if n == 3: a(('i', f'ds_write_b128 v{REC}, {vr(PK,4)} offset:{KO}', 'rec'))
                    if n == 7: a(('i', f'ds_write_b128 v{REC}, {vr(PK+4,4)} offset:{KO+16}', 'rec'))
                    if n == 9: a(('i', f'ds_write_b64 v{REC}, {vr(PK+8,2)} offset:{KO+32}', 'rec'))
        return it
    def kv(self, T, rb):
        b = rb & 1
        rd = [['s_bitcmp1_b32 s3, 0', f's_cselect_b32 s30, {PQ(rb)-KREC[b]}, 0', f'v_add_u32 v{TRB}, s30, v{TRB0}']]
        for jh in range(2):
            rd.append(('i', f'ds_read_b64_tr_b16 {vr(KFB+2*jh,2)}, v{TRB} offset:{KREC[b]+16*jh*RS}', 'kvr'))
        for mt, r in enumerate(TRA[T]):
            for jh in range(2):
                rd.append(('i', f'ds_read_b64_tr_b16 {vr(KFA+4*mt+2*jh,2)}, v{r} offset:{KREC[b]+16*jh*RS}', 'kvr'))
        mm = [('wlg', 'kvr')]
        for mt in range(len(TRA[T])):
            c = '0' if rb == 0 else vr(KC + 4 * mt, 4)
            mm.append(f'v_mfma_f32_16x16x32_bf16 {vr(KC+4*mt,4)}, {vr(KFA+4*mt,4)}, {vr(KFB,4)}, {c}')
        return rd, mm
    def kvp_addr(self, T):
        NG = 6 if T == 'A' else 10
        it = [f'v_bfe_u32 v{X1}, v0, 3, 1', f'v_lshrrev_b32 v{X2}, 4, v0',
              ['s_lshr_b32 s30, s3, 1', 's_mul_i32 s30, s30, 3', 's_and_b32 s31, s3, 1', 's_lshl_b32 s31, s31, 1',
               f'v_add_u32 v{X1}, s31, v{X1}', f'v_cmp_gt_u32 s[32:33], 3, v{X1}', f'v_add_u32 v{X1}, s30, v{X1}'],
              f'v_mul_u32_u24 v{X1}, {NG}, v{X1}', f'v_add_u32 v{X1}, v{X1}, v{X2}', f'v_mov_b32 v{X5}, {OOB}',
              f'v_and_b32 v{X3}, 7, v0', f'v_lshlrev_b32 v{X3}, 4, v{X3}', f'v_lshl_add_u32 v{X1}, v{X1}, 11, v{X3}',
              f'v_cndmask_b32 v{VKP[0]}, v{X5}, v{X1}, s[32:33]']
        nmt = len(TRA[T])
        for mt in range(1, nmt): it.append(f'v_add_u32 v{VKP[mt]}, {8192*mt}, v{VKP[0]}')
        it += [f'v_cmp_gt_u32 vcc, {NG-4*(nmt-1)}, v{X2}', f'v_cndmask_b32 v{VKP[nmt-1]}, v{X5}, v{VKP[nmt-1]}, vcc']
        return it
    def clears(self, L, lane=0, l16=L16, x5=X5, x6=X6, sent=SENT):
        n = L + 1
        g1 = [f'v_lshrrev_b32 v{x5}, 3, v{lane}', f'v_and_b32 v{x6}, 7, v{lane}', f'v_lshlrev_b32 v{x5}, 11, v{x5}',
              f'v_lshl_add_u32 v{x5}, v{x6}, 4, v{x5}',
              f's_mul_i32 s30, s{S_HP}, {KVPS(n)}', f's_lshl_b32 s31, s{S_RG}, 7', 's_add_u32 s30, s30, s31',
              's_lshl_b32 s31, s3, 15', 's_add_u32 s30, s30, s31', f's_add_u32 s30, s30, {KVP(n)}',
              ('i', f'buffer_store_dwordx4 {vr(sent,4)}, v{x5}, s[8:11], s30 offen sc1', 'clr'),
              's_add_u32 s30, s30, 16384',
              ('i', f'buffer_store_dwordx4 {vr(sent,4)}, v{x5}, s[8:11], s30 offen sc1', 'clr')]
        g2 = [f'v_lshrrev_b32 v{x5}, 3, v{lane}', f'v_lshlrev_b32 v{x5}, 17, v{x5}', f'v_lshl_add_u32 v{x5}, v{x6}, 4, v{x5}',
              f's_lshl_b32 s30, s{S_HP}, 13', f's_lshl_b32 s31, s{S_RG}, 7', 's_add_u32 s30, s30, s31',
              f's_add_u32 s30, s30, s{S_W2K}', f's_add_u32 s30, s30, {KVF(n)}',
              ('i', f'buffer_store_dwordx4 {vr(sent,4)}, v{x5}, s[8:11], s30 offen sc1', 'clr'),
              f's_lshl_b32 s31, s{S_RG}, 13', f's_add_u32 s31, s31, s{S_W2K}', f's_lshl_b32 s32, s{S_HP}, 7',
              's_add_u32 s31, s31, s32', f's_add_u32 s31, s31, {F2(n)}',
              f's_lshl_b32 s32, s{S_RBY}, 10', f's_lshl_b32 s33, s{S_CG}, 7', 's_add_u32 s32, s32, s33',
              f's_add_u32 s32, s32, {ST(n)}',
              ['s_mov_b64 exec, 0xff',
               ('i', f'buffer_store_dwordx4 {vr(sent,4)}, v{l16}, s[8:11], s32 offen sc1', 'clr'),
               's_mov_b64 exec, 0xf',
               ('i', f'buffer_store_dwordx4 {vr(sent,4)}, v{l16}, s[8:11], s31 offen sc1', 'clr'),
               's_mov_b64 exec, -1']]
        return [g1, g2]

    def front(self, L):
        A = self.A; o = self.opt
        T = 'AB'[L & 1]
        last = (L == self.nl - 1)
        PF = 7
        queue = []
        if True:
            emit_items(A, self.st_soff(L))
            self.poll(self.st_loads(L), [STR + k for k in range(8)], X1)
            self.stamp('st')
            A('s_barrier')
            for c in range(o['PRE']): emit_items(A, self.xchunk(c))
            emit_items(A, self.stats_items())
            queue = [self.xchunk(c) for c in range(o['PRE'], 40)]
        def xread(n):
            if n == 159: return []
            r, off = dsaddr(1024 * n)
            return [('i', f'ds_read_b128 {vr(RING+4*(n%8),4)}, v{r} offset:{off}', f'r{n}')]
        bar = o.get('BAR', {8: 16, 16: 24, 24: 32, 32: 40, 40: 56, 56: 72, 72: 88, 104: 128, 144: 160})
        bend = o.get('BEND', {1: 104, 2: 144})
        def xwait(q):
            if not q: return
            c = q // 4 - 1
            while any(isinstance(i, tuple) and i[2] == f'x{c}' for g in queue for i in g):
                emit_items(A, queue.pop(0))
            A.wait_vm(f'x{c}')
        A.wait_vm('x1'); A.wait_lg('sc'); self.stamp('x0'); A('s_barrier')
        for n in range(PF): emit_items(A, xread(n))
        gcount = 0
        for rb in range(4):
            ac = vr(ACC + 16 * (rb & 1), 16)
            fill = []
            if rb >= 2:
                rd, mm = self.kv(T, rb - 2)
                fill += rd
            if rb >= 1:
                ep = self.epilogue(T, rb - 1)
                if rb >= 2: ep = ep[:12] + mm + ep[12:]
                fill += ep
            scr = self.scread(rb)
            if rb == 0:
                fill += self.kvp_addr(T)
                if not last: fill += self.clears(L)
                fill += [self.srd_wo_items(T)]
            fill = scr[:1] + fill + scr[1:]
            if rb == 2: queue += self.wo_dma(0, 26)
            if rb == 3: queue += self.wo_dma(42, 66)
            rate = max(o['RMIN'], (cost(fill) * o['RX'] + o['DCOST'] * 40 / o['DMA_EVERY']) / 38); credit = -rate
            for s in range(41):
                n = 40 * rb + s
                if s < 40:
                    nn = n + PF
                    if nn in bar:
                        xwait(bar[nn]); A('s_barrier')
                        if nn == 104: queue += self.wo_dma(26, 42)
                        if nn == 144: queue += self.wo_dma(66, 82)
                    if nn < 160: emit_items(A, xread(nn))
                    if L == 0 and rb == 0 and s % 4 == 0: A.wait_vm(f'wA{s}')
                    if n == 159:
                        src = vr(XL, 4)
                    else:
                        if o['W2'] and n % 2 == 0 and n < 158: A.wait_lg(f'r{n+1}')
                        A.wait_lg(f'r{n}'); src = vr(RING + 4 * (n % 8), 4)
                    A(f'v_mfma_f32_32x32x16_bf16 {ac}, {wreg(T, s)}, {src}, {"0" if s == 0 else ac}')
                else:
                    emit_items(A, flat(fill)); fill = []
                    if L == 0 and rb == 0: A.wait_vm('wc')
                    A(f'v_mfma_f32_32x32x16_bf16 {ac}, {vr(WCR[T],4)}, {vr(NM,4)}, {ac}')
                    break
                gcount += 1
                credit += rate
                if queue and gcount % o['DMA_EVERY'] == 0:
                    g = queue.pop(0); emit_items(A, g); credit -= o['DCOST']
                if s >= 1:
                    while fill and credit >= 0.5 * cost(fill[0]):
                        it = fill.pop(0); p0 = A.pos; c0 = cost(it) - len(flat([it]))
                        emit_items(A, flat([it])); credit -= (A.pos - p0) + c0
            if rb >= 1:
                if rb in bend: xwait(bend[rb])
                if rb == 3:
                    for g in queue: emit_items(A, g)
                    queue = []
                    A.wait_vm('clr')
                A.wait_lg('rec'); A.wait_lg('kvr')
                self.stamp(f'b{rb}_')
                A('s_barrier')
        rd, mm = self.kv(T, 2)
        ep = self.epilogue(T, 3)
        if o.get('FINE'):
            self.stamp('ea'); emit_items(A, flat(rd)); self.stamp('eb'); emit_items(A, flat(ep[:11])); self.stamp('ec')
            h = 11 + (len(ep) - 11) // 2
            emit_items(A, flat(ep[11:h])); self.stamp('ed'); emit_items(A, flat(ep[h:])); self.stamp('ee'); emit_items(A, flat(mm)); self.stamp('ef')
            print(T, 'counts', len(flat(rd)), len(flat(ep[:11])), len(flat(ep[11:h])), len(flat(ep[h:])))
        else:
            emit_items(A, flat(rd + ep[:12] + mm + ep[12:]))
        A(f's_mul_i32 s34, s{S_HP}, {KVPS(L)}'); A(f's_add_u32 s34, s34, {KVP(L)}')
        A(f's_lshl_b32 s31, s{S_RG}, 7'); A('s_add_u32 s35, s34, s31')
        A(f'v_mov_b32 v{X5}, {OOB}')
        A.wait_lg()
        self.stamp('ep3_')
        A('s_barrier')
        rd, mm = self.kv(T, 3)
        emit_items(A, flat(rd + mm))
        for mt in range(len(TRA[T])):
            A(f'buffer_store_dwordx4 {vr(KC+4*mt,4)}, v{VKP[mt]}, s[8:11], s35 offen sc1')

    def front0(self):
        A = self.A; o = self.opt
        T = 'A'; L = 0
        FX = PK
        acc = [ACC, ACC + 16, 192, 208]
        A(f's_lshl_b32 s29, s{S_HP}, 2'); A('s_add_u32 s29, s29, s3')
        A('s_lshl_b32 s30, s29, 10'); A('s_mul_i32 s29, s29, 40960')
        A(f's_add_u32 s31, s30, {WC["A"]}'); A(f's_add_u32 s32, s30, {WC["B"]}')
        A(f'buffer_load_dwordx4 {vr(WCR["A"],4)}, v{L16}, s[8:11], s31 offen sc1', tag='wc')
        for k in range(8): emit_items(A, self.wloads('A', 4*k, 4))
        A(f's_mov_b32 s33, {3*40960}')
        for k in range(4):
            A(f'buffer_load_dwordx4 {vr(XL4+4*k,4)}, v{VXR}, s[12:15], s33 offen offset:{(36+k)*32}', tag='xl')
        for k in range(8, 10): emit_items(A, self.wloads('A', 4*k, 4))
        A(f'buffer_load_dwordx4 {vr(WCR["B"],4)}, v{L16}, s[8:11], s32 offen sc1', tag='wc2')
        A(f'v_and_b32 v{X1}, 15, v0'); A(f'v_lshlrev_b32 v{X2}, 3, v{X1}')
        A(f's_lshl_b32 s31, s{S_RG}, 7'); A(f's_add_u32 s31, s31, {FL}')
        A(f'buffer_load_dword v{FX}, v{X2}, s[8:11], s31 offen offset:4 sc1', tag='fx')
        A(f'v_mul_u32_u24 v{X1}, 1280, v{X1}'); A(f'v_lshrrev_b32 v{X2}, 4, v0')
        A(f'v_lshl_add_u32 v{X3}, v{X2}, 4, v{X1}'); A(f'v_lshl_add_u32 v{X4}, v{X2}, 3, v{X1}')
        A(f's_and_b32 s30, s{S_RBY}, 7'); A('s_mul_i32 s30, s30, 20480'); A(f's_mul_i32 s31, s{S_CG}, 160'); A('s_add_u32 s30, s30, s31')
        A(f'buffer_load_dwordx4 {vr(XOLD,4)}, v{X3}, s[12:15], s30 offen', tag='xo')
        A(f'buffer_load_dwordx4 {vr(XOLD+4,4)}, v{X3}, s[12:15], s30 offen offset:64', tag='xo')
        A(f'buffer_load_dwordx2 {vr(XOLD+8,2)}, v{X4}, s[12:15], s30 offen offset:128', tag='xo')
        if self.nl > 1:
            for g in self.clears(0): emit_items(A, flat(g))
        emit_items(A, flat(self.kvp_addr(T)) + self.srd_wo_items(T))
        for sgm in (1, 2):
            for j in range(4): A(f'v_add_u32 v{TMP+4*sgm+j}, {65536*sgm}, v{TMP+j}')
        NMx = TMP + 12
        for rb in range(4): A(f'ds_read_b32 v{NMx+rb}, v{VSC} offset:{256*rb}', tag='nm')
        order = [(s_, rb) for s_ in range(40) for rb in range(4) if not (rb == 3 and s_ >= 36)]
        slot = {k: i % 8 for i, k in enumerate(order)}
        def xread(i):
            if i >= len(order): return
            s_, rb = order[i]
            off = 40960 * rb + 4096 * (s_ >> 2)
            A(f'ds_read_b128 {vr(RING+4*(i%8),4)}, v{TMP+4*(off>>16)+(s_&3)} offset:{off & 0xffff}', tag=f'r{i}')
        for i in range(7): xread(i)
        A.wait_lg('nm')
        A.wait_vm('wc')
        self.stamp('x0')
        NB = [NM, KFA]
        for rb in range(4):
            for k in range(4): A(f'v_mov_b32 v{NB[rb&1]+k}, v{NMx+rb}')
            A(f'v_mfma_f32_32x32x16_bf16 {vr(acc[rb],16)}, {vr(WCR[T],4)}, {vr(NB[rb&1],4)}, 0')
        i = 0
        for s_ in range(40):
            if s_ % 4 == 0:
                A.wait_vm(f'wA{s_}')
                g = s_ // 4 - o.get('WBD', 1)
                if 0 <= g < 6 and self.nl > 1: emit_items(A, self.wloads('B', 4*g, 4))
            for rb in range(4):
                if rb == 3 and s_ >= 36: src = vr(XL4 + 4 * (s_ - 36), 4)
                else:
                    xread(i + 7)
                    A.wait_lg(f'r{i}'); src = vr(RING + 4 * (i % 8), 4); i += 1
                A(f'v_mfma_f32_32x32x16_bf16 {vr(acc[rb],16)}, {wreg(T, s_)}, {src}, {vr(acc[rb],16)}')
        def rread(rb):
            b = rb & 1
            return [('i', f'ds_read_b32 v{VR[b]}, v{VSC} offset:{256*rb+4}', 'scr'), ('wlg', 'scr'), f'v_mul_f32 v{VRL[b]}, 0x3fb8aa3b, v{VR[b]}']
        emit_items(A, rread(0) + rread(1))
        A.wait_vm('clr')
        A(f'v_cmp_ne_u32 vcc, s{S_XCC}, v{FX}')
        A('s_cmp_eq_u64 vcc, 0')
        A(f's_cselect_b32 s{S_SAME}, 1, 0')
        if o.get('FORCE_SLOW'): A(f's_mov_b32 s{S_SAME}, 0')
        self.stamp('m_')
        A('s_barrier')
        wq = self.wo_dma(0, 82)
        for rb in range(4):
            ep = self.epilogue(T, rb, ac=acc[rb], kadd=KR2 if rb >= 2 else 0)
            if rb < 2: ep += rread(rb + 2)
            for k, it in enumerate(ep):
                emit_items(A, flat([it]))
                if wq and k % o.get('WOE', 6) == 3: emit_items(A, wq.pop(0))
        for g in wq: emit_items(A, g)
        if self.nl > 1 and o.get('WB2', 0) == 0:
            for g in range(6, 10): emit_items(A, self.wloads('B', 4*g, 4))
        A(f's_mul_i32 s34, s{S_HP}, {KVPS(L)}'); A(f's_add_u32 s34, s34, {KVP(L)}')
        A(f's_lshl_b32 s31, s{S_RG}, 7'); A('s_add_u32 s35, s34, s31')
        A(f'v_mov_b32 v{X5}, {OOB}')
        TB = TMP; TA2 = TMP + 4; F = ACC
        A(f's_mov_b32 s31, {KR2}')
        A('s_bitcmp1_b32 s3, 0')
        for rb in range(4):
            A(f's_cselect_b32 s30, {PQ(rb)-KREC[rb&1]}, {"s31" if rb >= 2 else "0"}')
            A(f'v_add_u32 v{TB+rb}, s30, v{TRB0}')
        for mt in range(2): A(f'v_add_u32 v{TA2+mt}, s31, v{TRA[T][mt]}')
        A.wait_lg()
        self.stamp('ep3_')
        A('s_barrier')
        for rb in range(4):
            f = F + 12 * rb
            for jh in range(2):
                A(f'ds_read_b64_tr_b16 {vr(f+2*jh,2)}, v{TB+rb} offset:{KREC[rb&1]+16*jh*RS}', tag=f'kv{rb}')
            for mt in range(2):
                r = TRA[T][mt] if rb < 2 else TA2 + mt
                for jh in range(2):
                    A(f'ds_read_b64_tr_b16 {vr(f+4+4*mt+2*jh,2)}, v{r} offset:{KREC[rb&1]+16*jh*RS}', tag=f'kv{rb}')
        for rb in range(4):
            f = F + 12 * rb
            A.wait_lg(f'kv{rb}')
            for mt in range(2):
                c = '0' if rb == 0 else vr(KC + 4 * mt, 4)
                A(f'v_mfma_f32_16x16x32_bf16 {vr(KC+4*mt,4)}, {vr(f+4+4*mt,4)}, {vr(f,4)}, {c}')
        for mt in range(2):
            A(f'buffer_store_dwordx4 {vr(KC+4*mt,4)}, v{VKP[mt]}, s[8:11], s35 offen sc1')

    def layer(self, L):
        A = self.A; o = self.opt
        self.L = L
        T = 'AB'[L & 1]
        NG = 6 if T == 'A' else 10
        NR = 6 * NG
        last = (L == self.nl - 1)
        final = (L == 3)
        PF = 7
        if L == 0: self.front0()
        else: self.front(L)
        self.stamp('kvp')
        wo1 = 82 if L == 0 else o['WO1']
        for g in self.wo_dma(82, wo1): emit_items(A, g)
        QF = RING; KF = TMP; RD = 104; GQ = 136
        nks = 3 if T == 'B' else 2
        for hd in range(2):
            for ks in range(nks):
                q = QF + 12 * hd + 4 * ks
                if ks < nks - 1:
                    A(f'ds_read_b128 {vr(q,4)}, v{VPQ} offset:{128*hd+16*ks}', tag='qf')
                else:
                    A(f'ds_read_b64 {vr(q,2)}, v{VPQ} offset:{128*hd+16*ks}', tag='qf')
                    A(f'v_mov_b32 v{q+2}, 0'); A(f'v_mov_b32 v{q+3}, 0')
        A('s_lshl_b32 s30, s3, 4'); A(f's_add_u32 s30, s30, s{S_RG}')
        A('s_lshl_b32 s31, s30, 11'); A('s_add_u32 s34, s34, s31')
        A(f's_lshl_b32 s35, s{S_HP}, 13'); A(f's_add_u32 s35, s35, {KVF(L)}')
        A('s_lshl_b32 s31, s30, 7'); A('s_add_u32 s36, s35, s31')
        VO = PK
        A(f'v_and_b32 v{X1}, 7, v0'); A(f'v_lshrrev_b32 v{X2}, 5, v0')
        A(f'v_lshlrev_b32 v{X1}, 3, v{X1}'); A(f'v_lshl_add_u32 v{X1}, v{X2}, 2, v{X1}')
        A(f'v_bfe_u32 v{X2}, v0, 3, 2'); A(f'v_lshl_add_u32 v{VO}, v{X2}, 17, v{X1}')
        A(f'v_add_u32 v{VO+3}, {4*KVC}, v{VO}')
        A(f'v_lshrrev_b32 v{X1}, 2, v0'); A(f'v_and_b32 v{X2}, 3, v0'); A(f'v_lshlrev_b32 v{X2}, 4, v{X2}')
        A(f'v_lshl_add_u32 v{X1}, v{X1}, 7, v{X2}')
        A(f'v_cmp_gt_u32 vcc, {NR}, v0')
        A(f'v_cndmask_b32 v{VO+1}, v{X5}, v{X1}, vcc')
        A(f's_mul_i32 s31, s3, {16*NR}')
        A('s_add_u32 s35, s35, s31'); A('s_add_u32 s35, s35, s31')
        A(f's_lshr_b32 s32, s{S_RG}, 1'); A('s_lshl_b32 s32, s32, 17'); A('s_add_u32 s35, s35, s32')
        A(f'v_add_u32 v{X1}, s31, v{L16}'); A(f'v_add_u32 v{X2}, 0x1000, v{L16}')
        A(f'v_cndmask_b32 v{VO+2}, v{X2}, v{X1}, vcc')
        for hd in range(2):
            k = KF + 12 * hd + 4 * (nks - 1)
            A(f'v_mov_b32 v{k+2}, 0'); A(f'v_mov_b32 v{k+3}, 0')
        lsk = self.lab('nored')
        A(f's_cmp_ge_u32 s30, {NR}')
        A(f's_cbranch_scc1 {lsk}')
        self.poll([f'buffer_load_dwordx4 {vr(RD,4)}, v{L16}, s[8:11], s34 offen sc1',
                   f'buffer_load_dwordx4 {vr(RD+4,4)}, v{L16}, s[8:11], s34 offen offset:1024 sc1'], [RD + k for k in range(8)], X1, sleep=o.get('SL1', 0), pre=o.get('PRE1', 0))
        for k in range(4): A(f'v_add_f32 v{RD+k}, v{RD+k}, v{RD+4+k}')
        A(f'v_permlane32_swap_b32 v{RD}, v{RD+2}')
        A(f'v_permlane32_swap_b32 v{RD+1}, v{RD+3}')
        A(f'v_add_f32 v{RD}, v{RD}, v{RD+2}')
        A(f'v_add_f32 v{RD+1}, v{RD+1}, v{RD+3}')
        A(f'v_add_f32_dpp v{RD+2}, v{RD}, v{RD} row_ror:8 row_mask:0xf bank_mask:0xf')
        A(f'v_add_f32_dpp v{RD+3}, v{RD+1}, v{RD+1} row_ror:8 row_mask:0xf bank_mask:0xf')
        A(f'v_mov_b32 v{RD}, v{RD+2}'); A(f'v_mov_b32 v{RD+1}, v{RD+3}')
        A(f'v_permlane16_swap_b32 v{RD}, v{RD+2}')
        A(f'v_permlane16_swap_b32 v{RD+1}, v{RD+3}')
        A(f'v_add_f32 v{RD}, v{RD}, v{RD+2}')
        A(f'v_add_f32 v{RD+1}, v{RD+1}, v{RD+3}')
        A(f'v_cvt_pk_bf16_f32 v{RD}, v{RD}, v{RD+1}')
        A(f'buffer_store_dword v{RD}, v{VO}, s[8:11], s36 offen sc1')
        A(f'buffer_store_dword v{RD}, v{VO+3}, s[8:11], s36 offen sc1')
        A.label(lsk)
        self.stamp('red')
        if o.get('RBAR', 1): A('s_barrier')
        for g in self.wo_dma(wo1, 100): emit_items(A, g)
        self.poll([f'buffer_load_dwordx4 {vr(RD+4,4)}, v{VO+1}, s[8:11], s35 offen sc1'], [RD + 4 + k for k in range(4)], X1, sleep=o.get('SL2', 0), pre=o.get('PRE2', 0))
        A(f'ds_write_b128 v{VO+2}, {vr(RD+4,4)}')
        A(f'v_bfe_u32 v{X1}, v0, 4, 1'); A(f'v_mul_u32_u24 v{X1}, 20480, v{X1}')
        A(f'v_and_b32 v{X2}, 15, v0'); A(f'v_lshl_add_u32 v{X1}, v{X2}, 4, v{X1}')
        A(f'v_lshrrev_b32 v{X2}, 5, v0')
        A(f'v_lshl_add_u32 v{VO}, v{X2}, 8, v{X1}')
        A(f'v_lshl_add_u32 v{VO+1}, v{X2}, 3, v{X1}')
        A.wait_lg()
        self.stamp('kvf')
        A('s_barrier')
        for hd in range(2):
            for ks in range(nks):
                k = KF + 12 * hd + 4 * ks
                o8 = 192 * NG * hd + 128 * ks
                A(f'ds_read_b64 {vr(k,2)}, v{VKA[T]} offset:{o8}', tag=f'kf{hd}{ks}')
                if ks < nks - 1:
                    A(f'ds_read_b64 {vr(k+2,2)}, v{VKA[T]} offset:{o8+64}', tag=f'kf{hd}{ks}')
        A(f's_lshl_b32 s30, s{S_RG}, 2'); A('s_add_u32 s30, s30, s3')
        A('s_mul_i32 s31, s30, 40960'); A(f's_mul_i32 s32, s{S_HP}, 1280'); A('s_add_u32 s31, s31, s32')
        A(f's_add_u32 s31, s31, {O(L)}')
        A('s_lshl_b32 s30, s30, 11'); A(f's_lshl_b32 s32, s{S_HP}, 7'); A('s_add_u32 s30, s30, s32')
        A(f's_add_u32 s30, s30, {F2(L)}')
        for ks in range(nks):
            for hd in range(2):
                d = vr(ACC + 16 * hd, 16)
                A.wait_lg(f'kf{hd}{ks}')
                A(f'v_mfma_f32_32x32x16_bf16 {d}, {vr(KF+12*hd+4*ks,4)}, {vr(QF+12*hd+4*ks,4)}, {"0" if ks == 0 else d}')
        OPK = 140
        for hd in range(2):
            d = ACC + 16 * hd
            A(f'v_add_f32 v{d+10}, s{S_EPS}, v{d+10}')
            A(f'v_rcp_f32 v{d+10}, v{d+10}')
            A(f'v_mov_b32 v{d+11}, v{d+10}')
            for k in range(0, 10, 2):
                A(f'v_pk_mul_f32 {vr(d+k,2)}, {vr(d+k,2)}, {vr(d+10,2)}')
            for k in range(5):
                dst = OPK + 4 * hd + k if k < 4 else OPK + 8 + hd
                A(f'v_cvt_pk_bf16_f32 v{dst}, v{d+2*k}, v{d+2*k+1}')
        self.fstore([f'buffer_store_dwordx4 {vr(OPK,4)}, v{VO}, s[8:11], s31 offen',
                     f'buffer_store_dwordx4 {vr(OPK+4,4)}, v{VO}, s[8:11], s31 offen offset:512',
                     f'buffer_store_dwordx2 {vr(OPK+8,2)}, v{VO+1}, s[8:11], s31 offen offset:1024'])
        OF = 48; WR = 128; YA = 168
        def woread(f):
            r, off = dsaddr(WOL + 1024 * f)
            return ('i', f'ds_read_b128 {vr(WR+4*(f%10),4)}, v{r} offset:{off}', f'wr{f}')
        for k in range(10):
            A(f'v_lshlrev_b32 v{YA+2*k}, 16, v{XOLD+k}')
            A(f'v_and_b32 v{YA+2*k+1}, 0xffff0000, v{XOLD+k}')
        A(f'v_and_b32 v{T0}, 15, v0'); A(f'v_lshlrev_b32 v{T0}, 7, v{T0}')
        A(f's_lshr_b32 s32, s{S_RBY}, 1'); A('s_lshl_b32 s32, s32, 11'); A(f's_add_u32 s32, s32, {F2(L)}')
        A(f's_mul_i32 s33, s{S_RBY}, 20480'); A(f's_add_u32 s33, s33, {O(L)}')
        A.wait_vm()
        A('s_mov_b64 exec, 1')
        self.fstore([f'buffer_store_dword v{L16}, off, s[8:11], s30'])
        A('s_mov_b64 exec, -1')
        self.stamp('f2')
        for f in range(9): emit_items(A, [woread(f)])
        self.poll([f'buffer_load_dword v{T1}, v{T0}, s[8:11], s32 offen sc1'], [T1], None)
        self.stamp('e2')
        for kk in range(20):
            if kk % 4 == 0 and kk: A('s_add_u32 s33, s33, 4096')
            A(f'buffer_load_dwordx4 {vr(OF+4*kk,4)}, v{L16}, s[8:11], s33 offen offset:{1024*(kk%4)} sc1', tag=f'o{kk}')
        if final:
            A('s_mov_b32 s16, s6'); A('s_and_b32 s17, s7, 0xffff'); A(f's_mov_b32 s18, {2048*640*2}')
            A(f'v_and_b32 v{T0}, 15, v0'); A(f'v_mul_u32_u24 v{T0}, 1280, v{T0}'); A(f'v_lshrrev_b32 v{T1}, 4, v0')
            A(f'v_lshl_add_u32 v{VR[0]}, v{T1}, 4, v{T0}'); A(f'v_lshl_add_u32 v{VR[1]}, v{T1}, 3, v{T0}')
            A(f's_mul_i32 s30, s{S_RBY}, 20480'); A(f's_mul_i32 s31, s{S_CG}, 160'); A('s_add_u32 s30, s30, s31')
        else:
            if DBG[0] or L == 0: self.srd_x(L + 1)
            A(f's_bfe_u32 s30, s{S_RBY}, 0x20001'); A('s_mul_i32 s30, s30, 40960'); A(f's_mul_i32 s31, s{S_CG}, 5120')
            A('s_add_u32 s30, s30, s31')
            A(f's_lshl_b32 s31, s{S_RBY}, 10'); A(f's_lshl_b32 s32, s{S_CG}, 7'); A('s_add_u32 s31, s31, s32')
            A(f's_add_u32 s31, s31, {ST(L+1)}')
            A(f'v_lshlrev_b32 v{T0}, 3, v0')
        for kk in range(20):
            A.wait_vm(f'o{kk}')
            if kk == 0: self.stamp('o0_')
            for mt in range(5):
                f = 5 * kk + mt
                if f + 9 < 100: emit_items(A, [woread(f + 9)])
                A.wait_lg(f'wr{f}')
                A(f'v_mfma_f32_16x16x32_bf16 {vr(YA+4*mt,4)}, {vr(WR+4*(f%10),4)}, {vr(OF+4*kk,4)}, {vr(YA+4*mt,4)}')
        self.stamp('y')
        for k in range(10):
            A(f'v_cvt_pk_bf16_f32 v{XOLD+k}, v{YA+2*k}, v{YA+2*k+1}')
        if final:
            A(f'buffer_store_dwordx4 {vr(XOLD,4)}, v{VR[0]}, s[16:19], s30 offen')
            A(f'buffer_store_dwordx4 {vr(XOLD+4,4)}, v{VR[0]}, s[16:19], s30 offen offset:64')
            A(f'buffer_store_dwordx2 {vr(XOLD+8,2)}, v{VR[1]}, s[16:19], s30 offen offset:128')
            return
        self.fstore([f'buffer_store_dwordx4 {vr(XOLD,4)}, v{VX}, s[12:15], s30 offen',
                     f'buffer_store_dwordx4 {vr(XOLD+4,4)}, v{VX}, s[12:15], s30 offen offset:2048',
                     f'buffer_store_dwordx2 {vr(XOLD+8,2)}, v{VX3}, s[12:15], s30 offen'])
        U = OF; a = OF + 20; b = OF + 22; c = OF + 24
        for k in range(10):
            A(f'v_lshlrev_b32 v{U+2*k}, 16, v{XOLD+k}')
            A(f'v_and_b32 v{U+2*k+1}, 0xffff0000, v{XOLD+k}')
        A(f'v_pk_add_f32 {vr(a,2)}, {vr(U,2)}, {vr(U+2,2)}')
        A(f'v_pk_add_f32 {vr(b,2)}, {vr(U+4,2)}, {vr(U+6,2)}')
        for k in range(4, 10, 2):
            A(f'v_pk_add_f32 {vr(a,2)}, {vr(a,2)}, {vr(U+2*k,2)}')
            A(f'v_pk_add_f32 {vr(b,2)}, {vr(b,2)}, {vr(U+2*k+2,2)}')
        A(f'v_pk_add_f32 {vr(a,2)}, {vr(a,2)}, {vr(b,2)}')
        def allsum(x, y):
            A(f'v_mov_b32 v{y}, v{x}')
            A(f'v_permlane16_swap_b32 v{x}, v{y}')
            A(f'v_add_f32 v{x}, v{x}, v{y}')
            A(f'v_mov_b32 v{y}, v{x}')
            A(f'v_permlane32_swap_b32 v{x}, v{y}')
            A(f'v_add_f32 v{x}, v{x}, v{y}')
        A(f'v_add_f32 v{a}, v{a}, v{a+1}')
        allsum(a, a + 1)
        A(f'v_mul_f32 v{a}, 0x3c4ccccd, v{a}')
        A(f'v_mul_f32 v{b}, -1.0, v{a}')
        A(f'v_mul_f32 v{b+1}, -1.0, v{a}')
        for k in range(10):
            A(f'v_pk_add_f32 {vr(U+2*k,2)}, {vr(U+2*k,2)}, {vr(b,2)}')
        A(f'v_pk_mul_f32 {vr(b,2)}, {vr(U,2)}, {vr(U,2)}')
        A(f'v_pk_mul_f32 {vr(c,2)}, {vr(U+2,2)}, {vr(U+2,2)}')
        for k in range(2, 10, 2):
            A(f'v_pk_fma_f32 {vr(b,2)}, {vr(U+2*k,2)}, {vr(U+2*k,2)}, {vr(b,2)}')
            A(f'v_pk_fma_f32 {vr(c,2)}, {vr(U+2*k+2,2)}, {vr(U+2*k+2,2)}, {vr(c,2)}')
        A(f'v_pk_add_f32 {vr(b,2)}, {vr(b,2)}, {vr(c,2)}')
        A(f'v_add_f32 v{a+1}, v{b}, v{b+1}')
        allsum(a + 1, b)
        A(f'v_mov_b32 v{VC+3}, 0x3f80')
        for k in range(4): A(f'v_mov_b32 v{SENT+k}, -1')
        A.wait_vm()
        A('s_mov_b64 exec, 0xffff')
        self.fstore([f'buffer_store_dwordx2 {vr(a,2)}, v{T0}, s[8:11], s31 offen'])
        A('s_mov_b64 exec, -1')
        self.stamp('xs')

    def gen(self):
        self.prologue()
        for L in range(self.nl): self.layer(L)
        A = self.A
        A.prof_end()
        A.label(f'{self.name}_END')
        A('s_endpgm')
        return A.text()

def make(path, prof=False, nl=4, dbg=False, sl=(0, 1, 2, 3), opt=None):
    import gen, json, emit
    DBG[0] = dbg
    p = P('pk', prof=1 if prof else None, nl=nl, stamp_layers=sl, opt=opt)
    ks = [('pk_kernel', p.gen(), 512, 256)]
    ls = [('pk_kernel', 256, P_LDS)]
    gen.build(ks, ls, path)
    if prof: json.dump(emit.PROF_NAMES, open(path + '.names', 'w'))
    print('nops', p.A.nops, 'lines', len(p.A.lines))

if __name__ == '__main__':
    import sys
    kw = eval('dict(' + (sys.argv[2] if len(sys.argv) > 2 else '') + ')')
    make(sys.argv[1], **kw)
```

```python
import re
from emit import *
from lay2 import *
LB = 122880
SM = {4: 64, 5: 65, 6: 66, 7: 67, 8: 68, 9: 69, 12: 72, 13: 73, 14: 74, 15: 75, 16: 76, 17: 77,
      24: 8, 25: 9, 26: 10, 27: 11, 28: 84, 29: 85, 30: 86, 31: 87, 32: 88, 33: 89, 34: 90, 35: 91,
      36: 92, 37: 93, 38: 94, 39: 95, 40: 96, 41: 97, 42: 30, 43: 31, 44: 32, 45: 33, 46: 34, 47: 35, 48: 98, 49: 99,
      2: 82, 3: 3}
def ren(t):
    def f(m):
        if m.group(1) is not None: return f's{SM[int(m.group(1))]}'
        a, b = int(m.group(2)), int(m.group(3))
        assert SM[b] - SM[a] == b - a
        return f's[{SM[a]}:{SM[b]}]'
    return re.sub(r'\bs(\d+)\b|\bs\[(\d+):(\d+)\]', f, t)

def part_a(A0, join, hookE, hookX):
    A = lambda t, tag=None: A0(ren(t), tag=tag)
    A('s_mov_b32 s28, s12')
    A('s_and_b32 s29, s13, 0xffff')
    A(f's_mov_b32 s30, {640*1920*2}')
    A('s_mov_b32 s31, 0x00020000')
    A('s_mov_b32 s32, s14'); A('s_and_b32 s33, s15, 0xffff'); A(f's_mov_b32 s34, {32*400*2}'); A('s_mov_b32 s35, 0x00020000')
    A('s_mov_b32 s37, s2')
    A('s_mul_i32 s38, s37, 205')
    A('s_lshr_b32 s38, s38, 10')
    A('s_mul_i32 s39, s38, 5')
    A('s_sub_u32 s39, s37, s39')
    A('v_and_b32 v3, 31, v1')
    A('v_lshrrev_b32 v4, 5, v1')
    A('v_and_b32 v5, 0x13, v3')
    A('v_bfe_u32 v6, v3, 2, 1')
    A('v_lshl_or_b32 v5, v6, 3, v5')
    A('v_bfe_u32 v6, v3, 3, 1')
    A('v_lshl_or_b32 v5, v6, 2, v5')
    A('s_lshl_b32 s40, s39, 2')
    A('s_add_u32 s40, s40, s3')
    A('s_lshl_b32 s41, s40, 5')
    A('v_add_u32 v5, s41, v5')
    A('v_mul_u32_u24 v5, 3840, v5')
    A('v_lshl_add_u32 v6, v4, 4, v5')
    def off(cc):
        part = cc // 5
        base = [1280, 2560, 0][part]
        return base + 16 * (cc % 5)
    A(f'v_mul_u32_u24 v7, {off(5)-off(4)}, v4')
    A('v_add_u32 v7, v7, v5')
    A('s_mul_i32 s42, s38, 80')
    A('s_mul_i32 s43, s38, 1600')
    A('v_lshlrev_b32 v8, 1, v0')
    for rr in range(4):
        A(f'buffer_load_ushort v{48+rr}, v8, s[32:35], s43 offen offset:{512*rr}', tag='wp')
    for u in range(8):
        va = 'v7' if u == 2 else ('v5' if u == 7 else 'v6')
        A(f'buffer_load_dwordx4 {vr(16+4*u,4)}, {va}, s[28:31], s42 offen offset:{off(2*u)}', tag='wa')
    A0.fstamp('p10')
    hookE()
    A('v_lshlrev_b32 v9, 4, v0')
    A(f'v_add_u32 v9, {LB}, v9')
    for k in range(4): A(f'v_mov_b32 v{52+k}, 0')
    for k in range(9):
        A(f'ds_write_b128 v9, v[52:55] offset:{4096*k}')
    A('v_bfe_u32 v10, v0, 5, 1')
    A('v_bfe_u32 v11, v0, 3, 2')
    A('v_and_b32 v12, 3, v0')
    A('v_lshl_add_u32 v12, v11, 2, v12')
    A('v_bfe_u32 v13, v0, 6, 1')
    A('v_bfe_u32 v14, v0, 2, 1')
    A('v_mul_u32_u24 v15, 80, v13')
    A('v_mul_u32_u24 v57, 10, v14')
    A('v_add_u32 v15, v15, v57')
    A('v_mul_u32_u24 v57, 6, v14')
    A('v_lshl_add_u32 v58, v14, 2, 12')
    A('v_cmp_eq_u32 vcc, 1, v13')
    A('v_cndmask_b32 v57, v57, v58, vcc')
    A('v_add_u32 v57, 30, v57')
    A('v_cmp_gt_u32 s[46:47], 10, v12')
    A('v_cndmask_b32 v15, v57, v15, s[46:47]')
    A('v_mul_u32_u24 v57, 20, v10')
    A('v_add3_u32 v14, v15, v57, v12')
    A('v_mul_u32_u24 v15, 272, v0')
    A('v_lshl_add_u32 v15, v14, 1, v15')
    A(f'v_add_u32 v15, {LB}, v15')
    A('v_lshl_add_u32 v57, v13, 1, v12')
    A('v_cmp_gt_u32 s[44:45], 16, v57')
    A('v_cmp_gt_u32 vcc, 0x80, v0')
    A('s_not_b64 s[46:47], s[46:47]')
    A('s_and_b64 s[44:45], s[44:45], vcc')
    A('s_and_b64 s[44:45], s[44:45], s[46:47]')
    A('v_mov_b32 v56, 0x3f80')
    A0.wait_lg()
    A('s_barrier')
    A('s_mov_b64 exec, s[44:45]')
    A('ds_write_b16 v15, v56')
    A('s_mov_b64 exec, -1')
    A0.fstamp('p20')
    hookX()
    A0.fstamp('p30')
    A0.wait_vm('wp')
    for rr in range(4):
        A(f'v_add_u32 v10, {256*rr}, v0')
        A('v_cmp_le_u32 vcc, 400, v10')
        A('v_cndmask_b32 v11, 0, 1, vcc')
        A('v_mul_u32_u24 v12, 400, v11')
        A('v_sub_u32 v12, v10, v12')
        A('v_mul_u32_u24 v13, 205, v12')
        A('v_lshrrev_b32 v13, 12, v13')
        A('v_mul_u32_u24 v14, 20, v13')
        A('v_sub_u32 v14, v12, v14')
        A('v_mul_u32_u24 v15, 20, v11')
        A('v_add_u32 v15, v15, v13')
        if rr == 3:
            A('v_cmp_gt_u32 vcc, 800, v10')
            A('s_mov_b64 exec, vcc')
        A('v_cmp_le_u32 s[46:47], 10, v14')
        A('v_cndmask_b32 v58, 0, 1, s[46:47]')
        A('v_mul_u32_u24 v57, 10, v58')
        A('v_sub_u32 v57, v14, v57')
        A('v_lshrrev_b32 v59, 2, v57')
        A('v_and_b32 v57, 3, v57')
        A('v_lshl_add_u32 v57, v59, 3, v57')
        A('v_lshl_add_u32 v57, v58, 2, v57')
        A('v_lshl_add_u32 v57, v11, 5, v57')
        A('v_mul_u32_u24 v57, 272, v57')
        A('v_lshl_add_u32 v57, v15, 1, v57')
        A(f'v_add_u32 v57, {LB}, v57')
        A(f'ds_write_b16 v57, v{48+rr}')
        A(f'ds_write_b16 v57, v{48+rr} offset:{160+64*272}')
        if rr == 3:
            A('s_mov_b64 exec, -1')
    A('v_mul_u32_u24 v9, 272, v3')
    A('v_lshl_add_u32 v9, v4, 4, v9')
    A(f'v_add_u32 v9, {LB}, v9')
    A0.wait_lg()
    A('s_barrier')
    need = {0: [0, 1, 2, 3], 1: [1, 2, 3, 4], 2: [3, 5, 6], 3: [4, 6, 7]}
    lst = [(t, u) for t in range(4) for u in need[t]]
    for n, (t, u) in enumerate(lst):
        A(f'ds_read_b128 {vr(128+4*n,4)}, v9 offset:{8704*t+32*u}', tag=f'b{n}')
    A('s_lshl_b32 s43, s38, 2')
    A('s_mul_i32 s43, s43, 40')
    A('s_lshl_b32 s44, s40, 1')
    A('s_add_u32 s43, s43, s44')
    A('s_lshl_b32 s43, s43, 10')
    A(f's_add_u32 s43, s43, {WF["B"]}')
    A('v_lshlrev_b32 v8, 4, v1')
    A('v_lshrrev_b32 v10, 5, v0')
    A('v_lshlrev_b32 v10, 9, v10')
    A('v_lshl_add_u32 v10, v3, 2, v10')
    A(f'v_add_u32 v10, {LB}, v10')
    A0.fstamp('p40')
    A0.wait_vm('wa')
    A0.fstamp('p50')
    for n, (t, u) in enumerate(lst):
        A0.wait_lg(f'b{n}')
        c = '0' if u == need[t][0] else vr(64+16*t, 16)
        A(f'v_mfma_f32_32x32x16_bf16 {vr(64+16*t,16)}, {vr(16+4*u,4)}, {vr(128+4*n,4)}, {c}')
    for t in range(4):
        pk = 200 + 8 * t
        for x in range(8):
            A(f'v_cvt_pk_bf16_f32 v{pk+x}, v{64+16*t+2*x}, v{64+16*t+2*x+1}')
        A(f'buffer_store_dwordx4 {vr(pk,4)}, v8, s[24:27], s43 offen sc1')
        A(f'buffer_store_dwordx4 {vr(pk+4,4)}, v8, s[24:27], s43 offen offset:1024 sc1')
        A(f's_add_u32 s43, s43, {40*1024}')
    for t in range(4):
        pk = 200 + 8 * t
        A(f'v_mov_b32 v{11+t}, 0')
    for x in range(8):
        for t in range(4):
            A(f'v_dot2c_f32_bf16 v{11+t}, 0x3f803f80, v{200+8*t+x}')
    for t in range(4):
        A(f'ds_write_b32 v10, v{11+t} offset:{36864+128*t}')
    A0.wait_lg()
    A('s_barrier')
    A('s_cmp_ge_u32 s3, 2')
    A(f's_cbranch_scc1 {join}')
    A('v_lshlrev_b32 v10, 2, v0')
    A(f'v_add_u32 v10, {LB}, v10')
    for k in range(8):
        A(f'ds_read_b32 v{16+k}, v10 offset:{36864+512*k}')
    A('v_lshlrev_b32 v10, 2, v0')
    A('s_lshl_b32 s43, s37, 9')
    A(f's_add_u32 s43, s43, {WC["B"]}')
    A0.wait_lg()
    for k in range(4):
        A(f'v_add_f32 v{16+k}, v{16+k}, v{20+k}')
    A('v_add_f32 v16, v16, v17'); A('v_add_f32 v18, v18, v19'); A('v_add_f32 v16, v16, v18')
    A('buffer_store_dword v16, v10, s[24:27], s43 offen sc1')
    A(f's_branch {join}')

def part_b(A0, join, hookE, hookX):
    A = lambda t, tag=None: A0(ren(t), tag=tag)
    A('s_mov_b32 s37, s2')
    A('s_cmp_ge_u32 s37, 40')
    A('s_cselect_b32 s36, 1, 0')
    A('s_cselect_b32 s28, s16, s8')
    A('s_cselect_b32 s29, s17, s9')
    A('s_and_b32 s29, s29, 0xffff')
    A(f's_mov_b32 s30, {640*640*2}')
    A('s_mov_b32 s31, 0x00020000')
    A('s_mul_i32 s38, s36, 40')
    A('s_sub_u32 s37, s37, s38')
    A('s_cmp_ge_u32 s37, 20')
    A('s_cselect_b32 s38, 1, 0')
    A('s_mul_i32 s39, s38, 20')
    A('s_sub_u32 s37, s37, s39')
    A('s_lshl_b32 s41, s38, 2')
    A('s_add_u32 s41, s41, s3')
    A('v_lshrrev_b32 v3, 4, v1')
    A('v_and_b32 v4, 15, v1')
    A('s_lshl_b32 s39, s37, 2')
    A('v_add_u32 v3, s39, v3')
    A('v_mul_u32_u24 v5, 205, v3')
    A('v_lshrrev_b32 v5, 10, v5')
    A('v_mul_u32_u24 v6, 5, v5')
    A('v_sub_u32 v6, v3, v6')
    A('v_mul_u32_u24 v5, 40, v5')
    A('v_mul_u32_u24 v7, 10, v6')
    A('v_add_u32 v7, v7, v5')
    A('v_add_u32 v5, 8, v5')
    A('v_mul_u32_u24 v7, 1280, v7')
    A('v_mul_u32_u24 v5, 1280, v5')
    A('v_lshrrev_b32 v9, 2, v4')
    A('v_and_b32 v10, 3, v4')
    A('v_lshl_add_u32 v9, v9, 3, v10')
    A('v_sub_u32 v10, v4, v9')
    A('v_lshlrev_b32 v10, 1, v10')
    A('v_lshl_add_u32 v7, v9, 1, v7')
    A('v_lshl_add_u32 v5, v9, 1, v5')
    A('v_cmp_eq_u32 vcc, 4, v6')
    A('s_mul_i32 s42, s41, 160')
    for j in range(8):
        o4 = 20 * ((j >> 1) & 1) + 10 * (j >> 2) + (j & 1)
        A(f'v_add_u32 v11, {1280*j}, v7')
        A(f'v_add_u32 v12, {1280*o4}, v5')
        A(f'v_cndmask_b32 v{96+2*j}, v11, v12, vcc')
        A(f'v_add_u32 v{97+2*j}, v{96+2*j}, v10')
        for mt in range(5):
            if mt < 4:
                A(f'buffer_load_ushort v{16+8*mt+j}, v{96+2*j}, s[28:31], s42 offen offset:{2*(32*(mt>>1)+4*(mt&1))}', tag='wa')
            else:
                A(f'buffer_load_ushort v{16+8*mt+j}, v{97+2*j}, s[28:31], s42 offen offset:128', tag='wa')
    A0.fstamp('p10'); hookE(); A0.fstamp('p20'); hookX(); A0.fstamp('p30')
    A('s_mul_i32 s44, s41, 20')
    A('s_add_u32 s44, s44, s37')
    A('s_mul_i32 s44, s44, 5120')
    A(f's_mul_i32 s45, s36, {WOF["B"]-WOF["A"]}')
    A('s_add_u32 s44, s44, s45')
    A(f's_add_u32 s44, s44, {WOF["A"]}')
    A('v_lshlrev_b32 v8, 4, v1')
    A0.fstamp('p40')
    A0.wait_vm('wa')
    A0.fstamp('p50')
    for mt in range(5):
        for x in range(4):
            A(f'v_lshl_or_b32 v{64+4*mt+x}, v{16+8*mt+2*x+1}, 16, v{16+8*mt+2*x}')
        if mt < 4:
            A(f'buffer_store_dwordx4 {vr(64+4*mt,4)}, v8, s[24:27], s44 offen offset:{1024*mt} sc1')
        else:
            A('s_add_u32 s44, s44, 4096')
            A(f'buffer_store_dwordx4 {vr(64+4*mt,4)}, v8, s[24:27], s44 offen sc1')
    A(f's_branch {join}')
```

```python
from emit import *
from lay2 import *
from k1 import emit_items

P_LDS = 163840
RS = 288
KREC = [0, 9216]
def PQ(rb): return 18432 + 9216 * rb
WOL = 55296
SC = 162816
LANE = 0; L16 = 1
VR = [2, 3]; VRL = [4, 5]; T0 = 6; T1 = 7
NM = 8; WCR = {'A': 12, 'B': 16}; XOLD = 20
DS1 = 30; DS2 = 31; REC0 = 32; REC = 33
TRA = {'B': [34, 35, 36], 'A': [37, 38]}; TRB0 = 39; TRB = 40
VSC = 41; VSTP = 42; VX = 43; VX3 = 44; VKA = {'A': 45, 'B': 46}; VPQ = 47
ACC = 48; RING = 80; TMP = 112; X1 = 132; X2 = 133; X3 = 134; X4 = 135; X5 = 136; X6 = 137
PK = 138; VC = 148; KFA = 152; KFB = 164; KC = 168; XL = 180; SENT = 184; STR = 112
S_RG = 20; S_HP = 21; S_BUD = 22; S_SAME = 23; S_EPS = 24; S_W2K = 25; S_XCC = 26
S_RBY = 27; S_CG = 28; S_W1K = 37
VKP = [188, 189, 190]
S_N = 80; S_M = 81; VXD = 244; VWD = 245
S_LO = 84; S_EP2 = 85; S_E = 86; S_EV = 88; S_ROT = 29
MW = 131072
KR2 = WOL + 82 * 1024
BUDGET = 400000

def cost(it):
    if isinstance(it, str):
        if it.startswith(('v_exp', 'v_rcp', 'v_sqrt', 'v_rsq')): return 2
        if it.startswith('v_mfma'): return 4
        return 1
    if isinstance(it, list): return sum(cost(x) for x in it)
    return 1

def flat(items):
    out = []
    for it in items:
        if isinstance(it, list): out += flat(it)
        else: out.append(it)
    return out

def wreg(T, s):
    if T == 'A': return ar(4 * s, 4)
    return ar(160 + 4 * s, 4) if s < 24 else vr(192 + 4 * (s - 24), 4)

def dsaddr(off):
    return [L16, DS1, DS2][off >> 16], off & 0xffff

class P:
    def __init__(self, name, prof=None, nl=4, stamp_layers=(0, 1, 2, 3), opt=None):
        self.name = name; self.nl = nl; self.sl = stamp_layers
        self.A = Asm(); self.A.prof = prof
        self.nlab = 0
        self.opt = dict(FB=4, PRE=9, DMA_EVERY=3, YFB=1, MASK=1, WO1=100, W2=1, DCOST=2, RMIN=2.0, RX=1.1)
        if opt: self.opt.update(opt)
        self.L = 0
        self.wsc = ' sc1' if self.opt.get('WSC', 1) else ''
    def lab(self, s):
        self.nlab += 1
        return f'{self.name}_{s}{self.nlab}'
    def stamp(self, n):
        if self.L in self.sl: self.A.stamp(f'{n}{self.L}')
    def poll(self, loads, regs, tmp, sleep=0, pre=0):
        A = self.A
        lp, lg = self.lab('poll'), self.lab('go')
        A('s_nop 4')
        if pre: A(f's_sleep {pre}')
        if sleep:
            l1 = self.lab('p1')
            A(f's_branch {l1}')
            A.label(lp)
            A(f's_sleep {sleep}')
            A.label(l1)
        else:
            A.label(lp)
        for t in loads: A(t)
        A.wait_vm()
        r = list(regs)
        if len(r) == 1: m = r[0]
        else:
            m = tmp
            if len(r) == 2:
                A(f'v_max_u32 v{m}, v{r[0]}, v{r[1]}'); r = []
            else:
                A(f'v_max3_u32 v{m}, v{r[0]}, v{r[1]}, v{r[2]}'); r = r[3:]
            while len(r) >= 2:
                A(f'v_max3_u32 v{m}, v{m}, v{r[0]}, v{r[1]}'); r = r[2:]
            if r: A(f'v_max_u32 v{m}, v{m}, v{r[0]}')
        A(f'v_cmp_eq_u32 vcc, -1, v{m}')
        A(f's_sub_u32 s{S_BUD}, s{S_BUD}, 1')
        A(f's_cbranch_scc1 {lg}')
        if self.opt['MASK']: A('s_mov_b64 exec, vcc')
        A(f's_cbranch_vccnz {lp}')
        A.label(lg)
        if self.opt['MASK']: A('s_mov_b64 exec, -1')
        A(f's_max_i32 s{S_BUD}, s{S_BUD}, 0')
    def fstore(self, stores, tag=None):
        A = self.A
        ls, lj = self.lab('slow'), self.lab('join')
        A(f's_cmp_eq_u32 s{S_SAME}, 0')
        A(f's_cbranch_scc1 {ls}')
        n0 = len(A.lines)
        for t in stores: A(t, tag=tag)
        body = A.lines[n0:]
        A(f's_branch {lj}')
        A.label(ls)
        for ln in body:
            A.raw(ln + ' sc1' if 'buffer_store' in ln else ln)
        A.raw('    s_nop 0')
        A.label(lj)
    def srd_x(self, L):
        A = self.A
        A(f's_mul_i32 s30, s{S_RG}, 163840')
        A(f's_add_u32 s30, s30, {X(L)}')
        A('s_add_u32 s12, s4, s30')
        A('s_addc_u32 s13, s5, 0')
        A('s_and_b32 s13, s13, 0xffff')
    def srd_wo_items(self, T):
        return [f's_mul_i32 s30, s{S_CG}, 102400', f's_add_u32 s30, s30, {WOF[T] - WOL}',
                's_add_u32 s16, s4, s30', 's_addc_u32 s17, s5, 0', 's_and_b32 s17, s17, 0xffff']

    def ring(self, sg):
        sl = 32768 * (sg & 3)
        gs = []
        for t in range(4):
            gs.append([f's_add_u32 s31, s7, {15360*t}', f's_add_u32 m0, s100, {sl + 1024*t}',
                       ('i', f'buffer_load_dwordx4 v{VWD}, s[16:19], s31 offen lds', f'g{sg}')])
            gs.append([f's_add_u32 s31, s6, {40960*t}', f's_add_u32 m0, s{S_W1K}, {sl + 16384 + 4096*t}',
                       ('i', f'buffer_load_dwordx4 v{VXD}, s[12:15], s31 offen lds', f'g{sg}')])
        gs[-1] += [f's_cmp_eq_u32 s{S_ROT}, {9 - sg}', 's_cselect_b32 s31, -9, 1', 's_lshl_b32 s31, s31, 7', 's_add_u32 s6, s6, s31',
                   's_mul_i32 s31, s31, 1920', 's_add_u32 s7, s7, s31']
        return gs
    def prologue(self):
        import kz2 as kz
        A = self.A; o = self.opt
        nm = self.name
        A('s_load_dwordx2 s[4:5], s[0:1], 72')
        A('s_load_dwordx16 s[64:79], s[0:1], 0')
        A(f's_memrealtime s[{S_N}:{S_N+1}]')
        A('s_cmp_ge_u32 s2, 256')
        A(f's_cbranch_scc1 {nm}_END')
        A.stamp('rstart', real=True); A.stamp('start')
        A('v_lshrrev_b32 v2, 6, v0')
        A('v_and_b32 v1, 63, v0')
        A('v_readfirstlane_b32 s3, v2')
        A('s_and_b32 s30, s2, 7')
        A('s_lshr_b32 s31, s2, 3')
        A(f's_lshl_b32 s{S_RG}, s30, 1')
        A('s_and_b32 s30, s31, 1')
        A(f's_add_u32 s{S_RG}, s{S_RG}, s30')
        A(f's_lshr_b32 s{S_HP}, s31, 1')
        A('s_mov_b32 s10, %d' % WS_SIZE); A('s_mov_b32 s11, 0x00020000')
        A(f's_lshl_b32 s83, s{S_RG}, 4'); A(f's_add_u32 s83, s83, s{S_HP}'); A('s_lshl_b32 s83, s83, 3')
        A('s_lshr_b32 s39, s83, 1'); A(f's_add_u32 s39, s39, {AR}')
        A(f's_lshr_b32 s{S_CG}, s{S_HP}, 1')
        A(f's_and_b32 s30, s{S_HP}, 1')
        A('s_lshl_b32 s30, s30, 2')
        A(f's_lshl_b32 s{S_RBY}, s{S_RG}, 3')
        A(f's_add_u32 s{S_RBY}, s{S_RBY}, s30')
        A(f's_add_u32 s{S_RBY}, s{S_RBY}, s3')
        A(f's_lshl_b32 s{S_W2K}, s3, 11')
        A(f's_lshl_b32 s{S_W1K}, s3, 10')
        A(f's_mov_b32 s{S_BUD}, {BUDGET}')
        A(f's_mov_b32 s{S_EPS}, 0x358637bd')
        A(f's_getreg_b32 s{S_XCC}, hwreg(HW_REG_XCC_ID, 0, 16)')
        A('s_mov_b32 s14, 163840'); A('s_mov_b32 s15, 0x00020000')
        A('s_mov_b32 s19, 0x00020000')
        A(f's_mul_i32 s30, s{S_RG}, 163840')
        A(f's_mul_i32 s31, s{S_HP}, 80')
        A(f's_sub_u32 s18, {640*1920*2}, s31')
        A('s_mul_i32 s6, s3, 10240'); A('s_mul_i32 s7, s3, 61440'); A('s_lshl_b32 s100, s3, 12')
        A(f's_lshr_b32 s32, s{S_RG}, 1'); A('s_sub_u32 s33, s32, 5'); A('s_min_u32 s32, s32, s33'); A('s_mov_b32 s34, s32')
        A(f's_and_b32 s33, s{S_RG}, 1'); A('s_mul_i32 s33, s33, 5'); A(f's_add_u32 s{S_ROT}, s32, s33')
        if o.get('NOROT'): A(f's_mov_b32 s{S_ROT}, 0')
        A(f's_mul_i32 s32, s{S_ROT}, 245760'); A('s_add_u32 s7, s7, s32')
        A(f's_lshl_b32 s32, s{S_ROT}, 7'); A('s_add_u32 s6, s6, s32')
        A('s_lshl_b32 s38, s2, 2'); A('s_add_u32 s38, s38, s3')
        A.wait_lg()
        A('s_mov_b32 s8, s4')
        A('s_and_b32 s9, s5, 0xffff')
        A(f'v_mov_b32 v2, s{S_N}')
        A('s_cmp_lg_u32 s3, 2')
        A(f's_cbranch_scc1 {nm}_noar')
        A('s_mov_b64 exec, 1')
        A('buffer_store_dword v2, off, s[8:11], s39 sc1')
        A('s_mov_b64 exec, -1')
        A.label(f'{nm}_noar')
        A.vm = []
        A('s_add_u32 s12, s64, s30')
        A('s_addc_u32 s13, s65, 0')
        A('s_and_b32 s13, s13, 0xffff')
        A('s_add_u32 s16, s66, s31')
        A('s_addc_u32 s17, s67, 0')
        A('s_and_b32 s17, s17, 0xffff')
        H = 232
        if o.get('PFW', 0):
            A(f'v_lshlrev_b32 v{H}, 7, v1')
            A(f'v_lshrrev_b32 v{H+1}, 3, v1'); A(f'v_and_b32 v{H+2}, 7, v1'); A(f'v_mul_u32_u24 v{H+2}, 1280, v{H+2}')
            A('s_and_b32 s31, s3, 1'); A('s_lshl_b32 s31, s31, 3')
            A(f'v_add_u32 v{H+1}, s31, v{H+1}'); A(f'v_min_u32 v{H+1}, 9, v{H+1}'); A(f'v_lshl_add_u32 v{H+1}, v{H+1}, 7, v{H+2}')
            A(f's_mul_i32 s31, s{S_HP}, 10240')
            A('s_cmp_ge_u32 s3, 2')
            A(f's_cbranch_scc0 {nm}_npx')
            A(f'buffer_load_dword v247, v{H+1}, s[12:15], s31 offen')
            A.label(f'{nm}_npx')
            A('s_lshr_b32 s30, s2, 3'); A('s_mul_i32 s30, s30, 7680'); A(f's_mul_i32 s31, s{S_HP}, 80'); A('s_sub_u32 s30, s30, s31')
            A('s_max_i32 s30, s30, 0')
            A('s_lshr_b32 s33, s3, 1'); A('s_add_u32 s32, s34, s33')
            A('s_and_b32 s33, s3, 1'); A('s_mul_i32 s33, s33, 5'); A('s_add_u32 s32, s32, s33')
            for i in range(3):
                if i == 2:
                    A('s_cmp_ge_u32 s3, 2')
                    A(f's_cbranch_scc1 {nm}_npw')
                A('s_sub_u32 s33, s32, 10'); A('s_min_u32 s33, s32, s33'); A('s_mul_i32 s33, s33, 245760'); A('s_add_u32 s33, s33, s30')
                A(f'buffer_load_dword v{248+i}, v{H}, s[16:19], s33 offen')
                A('s_add_u32 s32, s32, 2')
            A.label(f'{nm}_npw')
            A.vm = []
        def hookE():
            A(f'v_lshrrev_b32 v{H+1}, 3, v1'); A(f'v_and_b32 v{H+2}, 6, v{H+1}'); A(f'v_mul_u32_u24 v{H+1}, 1280, v{H+1}')
            A(f'v_and_b32 v{H+3}, 7, v1'); A(f'v_xor_b32 v{H+2}, v{H+2}, v{H+3}')
            A(f'v_lshl_add_u32 v{VXD}, v{H+2}, 4, v{H+1}')
            A('s_and_b32 s30, s3, 1'); A('s_lshl_b32 s30, s30, 4'); A(f'v_xor_b32 v{VXD}, s30, v{VXD}')
            A(f'v_min_u32 v{H+1}, 59, v1'); A(f'v_mul_u32_u24 v{H+2}, 205, v{H+1}'); A(f'v_lshrrev_b32 v{H+2}, 10, v{H+2}')
            A(f'v_mul_u32_u24 v{H+2}, 1200, v{H+2}'); A(f'v_lshl_add_u32 v{VWD}, v{H+1}, 4, v{H+2}')
            for g in self.ring(0)[:o.get('RE', 0)]: emit_items(A, g)
            A(f'v_lshlrev_b32 v{H}, 4, v1')
            for k in range(4): A(f'v_mov_b32 v{H+4+k}, -1')
            for g in self.clears(-1, lane=1, l16=H, x5=H+1, x6=H+2, sent=H+4): emit_items(A, flat(g))
        def hookX():
            for g in (self.ring(0) + self.ring(1))[o.get('RE', 0):]: emit_items(A, g)
        join = f'{nm}_pj'
        A('s_cmp_lt_u32 s2, %d' % (256 if o.get('NOPC') else 96))
        A(f's_cbranch_scc1 {nm}_pc')
        A('s_cmp_ge_u32 s2, 176')
        A(f's_cbranch_scc1 {nm}_pb')
        A('s_sub_u32 s82, s2, 96')
        kz.part_a(A, join, hookE, hookX)
        A.label(f'{nm}_pb'); A.vm = []; A.lg = []
        A('s_sub_u32 s82, s2, 176')
        kz.part_b(A, join, hookE, hookX)
        A.label(f'{nm}_pc'); A.vm = []; A.lg = []
        E = RING
        A('s_cmp_lg_u32 s38, 2')
        A(f's_cbranch_scc1 {nm}_nm')
        A(f's_mov_b32 s30, {AR}'); A(f's_mov_b32 s31, {EC}'); A(f's_mov_b32 s32, {o.get("MR", 8)}')
        A(f'v_lshlrev_b32 v{E+12}, 5, v1'); A(f'v_lshlrev_b32 v{E+13}, 4, v1')
        A(f's_sub_u32 s33, 1000, s{S_N}')
        for k in range(4): A(f'v_mov_b32 v{E+17+2*k}, s{S_N}')
        A.label(f'{nm}_ml0')
        A(f'buffer_load_dwordx4 {vr(E+8,4)}, v{E+13}, s[8:11], s30 offen sc1')
        A.wait_vm()
        for k in range(4): A(f'v_mov_b32 v{E+16+2*k}, v{E+8+k}')
        A(f'buffer_store_dwordx4 {vr(E+16,4)}, v{E+12}, s[8:11], s31 offen sc1')
        A(f'buffer_store_dwordx4 {vr(E+20,4)}, v{E+12}, s[8:11], s31 offen offset:16 sc1')
        for k in range(4): A(f'v_add_u32 v{E+8+k}, s33, v{E+8+k}')
        A(f'v_max3_u32 v{E+8}, v{E+8}, v{E+9}, v{E+10}'); A(f'v_max_u32 v{E+8}, v{E+8}, v{E+11}')
        A(f'v_cmp_lt_u32 vcc, 0xfa0, v{E+8}')
        A('s_sub_u32 s32, s32, 1')
        A(f's_cbranch_scc1 {nm}_nm')
        A('s_nop 4')
        A(f's_cbranch_vccnz {nm}_ml0')
        A.label(f'{nm}_nm'); A.vm = []
        hookE(); hookX()
        A.label(join)
        A('s_nop 7'); A('s_nop 7')
        A.vm = [('pst', set())]; A.lg = []
        self.stamp('pc')
        A(f's_add_u32 s39, s83, {EC}')
        A(f'buffer_load_dwordx2 {vr(E+8,2)}, off, s[8:11], s39 sc1', tag='ec')
        for g in self.ring(2): emit_items(A, g)
        A('v_and_b32 v0, 63, v0')
        A(f'v_lshlrev_b32 v{L16}, 4, v0')
        emit_items(A, self.setup0() + self.setup_addr() + self.rec_toggle('A') + self.xa_items(TMP))
        A('s_bitcmp1_b32 s3, 0')
        A(f's_cselect_b32 s{S_LO}, 0xff800000, 0'); A(f's_cselect_b32 s{S_EP2}, 0, s{S_EPS}'); A(f's_cselect_b32 s{S_E}, 0, 1.0')
        A(f's_cselect_b64 s[{S_EV}:{S_EV+1}], 0, -1')
        XA = TMP; XSA = TMP + 4; WA = TMP + 8
        for j in range(4): A(f'v_add_u32 v{XSA+j}, s100, v{XA+j}')
        tb = [[10, 11, 12, 20], [13, 14, 22, 21], [0, 1, 2, 23], [3, 4, 24, 24]]
        tb = [sum(x << (8 * k) for k, x in enumerate(t)) for t in tb]
        A(f's_mov_b32 s30, {tb[1]}'); A(f's_mov_b32 s31, {tb[0]}'); A('s_cselect_b32 s30, s30, s31')
        A(f's_mov_b32 s31, {tb[3]}'); A(f's_mov_b32 s32, {tb[2]}'); A('s_cselect_b32 s31, s31, s32')
        A('s_bitcmp1_b32 s3, 1'); A('s_cselect_b32 s30, s31, s30')
        A(f'v_bfe_u32 v{X1}, v0, 4, 1'); A(f'v_bfe_u32 v{X2}, v0, 1, 1'); A(f'v_lshl_add_u32 v{X1}, v{X1}, 1, v{X2}')
        A(f'v_lshlrev_b32 v{X1}, 3, v{X1}'); A(f'v_lshrrev_b32 v{X1}, v{X1}, s30'); A(f'v_and_b32 v{X1}, 31, v{X1}')
        A(f'v_and_b32 v{X2}, 1, v0'); A(f'v_mul_u32_u24 v{X2}, 5, v{X2}')
        A(f'v_bfe_u32 v{X3}, v0, 2, 2'); A(f'v_mul_u32_u24 v{X3}, 30, v{X3}')
        A(f'v_add3_u32 v{X1}, v{X1}, v{X2}, v{X3}')
        A(f'v_lshrrev_b32 v{X2}, 5, v0'); A(f'v_lshlrev_b32 v{X2}, 11, v{X2}')
        A(f'v_lshl_add_u32 v{WA}, v{X1}, 3, v{X2}')
        A(f's_add_u32 s36, s83, {FL}')
        A(f'v_mov_b32 v{E+11}, s{S_XCC}')
        A(f'v_mov_b32 v{E+12}, {MW}')
        A.wait_vm('ec')
        self.stamp('dr')
        A('s_barrier')
        A('s_cmp_lg_u32 s3, 2')
        A(f's_cbranch_scc1 {nm}_go')
        sv = list(A.vm)
        A(f'v_mov_b32 v{E+10}, s{S_N}')
        A('s_cmp_eq_u32 s38, 2')
        A(f's_cbranch_scc1 {nm}_ex')
        A(f's_branch {nm}_e1')
        A.label(f'{nm}_ec')
        A(f'buffer_load_dwordx2 {vr(E+8,2)}, off, s[8:11], s39 sc1')
        A.wait_vm()
        A.label(f'{nm}_e1')
        A(f'v_readfirstlane_b32 s33, v{E+8}')
        A(f'v_mov_b32 v{E+10}, v{E+9}')
        A(f's_sub_u32 s{S_BUD}, s{S_BUD}, 1')
        A(f's_cbranch_scc1 {nm}_ex')
        A(f's_cmp_lg_u32 s33, s{S_N}')
        A(f's_cbranch_scc1 {nm}_ec')
        A.label(f'{nm}_ex')
        A(f's_max_i32 s{S_BUD}, s{S_BUD}, 0')
        A('s_mov_b64 exec, 1')
        A(f'buffer_store_dwordx2 {vr(E+10,2)}, off, s[8:11], s36 sc1')
        A(f'ds_write_b32 v{E+12}, v{E+10}')
        A('s_mov_b64 exec, -1')
        A.wait_lg()
        A.label(f'{nm}_go')
        A.vm = sv
        A('s_nop 4')
        self.stamp('go')
    def xa_items(self, dst):
        return [f'v_and_b32 v{X1}, 31, v0', f'v_lshlrev_b32 v{X1}, 7, v{X1}',
                f'v_and_b32 v{X2}, 6, v0', f'v_bfe_u32 v{X3}, v0, 3, 1', f'v_lshrrev_b32 v{X4}, 5, v0',
                f'v_xor_b32 v{X2}, v{X2}, v{X3}', f'v_xor_b32 v{X2}, v{X2}, v{X4}',
                f'v_lshl_add_u32 v{dst}, v{X2}, 4, v{X1}'] + [f'v_xor_b32 v{dst+j}, {32*j}, v{dst}' for j in (1, 2, 3)]
    def setup0(self):
        it = []
        a = it.append
        a(f'v_bfe_u32 v{T0}, v0, 4, 1')
        a(f'v_lshrrev_b32 v{T1}, 5, v0')
        a(f'v_lshlrev_b32 v{T0}, 10, v{T0}')
        a(f'v_lshl_add_u32 v{T0}, v{T1}, 9, v{T0}')
        a(f'v_and_b32 v{T1}, 15, v0')
        a(f'v_lshl_add_u32 v{VSTP}, v{T1}, 3, v{T0}')
        a('s_and_b32 s30, s3, 1')
        a('s_lshl_b32 s30, s30, 8')
        a(f'v_lshlrev_b32 v{T1}, 4, v{T1}')
        a(f'v_add_u32 v{T1}, s30, v{T1}')
        a(f'v_lshrrev_b32 v{T0}, 4, v0')
        a(f'v_lshl_add_u32 v{VX}, v{T0}, 9, v{T1}')
        a(f'v_lshrrev_b32 v2, 5, v0')
        a(f'v_lshl_add_u32 v{T1}, v2, 9, v{T1}')
        a(f'v_and_b32 v{T0}, 1, v{T0}')
        a(f'v_lshl_add_u32 v{T1}, v{T0}, 3, v{T1}')
        a(f'v_add_u32 v{VX3}, 0x1000, v{T1}')
        return it

    def setup_addr(self):
        it = []
        a = it.append
        a(f'v_add_u32 v{DS1}, 0x10000, v{L16}')
        a(f'v_add_u32 v{DS2}, 0x20000, v{L16}')
        a(f'v_and_b32 v{T0}, 31, v0')
        a(f'v_lshrrev_b32 v{T1}, 5, v0')
        a(f'v_lshlrev_b32 v{VSC}, 3, v{T0}')
        a(f'v_add_u32 v{VSC}, {SC}, v{VSC}')
        a(f'v_mul_u32_u24 v{T0}, {RS}, v{T0}')
        a(f'v_lshl_add_u32 v{T0}, v{T1}, 6, v{T0}')
        a('s_and_b32 s30, s3, 1')
        a('s_lshl_b32 s30, s30, 7')
        a(f'v_add_u32 v{REC0}, s30, v{T0}')
        a('s_mul_i32 s30, s3, 9216')
        a(f's_add_u32 s30, s30, {PQ(0)}')
        a(f'v_add_u32 v{VPQ}, s30, v{T0}')
        a(f'v_lshrrev_b32 v{T0}, 2, v0')
        a(f'v_mul_u32_u24 v{T0}, {RS}, v{T0}')
        a('s_lshr_b32 s30, s3, 1')
        a('s_lshl_b32 s30, s30, 7')
        a(f'v_add_u32 v{T0}, s30, v{T0}')
        a(f'v_and_b32 v{T1}, 3, v0')
        for T, nch in (('B', 5), ('A', 3)):
            for mt, r in enumerate(TRA[T]):
                a(f'v_add_u32 v{X1}, {4*mt}, v{T1}')
                a(f'v_min_u32 v{X1}, {2*nch-1}, v{X1}')
                a(f'v_cmp_le_u32 vcc, {nch}, v{X1}')
                a(f'v_cndmask_b32 v{X2}, 0, {64-8*nch}, vcc')
                a(f'v_lshl_add_u32 v{X1}, v{X1}, 3, v{X2}')
                a(f'v_add_u32 v{r}, v{X1}, v{T0}')
        a(f'v_lshrrev_b32 v{X1}, 1, v{T1}')
        a(f'v_and_b32 v{X2}, 1, v{T1}')
        a(f'v_lshlrev_b32 v{X1}, 6, v{X1}')
        a(f'v_lshl_add_u32 v{X1}, v{X2}, 3, v{X1}')
        a(f'v_lshlrev_b32 v{X2}, 6, v{X2}')
        a('s_bitcmp1_b32 s3, 0')
        a('s_cselect_b64 vcc, -1, 0')
        a(f'v_cndmask_b32 v{X1}, v{X1}, v{X2}, vcc')
        a(f'v_add3_u32 v{TRB0}, v{X1}, v{T0}, 48')
        a(f'v_bfe_u32 v{X1}, v0, 3, 2')
        a(f'v_and_b32 v{X2}, 3, v0')
        a(f'v_lshl_add_u32 v{X1}, v{X1}, 2, v{X2}')
        a(f'v_bfe_u32 v{X2}, v0, 2, 1')
        a(f'v_mul_u32_u24 v{X2}, 10, v{X2}')
        a(f'v_add_u32 v{X2}, v{X2}, v{X1}')
        a(f'v_cmp_gt_u32 s[30:31], 10, v{X1}')
        a(f'v_lshrrev_b32 v{X1}, 5, v0')
        for T in 'BA':
            if T == 'B':
                a(f'v_cmp_le_u32 vcc, 6, v{X2}')
                a(f'v_cndmask_b32 v{X3}, 0, 2, vcc')
                a(f'v_cmp_le_u32 vcc, 12, v{X2}')
                a(f'v_cndmask_b32 v{X4}, 0, 2, vcc')
                a(f'v_add3_u32 v{X3}, v{X2}, v{X3}, v{X4}')
                a(f'v_cndmask_b32 v{X3}, 6, v{X3}, s[30:31]')
            else:
                a(f'v_cmp_le_u32 vcc, 4, v{X2}')
                a(f'v_cndmask_b32 v{X3}, 0, 4, vcc')
                a(f'v_add_u32 v{X3}, v{X2}, v{X3}')
                a(f'v_cndmask_b32 v{X3}, 4, v{X3}, s[30:31]')
            a(f'v_lshrrev_b32 v{X4}, 3, v{X3}')
            a(f'v_lshl_add_u32 v{X4}, v{X4}, 1, v{X1}')
            a(f'v_and_b32 v{X3}, 7, v{X3}')
            a(f'v_mul_u32_u24 v{X4}, {0xc0 if T == "A" else 0x140}, v{X4}')
            a(f'v_lshl_add_u32 v{VKA[T]}, v{X3}, 3, v{X4}')
        for k in range(4): a(f'v_mov_b32 v{SENT+k}, -1')
        a(f'v_mov_b32 v{VC+3}, 0x3f80')
        return it

    def stats_items(self):
        S = STR
        return [
        f'v_add_f32 v{X1}, v{S}, v{S+2}', f'v_add_f32 v{X2}, v{S+4}, v{S+6}',
        f'v_add_f32 v{X1}, v{X1}, v{X2}', f'v_mov_b32 v{X2}, v{X1}',
        f'v_add_f32 v{X3}, v{S+1}, v{S+3}',
        f'v_add_f32 v{X4}, v{S+5}, v{S+7}',
        f'v_permlane32_swap_b32 v{X1}, v{X2}',
        f'v_add_f32 v{X3}, v{X3}, v{X4}',
        f'v_add_f32 v{X1}, v{X1}, v{X2}',
        f'v_mul_f32 v{X1}, 0.125, v{X1}',
        f'v_sub_f32 v{S}, v{S}, v{X1}', f'v_sub_f32 v{S+2}, v{S+2}, v{X1}',
        f'v_sub_f32 v{S+4}, v{S+4}, v{X1}', f'v_sub_f32 v{S+6}, v{S+6}, v{X1}',
        f'v_mul_f32 v{X2}, v{S}, v{S}', f'v_fmac_f32 v{X2}, v{S+2}, v{S+2}',
        f'v_fmac_f32 v{X2}, v{S+4}, v{S+4}', f'v_fmac_f32 v{X2}, v{S+6}, v{S+6}',
        f'v_fmac_f32 v{X3}, 0x42a00000, v{X2}',
        f'v_mov_b32 v{X4}, v{X3}',
        f'v_cvt_pk_bf16_f32 v{X5}, -v{X1}, -v{X1}',
        f's_lshl_b32 s30, s3, 8',
        f'v_permlane32_swap_b32 v{X3}, v{X4}',
        f'v_add_u32 v{X1}, s30, v{VSC}',
        f'v_add_f32 v{X3}, v{X3}, v{X4}',
        f'v_mul_f32 v{X3}, 0x3acccccd, v{X3}',
        f'v_cvt_pk_bf16_f32 v{X3}, v{X3}, v{X3}',
        f'v_lshlrev_b32 v{X3}, 16, v{X3}',
        f'v_add_f32 v{X3}, 0x3727c5ac, v{X3}',
        f'v_cvt_pk_bf16_f32 v{X3}, v{X3}, v{X3}',
        f'v_lshlrev_b32 v{X3}, 16, v{X3}',
        f'v_sqrt_f32 v{X3}, v{X3}',
        f'v_cvt_pk_bf16_f32 v{X3}, v{X3}, v{X3}',
        f'v_lshlrev_b32 v{X3}, 16, v{X3}',
        f'v_rcp_f32 v{X6}, v{X3}',
        ('i', f'ds_write_b64 v{X1}, v[{X5}:{X6}]', 'sc')]
    def st_loads(self, L):
        return [f'buffer_load_dwordx2 {vr(STR+2*c,2)}, v{VSTP}, s[8:11], s31 offen offset:{128*c} sc1' for c in range(4)]
    def st_soff(self, L):
        return [f's_lshl_b32 s31, s{S_RG}, 13', f's_add_u32 s31, s31, s{S_W2K}', f's_add_u32 s31, s31, {ST(L)}']
    def xchunk(self, c):
        it = [f's_add_u32 m0, s{S_W1K}, {4096*c}']
        if c == 39: it.append(f's_min_u32 m0, m0, {158*1024}')
        it += [('i', f'buffer_load_dwordx4 v{L16}, s[12:15], m0 offen sc1 lds', f'x{c}')]
        if c == 39:
            it += [f's_mov_b32 s30, {159*1024}',
                   ('i', f'buffer_load_dwordx4 {vr(XL,4)}, v{L16}, s[12:15], s30 offen sc1', f'x{c}')]
        return it
    def wloads(self, T, s0, n):
        it = [f's_add_u32 s30, s90, {WF[T] + 1024*s0}']
        for k in range(n):
            it.append(('i', f'buffer_load_dwordx4 {wreg(T, s0+k)}, v{L16}, s[8:11], s30 offen offset:{1024*k}{self.wsc}', f'w{T}{s0}'))
        return it
    def wo_dma(self, f0, f1):
        gs = []
        f = f0
        while f < f1:
            it = [f's_add_u32 m0, s{S_W1K}, {WOL + 1024*f}']
            if f + 4 > f1: it.append(f's_min_u32 m0, m0, {WOL + 1024*(f1-1)}')
            it += [('i', f'buffer_load_dwordx4 v{L16}, s[16:19], m0 offen{self.wsc} lds', 'wo')]
            gs.append(it); f += 4
        return gs
    def rec_toggle(self, T):
        return [f'v_lshrrev_b32 v{X2}, 5, v0', 's_and_b32 s30, s3, 1',
                f'v_subrev_u32 v{X2}, s30, v{X2}' if T == 'A' else f'v_sub_u32 v{X2}, s30, v{X2}',
                f'v_lshl_add_u32 v{REC0}, v{X2}, 6, v{REC0}']
    def scread(self, rb):
        b = rb & 1
        return [('i', f'ds_read_b64 v[{T0}:{T1}], v{VSC} offset:{256*rb}', 'scr'), ('wlg', 'scr'),
                f'v_mov_b32 v{NM}, v{T0}', f'v_mov_b32 v{NM+1}, v{T0}', f'v_mov_b32 v{NM+2}, v{T0}', f'v_mov_b32 v{NM+3}, v{T0}',
                f'v_mov_b32 v{VR[b]}, v{T1}', f'v_mul_f32 v{VRL[b]}, 0x3fb8aa3b, v{T1}']
    def epilogue(self, T, rb, ac=None, kadd=0):
        b = rb & 1
        if ac is None: ac = ACC + 16 * b
        R = VR[b]; RL = VRL[b]
        it = []
        a = it.append
        if kadd: a([f's_mov_b32 s31, {kadd}', 's_cmp_ge_u32 s3, 2', f's_cselect_b32 s30, {PQ(rb)-KREC[b]}, s31', f'v_add_u32 v{REC}, s30, v{REC0}'])
        else: a(['s_cmp_ge_u32 s3, 2', f's_cselect_b32 s30, {PQ(rb)-KREC[b]}, 0', f'v_add_u32 v{REC}, s30, v{REC0}'])
        KO = KREC[b]
        if T == 'B':
            for k in range(10, 16): a(f'v_mul_f32 v{ac+k}, v{ac+k}, v{R}')
            for k in range(3): a(f'v_cvt_pk_bf16_f32 v{VC+k}, v{ac+10+2*k}, v{ac+11+2*k}')
            a(('i', f'ds_write_b128 v{REC}, {vr(VC,4)} offset:{KO+48}', 'rec'))
        if T == 'A':
            for k in range(12, 16): a(f'v_mul_f32 v{ac+k}, v{ac+k}, v{R}')
            for k in range(2): a(f'v_cvt_pk_bf16_f32 v{PK+6+k}, v{ac+12+2*k}, v{ac+13+2*k}')
            for b0 in (8, 0, 4):
                blk = [ac + b0 + k for k in range(4)]
                t = [TMP + 2 * k for k in range(4)]
                for x, tt in zip(blk, t): a(f'v_mul_f32 v{tt}, v{x}, v{RL}')
                for x, tt in zip(blk, t): a(f'v_max_f32 v{tt+1}, {"s%d" % S_LO if b0 == 8 else 0}, v{x}')
                for x, tt in zip(blk, t): a(f'v_exp_f32_e64 v{tt}, v{tt} clamp')
                for x, tt in zip(blk, t): a(f'v_fma_f32 v{tt+1}, v{tt+1}, v{R}, s{S_EP2 if b0 == 8 else S_EPS}')
                for x, tt in zip(blk, t):
                    a(f'v_fma_f32 v{tt}, v{tt}, s{S_E}, v{tt+1}' if b0 == 8 else f'v_add_f32 v{tt}, v{tt}, v{tt+1}')
                for k in range(0, 4, 2): a(f'v_cvt_pk_bf16_f32 v{PK+(b0+k)//2}, v{t[k]}, v{t[k+1]}')
                if b0 == 8:
                    a(f'v_cndmask_b32 v{PK+8}, v{PK+4}, v{VC+3}, s[{S_EV}:{S_EV+1}]')
                    a(f'v_cndmask_b32 v{PK+9}, v{PK+5}, 0, s[{S_EV}:{S_EV+1}]')
                    a(f'v_cndmask_b32 v{PK+4}, 0, v{PK+4}, s[{S_EV}:{S_EV+1}]')
                    a(f'v_cndmask_b32 v{PK+5}, 0, v{PK+5}, s[{S_EV}:{S_EV+1}]')
                    a(('i', f'ds_write_b128 v{REC}, {vr(PK+6,4)} offset:{KO+48}', 'rec'))
                    a(('i', f'ds_write_b64 v{REC}, {vr(PK+4,2)} offset:{KO+16}', 'rec'))
            a(('i', f'ds_write_b128 v{REC}, {vr(PK,4)} offset:{KO}', 'rec'))
        else:
            s = [ac + k for k in range(10)]
            a(f'v_max3_f32 v{X1}, v{s[0]}, v{s[1]}, v{s[2]}')
            a(f'v_max3_f32 v{X2}, -v{s[0]}, -v{s[1]}, -v{s[2]}')
            for k in (3, 5, 7):
                a(f'v_max3_f32 v{X1}, v{X1}, v{s[k]}, v{s[k+1]}')
                a(f'v_max3_f32 v{X2}, v{X2}, -v{s[k]}, -v{s[k+1]}')
            a(f'v_max_f32 v{X1}, v{X1}, v{s[9]}')
            a(f'v_max_f32_e64 v{X2}, v{X2}, -v{s[9]}')
            a(f'v_permlane32_swap_b32 v{X1}, v{X2}')
            a(f'v_max_f32 v{X1}, v{X1}, v{X2}')
            a(f'v_mul_f32_e64 v{X1}, -v{X1}, v{RL}')
            a(f'v_mov_b32 v{X2}, v{X1}')
            a(f'v_permlane32_swap_b32 v{X1}, v{X2}')
            Pp = [TMP + k for k in range(10)]; N = [TMP + 10 + k for k in range(10)]
            prev = None
            def addblk(ks):
                for k in ks:
                    if k == 0: continue
                    if k == 1:
                        a(f'v_add_f32 v{X3}, v{Pp[0]}, v{Pp[1]}'); a(f'v_add_f32 v{X4}, v{N[0]}, v{N[1]}')
                    else:
                        a(f'v_add_f32 v{X3}, v{X3}, v{Pp[k]}'); a(f'v_add_f32 v{X4}, v{X4}, v{N[k]}')
            for ks in ((0, 1, 2, 3), (4, 5, 6, 7), (8, 9)):
                for k in ks:
                    a(f'v_fma_f32 v{Pp[k]}, v{s[k]}, v{RL}, v{X1}')
                    a(f'v_fma_f32 v{N[k]}, -v{s[k]}, v{RL}, v{X2}')
                for k in ks:
                    a(f'v_exp_f32 v{Pp[k]}, v{Pp[k]}')
                    a(f'v_exp_f32 v{N[k]}, v{N[k]}')
                if prev: addblk(prev)
                prev = ks
            addblk(prev)
            a(f'v_permlane32_swap_b32 v{X3}, v{X4}')
            a(f'v_add_f32 v{X3}, v{X3}, v{X4}')
            a(f'v_rcp_f32 v{X3}, v{X3}')
            a(f'v_mov_b32 v{X4}, v{X3}')
            a(f'v_permlane32_swap_b32 v{X3}, v{X4}')
            for half, (regs, sc) in enumerate(((Pp, X3), (N, X4))):
                for k in range(0, 10, 2):
                    a(f'v_mul_f32 v{regs[k]}, v{regs[k]}, v{sc}')
                    a(f'v_mul_f32 v{regs[k+1]}, v{regs[k+1]}, v{sc}')
                    a(f'v_cvt_pk_bf16_f32 v{PK+5*half+k//2}, v{regs[k]}, v{regs[k+1]}')
                    n = 5 * half + k // 2
                    if n == 3: a(('i', f'ds_write_b128 v{REC}, {vr(PK,4)} offset:{KO}', 'rec'))
                    if n == 7: a(('i', f'ds_write_b128 v{REC}, {vr(PK+4,4)} offset:{KO+16}', 'rec'))
                    if n == 9: a(('i', f'ds_write_b64 v{REC}, {vr(PK+8,2)} offset:{KO+32}', 'rec'))
        return it
    def kv(self, T, rb):
        b = rb & 1
        rd = [['s_bitcmp1_b32 s3, 0', f's_cselect_b32 s30, {PQ(rb)-KREC[b]}, 0', f'v_add_u32 v{TRB}, s30, v{TRB0}']]
        for jh in range(2):
            rd.append(('i', f'ds_read_b64_tr_b16 {vr(KFB+2*jh,2)}, v{TRB} offset:{KREC[b]+16*jh*RS}', 'kvr'))
        for mt, r in enumerate(TRA[T]):
            for jh in range(2):
                rd.append(('i', f'ds_read_b64_tr_b16 {vr(KFA+4*mt+2*jh,2)}, v{r} offset:{KREC[b]+16*jh*RS}', 'kvr'))
        mm = [('wlg', 'kvr')]
        for mt in range(len(TRA[T])):
            c = '0' if rb == 0 else vr(KC + 4 * mt, 4)
            mm.append(f'v_mfma_f32_16x16x32_bf16 {vr(KC+4*mt,4)}, {vr(KFA+4*mt,4)}, {vr(KFB,4)}, {c}')
        return rd, mm
    def kvp_addr(self, T):
        NG = 6 if T == 'A' else 10
        it = [f'v_bfe_u32 v{X1}, v0, 3, 1', f'v_lshrrev_b32 v{X2}, 4, v0',
              ['s_lshr_b32 s30, s3, 1', 's_mul_i32 s30, s30, 3', 's_and_b32 s31, s3, 1', 's_lshl_b32 s31, s31, 1',
               f'v_add_u32 v{X1}, s31, v{X1}', f'v_cmp_gt_u32 s[32:33], 3, v{X1}', f'v_add_u32 v{X1}, s30, v{X1}'],
              f'v_mul_u32_u24 v{X1}, {NG}, v{X1}', f'v_add_u32 v{X1}, v{X1}, v{X2}', f'v_mov_b32 v{X5}, {OOB}',
              f'v_and_b32 v{X3}, 7, v0', f'v_lshlrev_b32 v{X3}, 4, v{X3}', f'v_lshl_add_u32 v{X1}, v{X1}, 11, v{X3}',
              f'v_cndmask_b32 v{VKP[0]}, v{X5}, v{X1}, s[32:33]']
        nmt = len(TRA[T])
        for mt in range(1, nmt): it.append(f'v_add_u32 v{VKP[mt]}, {8192*mt}, v{VKP[0]}')
        it += [f'v_cmp_gt_u32 vcc, {NG-4*(nmt-1)}, v{X2}', f'v_cndmask_b32 v{VKP[nmt-1]}, v{X5}, v{VKP[nmt-1]}, vcc']
        return it
    def clears(self, L, lane=0, l16=L16, x5=X5, x6=X6, sent=SENT):
        n = L + 1
        g1 = [f'v_lshrrev_b32 v{x5}, 3, v{lane}', f'v_and_b32 v{x6}, 7, v{lane}', f'v_lshlrev_b32 v{x5}, 11, v{x5}',
              f'v_lshl_add_u32 v{x5}, v{x6}, 4, v{x5}',
              f's_mul_i32 s30, s{S_HP}, {KVPS(n)}', f's_lshl_b32 s31, s{S_RG}, 7', 's_add_u32 s30, s30, s31',
              's_lshl_b32 s31, s3, 15', 's_add_u32 s30, s30, s31', f's_add_u32 s30, s30, {KVP(n)}',
              ('i', f'buffer_store_dwordx4 {vr(sent,4)}, v{x5}, s[8:11], s30 offen sc1', 'clr'),
              's_add_u32 s30, s30, 16384',
              ('i', f'buffer_store_dwordx4 {vr(sent,4)}, v{x5}, s[8:11], s30 offen sc1', 'clr')]
        g2 = [f'v_lshrrev_b32 v{x5}, 3, v{lane}', f'v_lshlrev_b32 v{x5}, 17, v{x5}', f'v_lshl_add_u32 v{x5}, v{x6}, 4, v{x5}',
              f's_lshl_b32 s30, s{S_HP}, 13', f's_lshl_b32 s31, s{S_RG}, 7', 's_add_u32 s30, s30, s31',
              f's_add_u32 s30, s30, s{S_W2K}', f's_add_u32 s30, s30, {KVF(n)}',
              ('i', f'buffer_store_dwordx4 {vr(sent,4)}, v{x5}, s[8:11], s30 offen sc1', 'clr'),
              f's_lshl_b32 s31, s{S_RG}, 13', f's_add_u32 s31, s31, s{S_W2K}', f's_lshl_b32 s32, s{S_HP}, 7',
              's_add_u32 s31, s31, s32', f's_add_u32 s31, s31, {F2(n)}',
              f's_lshl_b32 s32, s{S_RBY}, 10', f's_lshl_b32 s33, s{S_CG}, 7', 's_add_u32 s32, s32, s33',
              f's_add_u32 s32, s32, {ST(n)}',
              ['s_mov_b64 exec, 0xff',
               ('i', f'buffer_store_dwordx4 {vr(sent,4)}, v{l16}, s[8:11], s32 offen sc1', 'clr'),
               's_mov_b64 exec, 0xf',
               ('i', f'buffer_store_dwordx4 {vr(sent,4)}, v{l16}, s[8:11], s31 offen sc1', 'clr'),
               's_mov_b64 exec, -1']]
        return [g1, g2]

    def front(self, L):
        A = self.A; o = self.opt
        T = 'AB'[L & 1]
        last = (L == self.nl - 1)
        PF = 7
        queue = []
        if True:
            emit_items(A, self.st_soff(L))
            self.poll(self.st_loads(L), [STR + k for k in range(8)], X1)
            self.stamp('st')
            A('s_barrier')
            for c in range(o['PRE']): emit_items(A, self.xchunk(c))
            emit_items(A, self.stats_items() + self.rec_toggle(T))
            queue = [self.xchunk(c) for c in range(o['PRE'], 40)]
        def xread(n):
            if n == 159: return []
            r, off = dsaddr(1024 * n)
            return [('i', f'ds_read_b128 {vr(RING+4*(n%8),4)}, v{r} offset:{off}', f'r{n}')]
        bar = o.get('BAR', {8: 16, 16: 24, 24: 32, 32: 40, 40: 56, 56: 72, 72: 88, 104: 128, 144: 160})
        bend = o.get('BEND', {1: 104, 2: 144})
        def xwait(q):
            if not q: return
            c = q // 4 - 1
            while any(isinstance(i, tuple) and i[2] == f'x{c}' for g in queue for i in g):
                emit_items(A, queue.pop(0))
            A.wait_vm(f'x{c}')
        A.wait_vm('x1'); A.wait_lg('sc'); self.stamp('x0'); A('s_barrier')
        for n in range(PF): emit_items(A, xread(n))
        gcount = 0
        for rb in range(4):
            ac = vr(ACC + 16 * (rb & 1), 16)
            fill = []
            if rb >= 2:
                rd, mm = self.kv(T, rb - 2)
                fill += rd
            if rb >= 1:
                ep = self.epilogue(T, rb - 1)
                if rb >= 2: ep = ep[:12] + mm + ep[12:]
                fill += ep
            scr = self.scread(rb)
            if rb == 0:
                fill += self.kvp_addr(T)
                if not last: fill += self.clears(L)
                fill += [self.srd_wo_items(T)]
            fill = scr[:1] + fill + scr[1:]
            if rb == 2: queue += self.wo_dma(0, 26)
            if rb == 3: queue += self.wo_dma(42, 66)
            rate = max(o['RMIN'], (cost(fill) * o['RX'] + o['DCOST'] * 40 / o['DMA_EVERY']) / 38); credit = -rate
            for s in range(41):
                n = 40 * rb + s
                if s < 40:
                    nn = n + PF
                    if nn in bar:
                        xwait(bar[nn]); A('s_barrier')
                        if nn == 104: queue += self.wo_dma(26, 42)
                        if nn == 144: queue += self.wo_dma(66, 82)
                    if nn < 160: emit_items(A, xread(nn))
                    if L == 0 and rb == 0 and s % 4 == 0: A.wait_vm(f'wA{s}')
                    if n == 159:
                        src = vr(XL, 4)
                    else:
                        if o['W2'] and n % 2 == 0 and n < 158: A.wait_lg(f'r{n+1}')
                        A.wait_lg(f'r{n}'); src = vr(RING + 4 * (n % 8), 4)
                    A(f'v_mfma_f32_32x32x16_bf16 {ac}, {wreg(T, s)}, {src}, {"0" if s == 0 else ac}')
                else:
                    emit_items(A, flat(fill)); fill = []
                    if L == 0 and rb == 0: A.wait_vm('wc')
                    A(f'v_mfma_f32_32x32x16_bf16 {ac}, {vr(WCR[T],4)}, {vr(NM,4)}, {ac}')
                    break
                gcount += 1
                credit += rate
                if queue and gcount % o['DMA_EVERY'] == 0:
                    g = queue.pop(0); emit_items(A, g); credit -= o['DCOST']
                if s >= 1:
                    while fill and credit >= 0.5 * cost(fill[0]):
                        it = fill.pop(0); p0 = A.pos; c0 = cost(it) - len(flat([it]))
                        emit_items(A, flat([it])); credit -= (A.pos - p0) + c0
            if rb >= 1:
                if rb in bend: xwait(bend[rb])
                if rb == 3:
                    for g in queue: emit_items(A, g)
                    queue = []
                    A.wait_vm('clr')
                A.wait_lg('rec'); A.wait_lg('kvr')
                self.stamp(f'b{rb}_')
                A('s_barrier')
        rd, mm = self.kv(T, 2)
        ep = self.epilogue(T, 3)
        if o.get('FINE'):
            self.stamp('ea'); emit_items(A, flat(rd)); self.stamp('eb'); emit_items(A, flat(ep[:11])); self.stamp('ec')
            h = 11 + (len(ep) - 11) // 2
            emit_items(A, flat(ep[11:h])); self.stamp('ed'); emit_items(A, flat(ep[h:])); self.stamp('ee'); emit_items(A, flat(mm)); self.stamp('ef')
            print(T, 'counts', len(flat(rd)), len(flat(ep[:11])), len(flat(ep[11:h])), len(flat(ep[h:])))
        else:
            emit_items(A, flat(rd + ep[:12] + mm + ep[12:]))
        A(f's_mul_i32 s34, s{S_HP}, {KVPS(L)}'); A(f's_add_u32 s34, s34, {KVP(L)}')
        A(f's_lshl_b32 s31, s{S_RG}, 7'); A('s_add_u32 s35, s34, s31')
        A(f'v_mov_b32 v{X5}, {OOB}')
        A.wait_lg()
        self.stamp('ep3_')
        A('s_barrier')
        rd, mm = self.kv(T, 3)
        emit_items(A, flat(rd + mm))
        for mt in range(len(TRA[T])):
            A(f'buffer_store_dwordx4 {vr(KC+4*mt,4)}, v{VKP[mt]}, s[8:11], s35 offen sc1')

    def front0(self):
        A = self.A; o = self.opt
        nm = self.name
        T = 'A'; L = 0
        acc = [ACC, ACC + 16, 192, 208]
        XA = TMP; XSA = TMP + 4; WA = TMP + 8; SA = TMP + 12; SR = KFA; CS = 224
        FE = KC; FA = KC + 8; MR = KC + 9
        CP = o.get('CP', 6)
        A(f's_lshl_b32 s90, s{S_HP}, 2'); A('s_add_u32 s90, s90, s3'); A('s_mul_i32 s90, s90, 40960')
        for k in range(8): A(f'v_mov_b32 v{SA+k}, 0')
        for k in range(4): A(f'v_mov_b32 v{NM+k}, 0x3f803f80')
        def xread(i):
            if i >= 160: return
            sg, s_, rb = i >> 4, (i >> 2) & 3, i & 3
            A(f'ds_read_b128 {vr(RING+4*(i%8),4)}, v{XA+s_} offset:{32768*(sg&1) + 16384 + 4096*rb}', tag=f'r{i}')
        def wread(s):
            sg, s_ = s >> 2, s & 3
            for jh in range(2):
                A(f'ds_read_b64_tr_b16 {ar(4*s+2*jh,2)}, v{WA} offset:{32768*(sg&1) + 4096*s_ + 1024*jh}', tag=f'w{s}')
        def sread(sg):
            for j in range(4):
                A(f'ds_read_b128 {vr(SR+4*j,4)}, v{XSA+j} offset:{32768*(sg&1) + 16384}', tag=f's{sg}')
        def dots():
            it = []
            for j in range(4):
                it += [f'v_dot2c_f32_bf16 v{SA+k}, 0x3f803f80, v{SR+4*j+k}' for k in range(4)]
                it += [f'v_dot2c_f32_bf16 v{SA+4+k}, v{SR+4*j+k}, v{SR+4*j+k}' for k in range(4)]
            return it
        def flloads():
            A(f'buffer_load_dwordx4 {vr(FE,4)}, v{FA}, s[8:11], s32 offen sc1', tag='fl')
            A(f'buffer_load_dwordx4 {vr(FE+4,4)}, v{FA}, s[8:11], s32 offen offset:16 sc1', tag='fl')
        def flchk():
            for k in (0, 2, 4, 6): A(f'v_xor_b32 v{FE+k}, s{S_M}, v{FE+k}')
            A(f'v_or3_b32 v{FE}, v{FE}, v{FE+2}, v{FE+4}'); A(f'v_or_b32 v{FE}, v{FE}, v{FE+6}')
            A(f'v_cmp_ne_u32 vcc, 0, v{FE}')
        misc = []
        xo = [f'v_and_b32 v{X1}, 15, v0', f'v_mul_u32_u24 v{X1}, 1280, v{X1}', f'v_lshrrev_b32 v{X2}, 4, v0',
              f'v_lshl_add_u32 v{X3}, v{X2}, 4, v{X1}', f'v_lshl_add_u32 v{X4}, v{X2}, 3, v{X1}',
              f's_and_b32 s30, s{S_RBY}, 7', 's_mul_i32 s30, s30, 20480', f's_mul_i32 s31, s{S_CG}, 160', 's_add_u32 s30, s30, s31',
              ('i', f'buffer_load_dwordx4 {vr(XOLD,4)}, v{X3}, s[12:15], s30 offen', 'xo'),
              ('i', f'buffer_load_dwordx4 {vr(XOLD+4,4)}, v{X3}, s[12:15], s30 offen offset:64', 'xo'),
              ('i', f'buffer_load_dwordx2 {vr(XOLD+8,2)}, v{X4}, s[12:15], s30 offen offset:128', 'xo')]
        PF = 7
        queue = []; fill = []
        wbq = [self.wloads('B', 4*g, 4) for g in range(6)] if self.nl > 1 else []
        for i in range(-PF, 160):
            nn = i + PF
            if nn < 160 and nn % 16 == 0:
                sg = nn >> 4
                for g in queue: emit_items(A, flat(g))
                emit_items(A, fill); fill = []
                if sg > 0:
                    if sg >= 2: A.wait_vm(f'g{sg}')
                    A.wait_lg()
                    if sg in (1, 3, 5, 7, 9): self.stamp(f's{sg}_')
                    A('s_barrier')
                    if sg % 2 == 0:
                        for k in range(9): A(f'v_xor_b32 v{TMP+k}, 0x10000, v{TMP+k}')
                wread(4 * sg)
                queue = self.ring(sg + 3) if sg + 3 < 10 else []
                if sg == 1:
                    A(f'v_mov_b32 v{MR}, {MW}')
                    A(f'ds_read_b32 v{MR}, v{MR}', tag='mw')
                    queue.append(flat(self.kvp_addr(T)))
                if sg == 2:
                    A(f'v_readfirstlane_b32 s{S_M}, v{MR}')
                    if self.nl > 1: queue += self.clears(0)
                if sg == 3: queue.append(xo)
                if sg == CP - 1:
                    A(f'v_lshlrev_b32 v{FA}, 5, v0'); A(f's_mov_b32 s32, {FL}')
                    flloads()
                if sg == CP:
                    A.wait_vm('fl')
                    sv = list(A.vm)
                    A(f's_branch {nm}_c1')
                    A.label(f'{nm}_c0')
                    A(f's_mov_b32 s32, {FL}')
                    A('s_cmp_lg_u32 s38, 2')
                    A(f's_cbranch_scc1 {nm}_c2')
                    A(f's_mov_b32 s30, {AR}'); A(f's_mov_b32 s31, {EC}')
                    A(f'buffer_load_dwordx4 {vr(FE,4)}, v{L16}, s[8:11], s30 offen sc1')
                    A.wait_vm()
                    A(f'v_mov_b32 v{FE+6}, v{FE+3}'); A(f'v_mov_b32 v{FE+4}, v{FE+2}'); A(f'v_mov_b32 v{FE+2}, v{FE+1}')
                    for k in range(4): A(f'v_mov_b32 v{FE+1+2*k}, s{S_M}')
                    A(f'buffer_store_dwordx4 {vr(FE,4)}, v{FA}, s[8:11], s31 offen sc1')
                    A(f'buffer_store_dwordx4 {vr(FE+4,4)}, v{FA}, s[8:11], s31 offen offset:16 sc1')
                    A.wait_vm()
                    A.label(f'{nm}_c2')
                    flloads()
                    A.wait_vm()
                    A.label(f'{nm}_c1')
                    flchk()
                    A(f's_sub_u32 s{S_BUD}, s{S_BUD}, 1')
                    A(f's_cbranch_scc1 {nm}_c3')
                    A('s_nop 4')
                    A(f's_cbranch_vccnz {nm}_c0')
                    A.label(f'{nm}_c3')
                    A(f's_max_i32 s{S_BUD}, s{S_BUD}, 0')
                    A.vm = sv
                    self.stamp('cp')
                    for k in (1, 3, 5, 7): A(f'v_xor_b32 v{FE+k}, s{S_XCC}, v{FE+k}')
                    A(f'v_or3_b32 v{FE}, v{FE+1}, v{FE+3}, v{FE+5}'); A(f'v_or_b32 v{FE}, v{FE}, v{FE+7}')
                    A(f'v_cmp_ne_u32 vcc, 0, v{FE}')
                    A(f's_lshl_b32 s30, s{S_RG}, 2')
                    A('s_lshr_b64 s[30:31], vcc, s30')
                    A('s_and_b32 s30, s30, 15')
                    A(f's_cselect_b32 s{S_SAME}, 0, 1')
                    if o.get('FORCE_SLOW'): A(f's_mov_b32 s{S_SAME}, 0')
                    if self.nl > 1:
                        wc = [f's_mul_i32 s30, s{S_HP}, 2560', 's_lshl_b32 s31, s3, 7', 's_add_u32 s30, s30, s31', f's_add_u32 s30, s30, {WC["B"]}',
                              f'v_and_b32 v{FA}, 31, v0', f'v_lshlrev_b32 v{FA}, 2, v{FA}']
                        wc += [('i', f'buffer_load_dword v{FE+k}, v{FA}, s[8:11], s30 offen offset:{512*k} sc1', 'wc') for k in range(5)]
                        queue.append(wc)
                if sg >= CP:
                    nw = 2 if sg < 9 else 6
                    queue += wbq[:nw]; wbq = wbq[nw:]
            if nn < 160:
                if nn % 4 == 2 and (nn & 15) < 12: wread((nn >> 2) + 1)
                xread(nn)
                if nn % 16 == 8: sread(nn >> 4)
            if i < 0: continue
            s_ = i >> 2; rb = i & 3
            if i % 16 == 5:
                A.wait_lg(f's{i>>4}'); fill += dots()
            if rb == 0: A.wait_lg(f'w{s_}')
            A.wait_lg(f'r{i}')
            A(f'v_mfma_f32_32x32x16_bf16 {vr(acc[rb],16)}, {wreg(T, s_)}, {vr(RING+4*(i%8),4)}, {"0" if s_ == 0 else vr(acc[rb],16)}')
            if rb == 1:
                A(f'v_mfma_f32_32x32x16_bf16 {vr(CS,16)}, {vr(NM,4)}, {wreg(T, s_)}, {"0" if s_ == 0 else vr(CS,16)}')
            if queue: emit_items(A, flat(queue.pop(0)))
            emit_items(A, fill[:8]); fill = fill[8:]
        for g in queue: emit_items(A, flat(g))
        emit_items(A, fill)
        A(f'v_add_f32 v{X1}, v{SA}, v{SA+1}'); A(f'v_add_f32 v{X2}, v{SA+2}, v{SA+3}')
        A(f'v_add_f32 v{X3}, v{SA+4}, v{SA+5}'); A(f'v_add_f32 v{X4}, v{SA+6}, v{SA+7}')
        A(f'v_add_f32 v{X1}, v{X1}, v{X2}'); A(f'v_add_f32 v{X3}, v{X3}, v{X4}')
        A(f'v_mov_b32 v{X2}, v{X1}'); A(f'v_mov_b32 v{X4}, v{X3}')
        A(f'v_permlane32_swap_b32 v{X1}, v{X2}'); A(f'v_permlane32_swap_b32 v{X3}, v{X4}')
        A(f'v_add_f32 v{X2}, v{X1}, v{X2}')
        A(f'v_add_f32 v{X3}, v{X3}, v{X4}')
        A(f'v_mul_f32 v{X1}, 0x3acccccd, v{X2}')
        A(f'v_fma_f32 v{X3}, -v{X1}, v{X2}, v{X3}')
        A(f'v_max_f32 v{X3}, 0, v{X3}')
        A(f'v_cvt_pk_bf16_f32 v{X5}, -v{X1}, -v{X1}')
        A('s_lshl_b32 s30, s3, 8')
        A(f'v_add_u32 v{X1}, s30, v{VSC}')
        st = self.stats_items()
        emit_items(A, st[st.index(f'v_mul_f32 v{X3}, 0x3acccccd, v{X3}'):])
        def split(src, dst):
            A(f'v_cvt_pk_bf16_f32 v{dst}, v{src}, v{src}')
            A(f'v_lshlrev_b32 v{dst+1}, 16, v{dst}')
            A(f'v_sub_f32 v{src}, v{src}, v{dst+1}')
            A(f'v_cvt_pk_bf16_f32 v{dst+1}, v{src}, v{src}')
            A(f'v_and_b32 v{dst+1}, 0xffff0000, v{dst+1}')
            A(f'v_sub_f32 v{src}, v{src}, v{dst+1}')
            A(f'v_and_b32 v{dst}, 0xffff, v{dst}')
            A(f'v_or_b32 v{dst}, v{dst}, v{dst+1}')
            A(f'v_mov_b32 v{dst+2}, 0')
            A(f'v_cvt_pk_bf16_f32 v{dst+1}, v{src}, v{dst+2}')
            A(f'v_mov_b32 v{dst+3}, 0')
            A(f'v_cmp_gt_u32 vcc, 32, v0')
            A(f'v_cndmask_b32 v{dst}, 0, v{dst}, vcc')
            A(f'v_cndmask_b32 v{dst+1}, 0, v{dst+1}, vcc')
        split(CS, WCR['A'])
        emit_items(A, self.srd_wo_items(T) + [f's_mov_b32 s18, {WOL + 102400}'])
        A.wait_lg()
        self.stamp('m_')
        A('s_barrier')
        NMx = TMP + 12
        for rb in range(4): A(f'ds_read_b32 v{NMx+rb}, v{VSC} offset:{256*rb}', tag='nm')
        def rread(rb):
            b = rb & 1
            return [('i', f'ds_read_b32 v{VR[b]}, v{VSC} offset:{256*rb+4}', 'scr'), ('wlg', 'scr'), f'v_mul_f32 v{VRL[b]}, 0x3fb8aa3b, v{VR[b]}']
        emit_items(A, rread(0)[:1] + rread(1) + rread(0)[2:])
        NB = [NM, KFA]
        for rb in range(4):
            for k in range(4): A(f'v_mov_b32 v{NB[rb&1]+k}, v{NMx+rb}')
            A(f'v_mfma_f32_32x32x16_bf16 {vr(acc[rb],16)}, {vr(WCR[T],4)}, {vr(NB[rb&1],4)}, {vr(acc[rb],16)}')
        if self.nl > 1:
            A.wait_vm('wc')
            A(f'v_add_f32 v{FE}, v{FE}, v{FE+1}'); A(f'v_add_f32 v{FE+2}, v{FE+2}, v{FE+3}')
            A(f'v_add_f32 v{FE}, v{FE}, v{FE+4}'); A(f'v_add_f32 v{FE}, v{FE}, v{FE+2}')
            split(FE, WCR['B'])
        wq = self.wo_dma(0, 82)
        for rb in range(4):
            ep = self.epilogue(T, rb, ac=acc[rb], kadd=KR2 if rb >= 2 else 0)
            if rb < 2: ep += rread(rb + 2)
            for k, it in enumerate(ep):
                emit_items(A, flat([it]))
                if wq and k % o.get('WOE', 6) == 3: emit_items(A, wq.pop(0))
        for g in wq: emit_items(A, g)
        if self.nl > 1 and o.get('WB2', 0) == 0:
            for g in range(6, 10): emit_items(A, self.wloads('B', 4*g, 4))
        A(f's_mul_i32 s34, s{S_HP}, {KVPS(L)}'); A(f's_add_u32 s34, s34, {KVP(L)}')
        A(f's_lshl_b32 s31, s{S_RG}, 7'); A('s_add_u32 s35, s34, s31')
        A(f'v_mov_b32 v{X5}, {OOB}')
        TB = TMP; TA2 = TMP + 4; F = ACC
        A(f's_mov_b32 s31, {KR2}')
        A('s_bitcmp1_b32 s3, 0')
        for rb in range(4):
            A(f's_cselect_b32 s30, {PQ(rb)-KREC[rb&1]}, {"s31" if rb >= 2 else "0"}')
            A(f'v_add_u32 v{TB+rb}, s30, v{TRB0}')
        for mt in range(2): A(f'v_add_u32 v{TA2+mt}, s31, v{TRA[T][mt]}')
        A.wait_lg()
        self.stamp('ep3_')
        A('s_barrier')
        for rb in range(4):
            f = F + 12 * rb
            for jh in range(2):
                A(f'ds_read_b64_tr_b16 {vr(f+2*jh,2)}, v{TB+rb} offset:{KREC[rb&1]+16*jh*RS}', tag=f'kv{rb}')
            for mt in range(2):
                r = TRA[T][mt] if rb < 2 else TA2 + mt
                for jh in range(2):
                    A(f'ds_read_b64_tr_b16 {vr(f+4+4*mt+2*jh,2)}, v{r} offset:{KREC[rb&1]+16*jh*RS}', tag=f'kv{rb}')
        for rb in range(4):
            f = F + 12 * rb
            A.wait_lg(f'kv{rb}')
            for mt in range(2):
                c = '0' if rb == 0 else vr(KC + 4 * mt, 4)
                A(f'v_mfma_f32_16x16x32_bf16 {vr(KC+4*mt,4)}, {vr(f+4+4*mt,4)}, {vr(f,4)}, {c}')
        for mt in range(2):
            A(f'buffer_store_dwordx4 {vr(KC+4*mt,4)}, v{VKP[mt]}, s[8:11], s35 offen sc1')

    def layer(self, L):
        A = self.A; o = self.opt
        self.L = L
        T = 'AB'[L & 1]
        NG = 6 if T == 'A' else 10
        NR = 6 * NG
        last = (L == self.nl - 1)
        final = (L == 3)
        PF = 7
        if L == 0: self.front0()
        else: self.front(L)
        self.stamp('kvp')
        wo1 = 82 if L == 0 else o['WO1']
        for g in self.wo_dma(82, wo1): emit_items(A, g)
        QF = RING; KF = TMP; RD = 104; GQ = 136
        nks = 3 if T == 'B' else 2
        for hd in range(2):
            for ks in range(nks):
                q = QF + 12 * hd + 4 * ks
                if ks < nks - 1:
                    A(f'ds_read_b128 {vr(q,4)}, v{VPQ} offset:{128*hd+16*ks}', tag='qf')
                else:
                    A(f'ds_read_b64 {vr(q,2)}, v{VPQ} offset:{128*hd+16*ks}', tag='qf')
                    A(f'v_mov_b32 v{q+2}, 0'); A(f'v_mov_b32 v{q+3}, 0')
        A('s_lshl_b32 s30, s3, 4'); A(f's_add_u32 s30, s30, s{S_RG}')
        A('s_lshl_b32 s31, s30, 11'); A('s_add_u32 s34, s34, s31')
        A(f's_lshl_b32 s35, s{S_HP}, 13'); A(f's_add_u32 s35, s35, {KVF(L)}')
        A('s_lshl_b32 s31, s30, 7'); A('s_add_u32 s36, s35, s31')
        VO = PK
        A(f'v_and_b32 v{X1}, 7, v0'); A(f'v_lshrrev_b32 v{X2}, 5, v0')
        A(f'v_lshlrev_b32 v{X1}, 3, v{X1}'); A(f'v_lshl_add_u32 v{X1}, v{X2}, 2, v{X1}')
        A(f'v_bfe_u32 v{X2}, v0, 3, 2'); A(f'v_lshl_add_u32 v{VO}, v{X2}, 17, v{X1}')
        A(f'v_add_u32 v{VO+3}, {4*KVC}, v{VO}')
        A(f'v_lshrrev_b32 v{X1}, 2, v0'); A(f'v_and_b32 v{X2}, 3, v0'); A(f'v_lshlrev_b32 v{X2}, 4, v{X2}')
        A(f'v_lshl_add_u32 v{X1}, v{X1}, 7, v{X2}')
        A(f'v_cmp_gt_u32 vcc, {NR}, v0')
        A(f'v_cndmask_b32 v{VO+1}, v{X5}, v{X1}, vcc')
        A(f's_mul_i32 s31, s3, {16*NR}')
        A('s_add_u32 s35, s35, s31'); A('s_add_u32 s35, s35, s31')
        A(f's_lshr_b32 s32, s{S_RG}, 1'); A('s_lshl_b32 s32, s32, 17'); A('s_add_u32 s35, s35, s32')
        A(f'v_add_u32 v{X1}, s31, v{L16}'); A(f'v_add_u32 v{X2}, 0x1000, v{L16}')
        A(f'v_cndmask_b32 v{VO+2}, v{X2}, v{X1}, vcc')
        for hd in range(2):
            k = KF + 12 * hd + 4 * (nks - 1)
            A(f'v_mov_b32 v{k+2}, 0'); A(f'v_mov_b32 v{k+3}, 0')
        lsk = self.lab('nored')
        A(f's_cmp_ge_u32 s30, {NR}')
        A(f's_cbranch_scc1 {lsk}')
        self.poll([f'buffer_load_dwordx4 {vr(RD,4)}, v{L16}, s[8:11], s34 offen sc1',
                   f'buffer_load_dwordx4 {vr(RD+4,4)}, v{L16}, s[8:11], s34 offen offset:1024 sc1'], [RD + k for k in range(8)], X1, sleep=o.get('SL1', 0), pre=o.get('PRE1', 0))
        for k in range(4): A(f'v_add_f32 v{RD+k}, v{RD+k}, v{RD+4+k}')
        A(f'v_permlane32_swap_b32 v{RD}, v{RD+2}')
        A(f'v_permlane32_swap_b32 v{RD+1}, v{RD+3}')
        A(f'v_add_f32 v{RD}, v{RD}, v{RD+2}')
        A(f'v_add_f32 v{RD+1}, v{RD+1}, v{RD+3}')
        A(f'v_add_f32_dpp v{RD+2}, v{RD}, v{RD} row_ror:8 row_mask:0xf bank_mask:0xf')
        A(f'v_add_f32_dpp v{RD+3}, v{RD+1}, v{RD+1} row_ror:8 row_mask:0xf bank_mask:0xf')
        A(f'v_mov_b32 v{RD}, v{RD+2}'); A(f'v_mov_b32 v{RD+1}, v{RD+3}')
        A(f'v_permlane16_swap_b32 v{RD}, v{RD+2}')
        A(f'v_permlane16_swap_b32 v{RD+1}, v{RD+3}')
        A(f'v_add_f32 v{RD}, v{RD}, v{RD+2}')
        A(f'v_add_f32 v{RD+1}, v{RD+1}, v{RD+3}')
        A(f'v_cvt_pk_bf16_f32 v{RD}, v{RD}, v{RD+1}')
        A(f'buffer_store_dword v{RD}, v{VO}, s[8:11], s36 offen sc1')
        A(f'buffer_store_dword v{RD}, v{VO+3}, s[8:11], s36 offen sc1')
        A.label(lsk)
        self.stamp('red')
        if o.get('RBAR', 1): A('s_barrier')
        for g in self.wo_dma(wo1, 100): emit_items(A, g)
        self.poll([f'buffer_load_dwordx4 {vr(RD+4,4)}, v{VO+1}, s[8:11], s35 offen sc1'], [RD + 4 + k for k in range(4)], X1, sleep=o.get('SL2', 0), pre=o.get('PRE2', 0))
        A(f'ds_write_b128 v{VO+2}, {vr(RD+4,4)}')
        A(f'v_bfe_u32 v{X1}, v0, 4, 1'); A(f'v_mul_u32_u24 v{X1}, 20480, v{X1}')
        A(f'v_and_b32 v{X2}, 15, v0'); A(f'v_lshl_add_u32 v{X1}, v{X2}, 4, v{X1}')
        A(f'v_lshrrev_b32 v{X2}, 5, v0')
        A(f'v_lshl_add_u32 v{VO}, v{X2}, 8, v{X1}')
        A(f'v_lshl_add_u32 v{VO+1}, v{X2}, 3, v{X1}')
        A.wait_lg()
        self.stamp('kvf')
        A('s_barrier')
        for hd in range(2):
            for ks in range(nks):
                k = KF + 12 * hd + 4 * ks
                o8 = 192 * NG * hd + 128 * ks
                A(f'ds_read_b64 {vr(k,2)}, v{VKA[T]} offset:{o8}', tag=f'kf{hd}{ks}')
                if ks < nks - 1:
                    A(f'ds_read_b64 {vr(k+2,2)}, v{VKA[T]} offset:{o8+64}', tag=f'kf{hd}{ks}')
        A(f's_lshl_b32 s30, s{S_RG}, 2'); A('s_add_u32 s30, s30, s3')
        A('s_mul_i32 s31, s30, 40960'); A(f's_mul_i32 s32, s{S_HP}, 1280'); A('s_add_u32 s31, s31, s32')
        A(f's_add_u32 s31, s31, {O(L)}')
        A('s_lshl_b32 s30, s30, 11'); A(f's_lshl_b32 s32, s{S_HP}, 7'); A('s_add_u32 s30, s30, s32')
        A(f's_add_u32 s30, s30, {F2(L)}')
        for ks in range(nks):
            for hd in range(2):
                d = vr(ACC + 16 * hd, 16)
                A.wait_lg(f'kf{hd}{ks}')
                A(f'v_mfma_f32_32x32x16_bf16 {d}, {vr(KF+12*hd+4*ks,4)}, {vr(QF+12*hd+4*ks,4)}, {"0" if ks == 0 else d}')
        OPK = 140
        for hd in range(2):
            d = ACC + 16 * hd
            A(f'v_add_f32 v{d+10}, s{S_EPS}, v{d+10}')
            A(f'v_rcp_f32 v{d+10}, v{d+10}')
            A(f'v_mov_b32 v{d+11}, v{d+10}')
            for k in range(0, 10, 2):
                A(f'v_pk_mul_f32 {vr(d+k,2)}, {vr(d+k,2)}, {vr(d+10,2)}')
            for k in range(5):
                dst = OPK + 4 * hd + k if k < 4 else OPK + 8 + hd
                A(f'v_cvt_pk_bf16_f32 v{dst}, v{d+2*k}, v{d+2*k+1}')
        self.fstore([f'buffer_store_dwordx4 {vr(OPK,4)}, v{VO}, s[8:11], s31 offen',
                     f'buffer_store_dwordx4 {vr(OPK+4,4)}, v{VO}, s[8:11], s31 offen offset:512',
                     f'buffer_store_dwordx2 {vr(OPK+8,2)}, v{VO+1}, s[8:11], s31 offen offset:1024'])
        OF = 48; WR = 128; YA = 168
        def woread(f):
            r, off = dsaddr(WOL + 1024 * f)
            return ('i', f'ds_read_b128 {vr(WR+4*(f%10),4)}, v{r} offset:{off}', f'wr{f}')
        for k in range(10):
            A(f'v_lshlrev_b32 v{YA+2*k}, 16, v{XOLD+k}')
            A(f'v_and_b32 v{YA+2*k+1}, 0xffff0000, v{XOLD+k}')
        A(f'v_and_b32 v{T0}, 15, v0'); A(f'v_lshlrev_b32 v{T0}, 7, v{T0}')
        A(f's_lshr_b32 s32, s{S_RBY}, 1'); A('s_lshl_b32 s32, s32, 11'); A(f's_add_u32 s32, s32, {F2(L)}')
        A(f's_mul_i32 s33, s{S_RBY}, 20480'); A(f's_add_u32 s33, s33, {O(L)}')
        A.wait_vm()
        A('s_mov_b64 exec, 1')
        self.fstore([f'buffer_store_dword v{L16}, off, s[8:11], s30'])
        A('s_mov_b64 exec, -1')
        self.stamp('f2')
        for f in range(9): emit_items(A, [woread(f)])
        self.poll([f'buffer_load_dword v{T1}, v{T0}, s[8:11], s32 offen sc1'], [T1], None)
        self.stamp('e2')
        for kk in range(20):
            if kk % 4 == 0 and kk: A('s_add_u32 s33, s33, 4096')
            A(f'buffer_load_dwordx4 {vr(OF+4*kk,4)}, v{L16}, s[8:11], s33 offen offset:{1024*(kk%4)} sc1', tag=f'o{kk}')
        if final:
            A('s_mov_b32 s16, s78'); A('s_and_b32 s17, s79, 0xffff'); A(f's_mov_b32 s18, {2048*640*2}')
            A(f'v_and_b32 v{T0}, 15, v0'); A(f'v_mul_u32_u24 v{T0}, 1280, v{T0}'); A(f'v_lshrrev_b32 v{T1}, 4, v0')
            A(f'v_lshl_add_u32 v{VR[0]}, v{T1}, 4, v{T0}'); A(f'v_lshl_add_u32 v{VR[1]}, v{T1}, 3, v{T0}')
            A(f's_mul_i32 s30, s{S_RBY}, 20480'); A(f's_mul_i32 s31, s{S_CG}, 160'); A('s_add_u32 s30, s30, s31')
        else:
            if DBG[0] or L == 0: self.srd_x(L + 1)
            A(f's_bfe_u32 s30, s{S_RBY}, 0x20001'); A('s_mul_i32 s30, s30, 40960'); A(f's_mul_i32 s31, s{S_CG}, 5120')
            xa = [(VX, 0), (VX, 2048), (VX3, 0)]
            if T == 'B':
                A(f's_lshl_b32 s32, s{S_ROT}, 12'); A('s_sub_u32 s31, s31, s32'); A('s_add_u32 s32, s31, 40960'); A('s_min_u32 s31, s31, s32')
                A(f'v_add_u32 v{VR[0]}, s31, v{VX}'); A(f'v_add_u32 v{VR[1]}, 0x800, v{VR[0]}'); A(f'v_add_u32 v{VRL[0]}, s31, v{VX3}')
                xa = [(VR[0], 0), (VR[1], 0), (VRL[0], 0)]
                for r, _ in xa:
                    A(f'v_subrev_u32 v{T0}, 40960, v{r}'); A(f'v_min_u32 v{r}, v{r}, v{T0}')
            else: A('s_add_u32 s30, s30, s31')
            A(f's_lshl_b32 s31, s{S_RBY}, 10'); A(f's_lshl_b32 s32, s{S_CG}, 7'); A('s_add_u32 s31, s31, s32')
            A(f's_add_u32 s31, s31, {ST(L+1)}')
            A(f'v_lshlrev_b32 v{T0}, 3, v0')
        for kk in range(20):
            A.wait_vm(f'o{kk}')
            if kk == 0: self.stamp('o0_')
            for mt in range(5):
                f = 5 * kk + mt
                if f + 9 < 100: emit_items(A, [woread(f + 9)])
                A.wait_lg(f'wr{f}')
                A(f'v_mfma_f32_16x16x32_bf16 {vr(YA+4*mt,4)}, {vr(WR+4*(f%10),4)}, {vr(OF+4*kk,4)}, {vr(YA+4*mt,4)}')
        self.stamp('y')
        for k in range(10):
            A(f'v_cvt_pk_bf16_f32 v{XOLD+k}, v{YA+2*k}, v{YA+2*k+1}')
        if final:
            A(f'buffer_store_dwordx4 {vr(XOLD,4)}, v{VR[0]}, s[16:19], s30 offen')
            A(f'buffer_store_dwordx4 {vr(XOLD+4,4)}, v{VR[0]}, s[16:19], s30 offen offset:64')
            A(f'buffer_store_dwordx2 {vr(XOLD+8,2)}, v{VR[1]}, s[16:19], s30 offen offset:128')
            return
        self.fstore([f'buffer_store_dwordx4 {vr(XOLD,4)}, v{xa[0][0]}, s[12:15], s30 offen',
                     f'buffer_store_dwordx4 {vr(XOLD+4,4)}, v{xa[1][0]}, s[12:15], s30 offen offset:{xa[1][1]}',
                     f'buffer_store_dwordx2 {vr(XOLD+8,2)}, v{xa[2][0]}, s[12:15], s30 offen'])
        U = OF; a = OF + 20; b = OF + 22; c = OF + 24
        for k in range(10):
            A(f'v_lshlrev_b32 v{U+2*k}, 16, v{XOLD+k}')
            A(f'v_and_b32 v{U+2*k+1}, 0xffff0000, v{XOLD+k}')
        A(f'v_pk_add_f32 {vr(a,2)}, {vr(U,2)}, {vr(U+2,2)}')
        A(f'v_pk_add_f32 {vr(b,2)}, {vr(U+4,2)}, {vr(U+6,2)}')
        for k in range(4, 10, 2):
            A(f'v_pk_add_f32 {vr(a,2)}, {vr(a,2)}, {vr(U+2*k,2)}')
            A(f'v_pk_add_f32 {vr(b,2)}, {vr(b,2)}, {vr(U+2*k+2,2)}')
        A(f'v_pk_add_f32 {vr(a,2)}, {vr(a,2)}, {vr(b,2)}')
        def allsum(x, y):
            A(f'v_mov_b32 v{y}, v{x}')
            A(f'v_permlane16_swap_b32 v{x}, v{y}')
            A(f'v_add_f32 v{x}, v{x}, v{y}')
            A(f'v_mov_b32 v{y}, v{x}')
            A(f'v_permlane32_swap_b32 v{x}, v{y}')
            A(f'v_add_f32 v{x}, v{x}, v{y}')
        A(f'v_add_f32 v{a}, v{a}, v{a+1}')
        allsum(a, a + 1)
        A(f'v_mul_f32 v{a}, 0x3c4ccccd, v{a}')
        A(f'v_mul_f32 v{b}, -1.0, v{a}')
        A(f'v_mul_f32 v{b+1}, -1.0, v{a}')
        for k in range(10):
            A(f'v_pk_add_f32 {vr(U+2*k,2)}, {vr(U+2*k,2)}, {vr(b,2)}')
        A(f'v_pk_mul_f32 {vr(b,2)}, {vr(U,2)}, {vr(U,2)}')
        A(f'v_pk_mul_f32 {vr(c,2)}, {vr(U+2,2)}, {vr(U+2,2)}')
        for k in range(2, 10, 2):
            A(f'v_pk_fma_f32 {vr(b,2)}, {vr(U+2*k,2)}, {vr(U+2*k,2)}, {vr(b,2)}')
            A(f'v_pk_fma_f32 {vr(c,2)}, {vr(U+2*k+2,2)}, {vr(U+2*k+2,2)}, {vr(c,2)}')
        A(f'v_pk_add_f32 {vr(b,2)}, {vr(b,2)}, {vr(c,2)}')
        A(f'v_add_f32 v{a+1}, v{b}, v{b+1}')
        allsum(a + 1, b)
        A(f'v_mov_b32 v{VC+3}, 0x3f80')
        for k in range(4): A(f'v_mov_b32 v{SENT+k}, -1')
        A.wait_vm()
        A('s_mov_b64 exec, 0xffff')
        self.fstore([f'buffer_store_dwordx2 {vr(a,2)}, v{T0}, s[8:11], s31 offen'])
        A('s_mov_b64 exec, -1')
        self.stamp('xs')

    def gen(self):
        self.prologue()
        for L in range(self.nl): self.layer(L)
        A = self.A
        A.prof_end()
        A.label(f'{self.name}_END')
        A('s_endpgm')
        return A.text()

def make(path, prof=False, nl=4, dbg=False, sl=(0, 1, 2, 3), opt=None):
    import gen, json, emit
    DBG[0] = dbg
    p = P('pk', prof=1 if prof else None, nl=nl, stamp_layers=sl, opt=opt)
    ks = [('pk_kernel', p.gen(), 512, 256)]
    ls = [('pk_kernel', 256, P_LDS)]
    gen.build(ks, ls, path)
    if prof: json.dump(emit.PROF_NAMES, open(path + '.names', 'w'))
    print('nops', p.A.nops, 'lines', len(p.A.lines))

if __name__ == '__main__':
    import sys
    kw = eval('dict(' + (sys.argv[2] if len(sys.argv) > 2 else '') + ')')
    make(sys.argv[1], **kw)
```

```python
from emit import *
from lay2 import *
def emit_items(A, items):
    for it in items:
        if isinstance(it, str): A(it)
        elif it[0] == 'i': A(it[1], tag=it[2])
        elif it[0] == 'wvm': A.wait_vm(it[1])
        elif it[0] == 'wlg': A.wait_lg(it[1])
        elif it[0] == 'fn': it[1]()
        else: raise ValueError(it)

P_LDS = 163840
RS = 288
KREC = [0, 9216]
def PQ(rb): return 18432 + 9216 * rb
WOL = 55296
SC = 162816
LANE = 0; L16 = 1
VR = [2, 3]; VRL = [4, 5]; T0 = 6; T1 = 7
NM = 8; WCR = {'A': 12, 'B': 16}; XOLD = 20
DS1 = 30; DS2 = 31; REC0 = 32; REC = 33
TRA = {'B': [34, 35, 36], 'A': [37, 38]}; TRB0 = 39; TRB = 40
VSC = 41; VSTP = 42; VX = 43; VX3 = 44; VKA = {'A': 45, 'B': 46}; VPQ = 47
ACC = 48; RING = 80; TMP = 112; X1 = 132; X2 = 133; X3 = 134; X4 = 135; X5 = 136; X6 = 137
PK = 138; VC = 148; KFA = 152; KFB = 164; KC = 168; XL = 180; SENT = 184; STR = 112
S_RG = 20; S_HP = 21; S_BUD = 22; S_SAME = 23; S_EPS = 24; S_W2K = 25; S_XCC = 26
S_RBY = 27; S_CG = 28; S_W1K = 37
VKP = [188, 189, 190]
S_N = 80; S_M = 81; VXD = 244; VWD = 245
S_LO = 84; S_EP2 = 85; S_E = 86; S_EV = 88; S_ROT = 29
MW = 131072
KR2 = WOL + 82 * 1024
BUDGET = 400000

def cost(it):
    if isinstance(it, str):
        if it.startswith(('v_exp', 'v_rcp', 'v_sqrt', 'v_rsq')): return 2
        if it.startswith('v_mfma'): return 4
        return 1
    if isinstance(it, list): return sum(cost(x) for x in it)
    return 1

def flat(items):
    out = []
    for it in items:
        if isinstance(it, list): out += flat(it)
        else: out.append(it)
    return out

def wreg(T, s):
    if T == 'A': return ar(4 * s, 4)
    return ar(160 + 4 * s, 4) if s < 24 else vr(192 + 4 * (s - 24), 4)

def dsaddr(off):
    return [L16, DS1, DS2][off >> 16], off & 0xffff

class P:
    def __init__(self, name, prof=None, nl=4, stamp_layers=(0, 1, 2, 3), opt=None):
        self.name = name; self.nl = nl; self.sl = stamp_layers
        self.A = Asm(); self.A.prof = prof
        self.nlab = 0
        self.opt = dict(FB=4, PRE=9, DMA_EVERY=3, YFB=1, MASK=1, WO1=100, W2=1, DCOST=2, RMIN=2.0, RX=1.1)
        if opt: self.opt.update(opt)
        self.L = 0
        self.wsc = ' sc1' if self.opt.get('WSC', 1) else ''
    def lab(self, s):
        self.nlab += 1
        return f'{self.name}_{s}{self.nlab}'
    def stamp(self, n):
        if self.L in self.sl: self.A.stamp(f'{n}{self.L}')
    def poll(self, loads, regs, tmp, sleep=0, pre=0):
        A = self.A
        lp, lg = self.lab('poll'), self.lab('go')
        A('s_nop 4')
        if pre: A(f's_sleep {pre}')
        if sleep:
            l1 = self.lab('p1')
            A(f's_branch {l1}')
            A.label(lp)
            A(f's_sleep {sleep}')
            A.label(l1)
        else:
            A.label(lp)
        for t in loads: A(t)
        A.wait_vm()
        r = list(regs)
        if len(r) == 1: m = r[0]
        else:
            m = tmp
            if len(r) == 2:
                A(f'v_max_u32 v{m}, v{r[0]}, v{r[1]}'); r = []
            else:
                A(f'v_max3_u32 v{m}, v{r[0]}, v{r[1]}, v{r[2]}'); r = r[3:]
            while len(r) >= 2:
                A(f'v_max3_u32 v{m}, v{m}, v{r[0]}, v{r[1]}'); r = r[2:]
            if r: A(f'v_max_u32 v{m}, v{m}, v{r[0]}')
        A(f'v_cmp_eq_u32 vcc, -1, v{m}')
        A(f's_sub_u32 s{S_BUD}, s{S_BUD}, 1')
        A(f's_cbranch_scc1 {lg}')
        if self.opt['MASK']: A('s_mov_b64 exec, vcc')
        A(f's_cbranch_vccnz {lp}')
        A.label(lg)
        if self.opt['MASK']: A('s_mov_b64 exec, -1')
        A(f's_max_i32 s{S_BUD}, s{S_BUD}, 0')
    def fstore(self, stores, tag=None):
        A = self.A
        ls, lj = self.lab('slow'), self.lab('join')
        A(f's_cmp_eq_u32 s{S_SAME}, 0')
        A(f's_cbranch_scc1 {ls}')
        n0 = len(A.lines)
        for t in stores: A(t, tag=tag)
        body = A.lines[n0:]
        A(f's_branch {lj}')
        A.label(ls)
        for ln in body:
            A.raw(ln + ' sc1' if 'buffer_store' in ln else ln)
        A.raw('    s_nop 0')
        A.label(lj)
    def srd_x(self, L):
        A = self.A
        A(f's_mul_i32 s30, s{S_RG}, 163840')
        A(f's_add_u32 s30, s30, {X(L)}')
        A('s_add_u32 s12, s4, s30')
        A('s_addc_u32 s13, s5, 0')
        A('s_and_b32 s13, s13, 0xffff')
    def srd_wo_items(self, T):
        return [f's_mul_i32 s30, s{S_CG}, 102400', f's_add_u32 s30, s30, {WOF[T] - WOL}',
                's_add_u32 s16, s4, s30', 's_addc_u32 s17, s5, 0', 's_and_b32 s17, s17, 0xffff']

    def ring(self, sg):
        sl = 32768 * (sg & 3)
        gs = []
        for t in range(4):
            gs.append([f's_add_u32 s31, s7, {15360*t}', f's_add_u32 m0, s100, {sl + 1024*t}',
                       ('i', f'buffer_load_dwordx4 v{VWD}, s[16:19], s31 offen lds', f'g{sg}')])
            gs.append([f's_add_u32 s31, s6, {40960*t}', f's_add_u32 m0, s{S_W1K}, {sl + 16384 + 4096*t}',
                       ('i', f'buffer_load_dwordx4 v{VXD}, s[12:15], s31 offen lds', f'g{sg}')])
        gs[-1] += [f's_cmp_eq_u32 s{S_ROT}, {9 - sg}', 's_cselect_b32 s31, -9, 1', 's_lshl_b32 s31, s31, 7', 's_add_u32 s6, s6, s31',
                   's_mul_i32 s31, s31, 1920', 's_add_u32 s7, s7, s31']
        return gs
    def prologue(self):
        import kz2 as kz
        A = self.A; o = self.opt
        nm = self.name
        A('s_load_dwordx2 s[4:5], s[0:1], 72')
        A('s_load_dwordx16 s[64:79], s[0:1], 0')
        A(f's_memrealtime s[{S_N}:{S_N+1}]')
        A('s_cmp_ge_u32 s2, 256')
        A(f's_cbranch_scc1 {nm}_END')
        A.stamp('rstart', real=True); A.stamp('start')
        if o.get('PFC', 0):
            n = o['PFC']
            A.raw('    s_getpc_b64 s[30:31]')
            A.label(f'{nm}_pcb')
            A('s_lshr_b32 s32, s2, 3'); A(f's_mul_i32 s32, s32, {4*n*64}')
            A('v_lshrrev_b32 v2, 6, v0'); A('v_and_b32 v1, 63, v0'); A(f'v_min_u32 v3, {n-1}, v1')
            A(f'v_mul_u32_u24 v4, {n}, v2'); A('v_add_lshl_u32 v3, v3, v4, 6'); A('v_add_u32 v3, s32, v3')
            A.raw(f'    v_min_u32 v3, {nm}_END-{nm}_pcb, v3')
            A('global_load_dword v246, v3, s[30:31]')
            A.vm = []
        A('v_lshrrev_b32 v2, 6, v0')
        A('v_and_b32 v1, 63, v0')
        A('v_readfirstlane_b32 s3, v2')
        A('s_and_b32 s30, s2, 7')
        A('s_lshr_b32 s31, s2, 3')
        A(f's_lshl_b32 s{S_RG}, s30, 1')
        A('s_and_b32 s30, s31, 1')
        A(f's_add_u32 s{S_RG}, s{S_RG}, s30')
        A(f's_lshr_b32 s{S_HP}, s31, 1')
        A('s_mov_b32 s10, %d' % WS_SIZE); A('s_mov_b32 s11, 0x00020000')
        A(f's_lshl_b32 s83, s{S_RG}, 4'); A(f's_add_u32 s83, s83, s{S_HP}'); A('s_lshl_b32 s83, s83, 3')
        A('s_lshr_b32 s39, s83, 1'); A(f's_add_u32 s39, s39, {AR}')
        A(f's_lshr_b32 s{S_CG}, s{S_HP}, 1')
        A(f's_and_b32 s30, s{S_HP}, 1')
        A('s_lshl_b32 s30, s30, 2')
        A(f's_lshl_b32 s{S_RBY}, s{S_RG}, 3')
        A(f's_add_u32 s{S_RBY}, s{S_RBY}, s30')
        A(f's_add_u32 s{S_RBY}, s{S_RBY}, s3')
        A(f's_lshl_b32 s{S_W2K}, s3, 11')
        A(f's_lshl_b32 s{S_W1K}, s3, 10')
        A(f's_mov_b32 s{S_BUD}, {BUDGET}')
        A(f's_mov_b32 s{S_EPS}, 0x358637bd')
        A(f's_getreg_b32 s{S_XCC}, hwreg(HW_REG_XCC_ID, 0, 16)')
        A('s_mov_b32 s14, 163840'); A('s_mov_b32 s15, 0x00020000')
        A('s_mov_b32 s19, 0x00020000')
        A(f's_mul_i32 s30, s{S_RG}, 163840')
        A(f's_mul_i32 s31, s{S_HP}, 80')
        A(f's_sub_u32 s18, {640*1920*2}, s31')
        A('s_mul_i32 s6, s3, 10240'); A('s_mul_i32 s7, s3, 61440'); A('s_lshl_b32 s100, s3, 12')
        A(f's_lshr_b32 s32, s{S_RG}, 1'); A('s_sub_u32 s33, s32, 5'); A('s_min_u32 s32, s32, s33'); A('s_mov_b32 s34, s32')
        A(f's_and_b32 s33, s{S_RG}, 1'); A('s_mul_i32 s33, s33, 5'); A(f's_add_u32 s{S_ROT}, s32, s33')
        if o.get('ROT2'):
            A(f's_and_b32 s33, s{S_HP}, 1'); A(f's_mul_i32 s33, s33, {o["ROT2"]}'); A(f's_add_u32 s{S_ROT}, s{S_ROT}, s33')
            A(f's_sub_u32 s33, s{S_ROT}, 10'); A(f's_min_u32 s{S_ROT}, s{S_ROT}, s33')
        if o.get('NOROT'): A(f's_mov_b32 s{S_ROT}, 0')
        A(f's_mul_i32 s32, s{S_ROT}, 245760'); A('s_add_u32 s7, s7, s32')
        A(f's_lshl_b32 s32, s{S_ROT}, 7'); A('s_add_u32 s6, s6, s32')
        A('s_lshl_b32 s38, s2, 2'); A('s_add_u32 s38, s38, s3')
        A.wait_lg()
        A('s_mov_b32 s8, s4')
        A('s_and_b32 s9, s5, 0xffff')
        A(f'v_mov_b32 v2, s{S_N}')
        A('s_cmp_lg_u32 s3, 2')
        A(f's_cbranch_scc1 {nm}_noar')
        A('s_mov_b64 exec, 1')
        A('buffer_store_dword v2, off, s[8:11], s39 sc1')
        A('s_mov_b64 exec, -1')
        A.label(f'{nm}_noar')
        A.vm = []
        A('s_add_u32 s12, s64, s30')
        A('s_addc_u32 s13, s65, 0')
        A('s_and_b32 s13, s13, 0xffff')
        A('s_add_u32 s16, s66, s31')
        A('s_addc_u32 s17, s67, 0')
        A('s_and_b32 s17, s17, 0xffff')
        H = 232
        if o.get('PFW', 0):
            A(f'v_lshlrev_b32 v{H}, 7, v1')
            A(f'v_lshrrev_b32 v{H+1}, 3, v1'); A(f'v_and_b32 v{H+2}, 7, v1'); A(f'v_mul_u32_u24 v{H+2}, 1280, v{H+2}')
            A('s_and_b32 s31, s3, 1'); A('s_lshl_b32 s31, s31, 3')
            A(f'v_add_u32 v{H+1}, s31, v{H+1}'); A(f'v_min_u32 v{H+1}, 9, v{H+1}'); A(f'v_lshl_add_u32 v{H+1}, v{H+1}, 7, v{H+2}')
            A(f's_mul_i32 s31, s{S_HP}, 10240')
            A('s_cmp_ge_u32 s3, 2')
            A(f's_cbranch_scc0 {nm}_npx')
            A(f'buffer_load_dword v247, v{H+1}, s[12:15], s31 offen')
            A.label(f'{nm}_npx')
            A('s_lshr_b32 s30, s2, 3'); A('s_mul_i32 s30, s30, 7680'); A(f's_mul_i32 s31, s{S_HP}, 80'); A('s_sub_u32 s30, s30, s31')
            A('s_max_i32 s30, s30, 0')
            A('s_lshr_b32 s33, s3, 1'); A('s_add_u32 s32, s34, s33')
            A('s_and_b32 s33, s3, 1'); A('s_mul_i32 s33, s33, 5'); A('s_add_u32 s32, s32, s33')
            for i in range(3):
                if i == 2:
                    A('s_cmp_ge_u32 s3, 2')
                    A(f's_cbranch_scc1 {nm}_npw')
                A('s_sub_u32 s33, s32, 10'); A('s_min_u32 s33, s32, s33'); A('s_mul_i32 s33, s33, 245760'); A('s_add_u32 s33, s33, s30')
                A(f'buffer_load_dword v{248+i}, v{H}, s[16:19], s33 offen')
                A('s_add_u32 s32, s32, 2')
            A.label(f'{nm}_npw')
            A.vm = []
        if o.get('PFX', 0):
            A(f'v_min_u32 v{H}, 19, v1'); A(f'v_lshlrev_b32 v{H}, 7, v{H}'); A(f's_mul_i32 s31, s{S_HP}, 10240'); A('s_mul_i32 s32, s3, 2560'); A('s_add_u32 s31, s31, s32')
            A(f'buffer_load_dword v247, v{H}, s[12:15], s31 offen')
            A.vm = []
        def hookE():
            A(f'v_lshrrev_b32 v{H+1}, 3, v1'); A(f'v_and_b32 v{H+2}, 6, v{H+1}'); A(f'v_mul_u32_u24 v{H+1}, 1280, v{H+1}')
            A(f'v_and_b32 v{H+3}, 7, v1'); A(f'v_xor_b32 v{H+2}, v{H+2}, v{H+3}')
            A(f'v_lshl_add_u32 v{VXD}, v{H+2}, 4, v{H+1}')
            A('s_and_b32 s30, s3, 1'); A('s_lshl_b32 s30, s30, 4'); A(f'v_xor_b32 v{VXD}, s30, v{VXD}')
            A(f'v_min_u32 v{H+1}, 59, v1'); A(f'v_mul_u32_u24 v{H+2}, 205, v{H+1}'); A(f'v_lshrrev_b32 v{H+2}, 10, v{H+2}')
            A(f'v_mul_u32_u24 v{H+2}, 1200, v{H+2}'); A(f'v_lshl_add_u32 v{VWD}, v{H+1}, 4, v{H+2}')
            for g in self.ring(0)[:o.get('RE', 0)]: emit_items(A, g)
            A(f'v_lshlrev_b32 v{H}, 4, v1')
            for k in range(4): A(f'v_mov_b32 v{H+4+k}, -1')
            for g in self.clears(-1, lane=1, l16=H, x5=H+1, x6=H+2, sent=H+4): emit_items(A, flat(g))
        def hookX():
            for g in (self.ring(0) + self.ring(1))[o.get('RE', 0):]: emit_items(A, g)
        join = f'{nm}_pj'
        A('s_cmp_lt_u32 s2, %d' % (256 if o.get('NOPC') else 96))
        A(f's_cbranch_scc1 {nm}_pc')
        A('s_cmp_ge_u32 s2, 176')
        A(f's_cbranch_scc1 {nm}_pb')
        A('s_sub_u32 s82, s2, 96')
        kz.part_a(A, join, hookE, hookX)
        A.label(f'{nm}_pb'); A.vm = []; A.lg = []
        A('s_sub_u32 s82, s2, 176')
        kz.part_b(A, join, hookE, hookX)
        A.label(f'{nm}_pc'); A.vm = []; A.lg = []
        E = RING
        A('s_cmp_lg_u32 s38, 2')
        A(f's_cbranch_scc1 {nm}_nm')
        A(f's_mov_b32 s30, {AR}'); A(f's_mov_b32 s31, {EC}'); A(f's_mov_b32 s32, {o.get("MR", 8)}')
        A(f'v_lshlrev_b32 v{E+12}, 5, v1'); A(f'v_lshlrev_b32 v{E+13}, 4, v1')
        A(f's_sub_u32 s33, 1000, s{S_N}')
        for k in range(4): A(f'v_mov_b32 v{E+17+2*k}, s{S_N}')
        A.label(f'{nm}_ml0')
        A(f'buffer_load_dwordx4 {vr(E+8,4)}, v{E+13}, s[8:11], s30 offen sc1')
        A.wait_vm()
        for k in range(4): A(f'v_mov_b32 v{E+16+2*k}, v{E+8+k}')
        A(f'buffer_store_dwordx4 {vr(E+16,4)}, v{E+12}, s[8:11], s31 offen sc1')
        A(f'buffer_store_dwordx4 {vr(E+20,4)}, v{E+12}, s[8:11], s31 offen offset:16 sc1')
        for k in range(4): A(f'v_add_u32 v{E+8+k}, s33, v{E+8+k}')
        A(f'v_max3_u32 v{E+8}, v{E+8}, v{E+9}, v{E+10}'); A(f'v_max_u32 v{E+8}, v{E+8}, v{E+11}')
        A(f'v_cmp_lt_u32 vcc, 0xfa0, v{E+8}')
        A('s_sub_u32 s32, s32, 1')
        A(f's_cbranch_scc1 {nm}_nm')
        A('s_nop 4')
        A(f's_cbranch_vccnz {nm}_ml0')
        A.label(f'{nm}_nm'); A.vm = []
        hookE(); hookX()
        A.label(join)
        A('s_nop 7'); A('s_nop 7')
        A.vm = [('pst', set())]; A.lg = []
        self.stamp('pc')
        A(f's_add_u32 s39, s83, {EC}')
        A(f'buffer_load_dwordx2 {vr(E+8,2)}, off, s[8:11], s39 sc1', tag='ec')
        for g in self.ring(2): emit_items(A, g)
        A('v_and_b32 v0, 63, v0')
        A(f'v_lshlrev_b32 v{L16}, 4, v0')
        emit_items(A, self.setup0() + self.setup_addr() + self.rec_toggle('A') + self.xa_items(TMP))
        A('s_bitcmp1_b32 s3, 0')
        A(f's_cselect_b32 s{S_LO}, 0xff800000, 0'); A(f's_cselect_b32 s{S_EP2}, 0, s{S_EPS}'); A(f's_cselect_b32 s{S_E}, 0, 1.0')
        A(f's_cselect_b64 s[{S_EV}:{S_EV+1}], 0, -1')
        XA = TMP; XSA = TMP + 4; WA = TMP + 8
        for j in range(4): A(f'v_add_u32 v{XSA+j}, s100, v{XA+j}')
        tb = [[10, 11, 12, 20], [13, 14, 22, 21], [0, 1, 2, 23], [3, 4, 24, 24]]
        tb = [sum(x << (8 * k) for k, x in enumerate(t)) for t in tb]
        A(f's_mov_b32 s30, {tb[1]}'); A(f's_mov_b32 s31, {tb[0]}'); A('s_cselect_b32 s30, s30, s31')
        A(f's_mov_b32 s31, {tb[3]}'); A(f's_mov_b32 s32, {tb[2]}'); A('s_cselect_b32 s31, s31, s32')
        A('s_bitcmp1_b32 s3, 1'); A('s_cselect_b32 s30, s31, s30')
        A(f'v_bfe_u32 v{X1}, v0, 4, 1'); A(f'v_bfe_u32 v{X2}, v0, 1, 1'); A(f'v_lshl_add_u32 v{X1}, v{X1}, 1, v{X2}')
        A(f'v_lshlrev_b32 v{X1}, 3, v{X1}'); A(f'v_lshrrev_b32 v{X1}, v{X1}, s30'); A(f'v_and_b32 v{X1}, 31, v{X1}')
        A(f'v_and_b32 v{X2}, 1, v0'); A(f'v_mul_u32_u24 v{X2}, 5, v{X2}')
        A(f'v_bfe_u32 v{X3}, v0, 2, 2'); A(f'v_mul_u32_u24 v{X3}, 30, v{X3}')
        A(f'v_add3_u32 v{X1}, v{X1}, v{X2}, v{X3}')
        A(f'v_lshrrev_b32 v{X2}, 5, v0'); A(f'v_lshlrev_b32 v{X2}, 11, v{X2}')
        A(f'v_lshl_add_u32 v{WA}, v{X1}, 3, v{X2}')
        A(f's_add_u32 s36, s83, {FL}')
        A(f'v_mov_b32 v{E+11}, s{S_XCC}')
        A(f'v_mov_b32 v{E+12}, {MW}')
        A.wait_vm('ec')
        self.stamp('dr')
        A('s_barrier')
        A('s_cmp_lg_u32 s3, 2')
        A(f's_cbranch_scc1 {nm}_go')
        sv = list(A.vm)
        A(f'v_mov_b32 v{E+10}, s{S_N}')
        A('s_cmp_eq_u32 s38, 2')
        A(f's_cbranch_scc1 {nm}_ex')
        A(f's_branch {nm}_e1')
        A.label(f'{nm}_ec')
        A(f'buffer_load_dwordx2 {vr(E+8,2)}, off, s[8:11], s39 sc1')
        A.wait_vm()
        A.label(f'{nm}_e1')
        A(f'v_readfirstlane_b32 s33, v{E+8}')
        A(f'v_mov_b32 v{E+10}, v{E+9}')
        A(f's_sub_u32 s{S_BUD}, s{S_BUD}, 1')
        A(f's_cbranch_scc1 {nm}_ex')
        A(f's_cmp_lg_u32 s33, s{S_N}')
        A(f's_cbranch_scc1 {nm}_ec')
        A.label(f'{nm}_ex')
        A(f's_max_i32 s{S_BUD}, s{S_BUD}, 0')
        A('s_mov_b64 exec, 1')
        A(f'buffer_store_dwordx2 {vr(E+10,2)}, off, s[8:11], s36 sc1')
        A(f'ds_write_b32 v{E+12}, v{E+10}')
        A('s_mov_b64 exec, -1')
        A.wait_lg()
        A.label(f'{nm}_go')
        A.vm = sv
        A('s_nop 4')
        self.stamp('go')
    def touch(self, d0=XL, va=X1, lane=0):
        it = [f'v_min_u32 v{va}, 19, v{lane}', f'v_lshlrev_b32 v{va}, 7, v{va}',
              f's_mul_i32 s30, s{S_RG}, 163840', f's_mul_i32 s31, s{S_HP}, 10240', 's_add_u32 s30, s30, s31', 's_mul_i32 s31, s3, 2560',
              's_add_u32 s30, s30, s31', f's_add_u32 s31, s30, {O(0)}', f's_add_u32 s30, s30, {X(1)}',
              ('i', f'buffer_load_dword v{d0}, v{va}, s[8:11], s31 offen', 'pt'),
              ('i', f'buffer_load_dword v{d0+1}, v{va}, s[8:11], s30 offen', 'pt')]
        return it
    def xa_items(self, dst):
        return [f'v_and_b32 v{X1}, 31, v0', f'v_lshlrev_b32 v{X1}, 7, v{X1}',
                f'v_and_b32 v{X2}, 6, v0', f'v_bfe_u32 v{X3}, v0, 3, 1', f'v_lshrrev_b32 v{X4}, 5, v0',
                f'v_xor_b32 v{X2}, v{X2}, v{X3}', f'v_xor_b32 v{X2}, v{X2}, v{X4}',
                f'v_lshl_add_u32 v{dst}, v{X2}, 4, v{X1}'] + [f'v_xor_b32 v{dst+j}, {32*j}, v{dst}' for j in (1, 2, 3)]
    def setup0(self):
        it = []
        a = it.append
        a(f'v_bfe_u32 v{T0}, v0, 4, 1')
        a(f'v_lshrrev_b32 v{T1}, 5, v0')
        a(f'v_lshlrev_b32 v{T0}, 10, v{T0}')
        a(f'v_lshl_add_u32 v{T0}, v{T1}, 9, v{T0}')
        a(f'v_and_b32 v{T1}, 15, v0')
        a(f'v_lshl_add_u32 v{VSTP}, v{T1}, 3, v{T0}')
        a('s_and_b32 s30, s3, 1')
        a('s_lshl_b32 s30, s30, 8')
        a(f'v_lshlrev_b32 v{T1}, 4, v{T1}')
        a(f'v_add_u32 v{T1}, s30, v{T1}')
        a(f'v_lshrrev_b32 v{T0}, 4, v0')
        a(f'v_lshl_add_u32 v{VX}, v{T0}, 9, v{T1}')
        a(f'v_lshrrev_b32 v2, 5, v0')
        a(f'v_lshl_add_u32 v{T1}, v2, 9, v{T1}')
        a(f'v_and_b32 v{T0}, 1, v{T0}')
        a(f'v_lshl_add_u32 v{T1}, v{T0}, 3, v{T1}')
        a(f'v_add_u32 v{VX3}, 0x1000, v{T1}')
        return it

    def setup_addr(self):
        it = []
        a = it.append
        a(f'v_add_u32 v{DS1}, 0x10000, v{L16}')
        a(f'v_add_u32 v{DS2}, 0x20000, v{L16}')
        a(f'v_and_b32 v{T0}, 31, v0')
        a(f'v_lshrrev_b32 v{T1}, 5, v0')
        a(f'v_lshlrev_b32 v{VSC}, 3, v{T0}')
        a(f'v_add_u32 v{VSC}, {SC}, v{VSC}')
        a(f'v_mul_u32_u24 v{T0}, {RS}, v{T0}')
        a(f'v_lshl_add_u32 v{T0}, v{T1}, 6, v{T0}')
        a('s_and_b32 s30, s3, 1')
        a('s_lshl_b32 s30, s30, 7')
        a(f'v_add_u32 v{REC0}, s30, v{T0}')
        a('s_mul_i32 s30, s3, 9216')
        a(f's_add_u32 s30, s30, {PQ(0)}')
        a(f'v_add_u32 v{VPQ}, s30, v{T0}')
        a(f'v_lshrrev_b32 v{T0}, 2, v0')
        a(f'v_mul_u32_u24 v{T0}, {RS}, v{T0}')
        a('s_lshr_b32 s30, s3, 1')
        a('s_lshl_b32 s30, s30, 7')
        a(f'v_add_u32 v{T0}, s30, v{T0}')
        a(f'v_and_b32 v{T1}, 3, v0')
        for T, nch in (('B', 5), ('A', 3)):
            for mt, r in enumerate(TRA[T]):
                a(f'v_add_u32 v{X1}, {4*mt}, v{T1}')
                a(f'v_min_u32 v{X1}, {2*nch-1}, v{X1}')
                a(f'v_cmp_le_u32 vcc, {nch}, v{X1}')
                a(f'v_cndmask_b32 v{X2}, 0, {64-8*nch}, vcc')
                a(f'v_lshl_add_u32 v{X1}, v{X1}, 3, v{X2}')
                a(f'v_add_u32 v{r}, v{X1}, v{T0}')
        a(f'v_lshrrev_b32 v{X1}, 1, v{T1}')
        a(f'v_and_b32 v{X2}, 1, v{T1}')
        a(f'v_lshlrev_b32 v{X1}, 6, v{X1}')
        a(f'v_lshl_add_u32 v{X1}, v{X2}, 3, v{X1}')
        a(f'v_lshlrev_b32 v{X2}, 6, v{X2}')
        a('s_bitcmp1_b32 s3, 0')
        a('s_cselect_b64 vcc, -1, 0')
        a(f'v_cndmask_b32 v{X1}, v{X1}, v{X2}, vcc')
        a(f'v_add3_u32 v{TRB0}, v{X1}, v{T0}, 48')
        a(f'v_bfe_u32 v{X1}, v0, 3, 2')
        a(f'v_and_b32 v{X2}, 3, v0')
        a(f'v_lshl_add_u32 v{X1}, v{X1}, 2, v{X2}')
        a(f'v_bfe_u32 v{X2}, v0, 2, 1')
        a(f'v_mul_u32_u24 v{X2}, 10, v{X2}')
        a(f'v_add_u32 v{X2}, v{X2}, v{X1}')
        a(f'v_cmp_gt_u32 s[30:31], 10, v{X1}')
        a(f'v_lshrrev_b32 v{X1}, 5, v0')
        for T in 'BA':
            if T == 'B':
                a(f'v_cmp_le_u32 vcc, 6, v{X2}')
                a(f'v_cndmask_b32 v{X3}, 0, 2, vcc')
                a(f'v_cmp_le_u32 vcc, 12, v{X2}')
                a(f'v_cndmask_b32 v{X4}, 0, 2, vcc')
                a(f'v_add3_u32 v{X3}, v{X2}, v{X3}, v{X4}')
                a(f'v_cndmask_b32 v{X3}, 6, v{X3}, s[30:31]')
            else:
                a(f'v_cmp_le_u32 vcc, 4, v{X2}')
                a(f'v_cndmask_b32 v{X3}, 0, 4, vcc')
                a(f'v_add_u32 v{X3}, v{X2}, v{X3}')
                a(f'v_cndmask_b32 v{X3}, 4, v{X3}, s[30:31]')
            a(f'v_lshrrev_b32 v{X4}, 3, v{X3}')
            a(f'v_lshl_add_u32 v{X4}, v{X4}, 1, v{X1}')
            a(f'v_and_b32 v{X3}, 7, v{X3}')
            a(f'v_mul_u32_u24 v{X4}, {0xc0 if T == "A" else 0x140}, v{X4}')
            a(f'v_lshl_add_u32 v{VKA[T]}, v{X3}, 3, v{X4}')
        for k in range(4): a(f'v_mov_b32 v{SENT+k}, -1')
        a(f'v_mov_b32 v{VC+3}, 0x3f80')
        return it

    def stats_items(self):
        S = STR
        return [
        f'v_add_f32 v{X1}, v{S}, v{S+2}', f'v_add_f32 v{X2}, v{S+4}, v{S+6}',
        f'v_add_f32 v{X1}, v{X1}, v{X2}', f'v_mov_b32 v{X2}, v{X1}',
        f'v_add_f32 v{X3}, v{S+1}, v{S+3}',
        f'v_add_f32 v{X4}, v{S+5}, v{S+7}',
        f'v_permlane32_swap_b32 v{X1}, v{X2}',
        f'v_add_f32 v{X3}, v{X3}, v{X4}',
        f'v_add_f32 v{X1}, v{X1}, v{X2}',
        f'v_mul_f32 v{X1}, 0.125, v{X1}',
        f'v_sub_f32 v{S}, v{S}, v{X1}', f'v_sub_f32 v{S+2}, v{S+2}, v{X1}',
        f'v_sub_f32 v{S+4}, v{S+4}, v{X1}', f'v_sub_f32 v{S+6}, v{S+6}, v{X1}',
        f'v_mul_f32 v{X2}, v{S}, v{S}', f'v_fmac_f32 v{X2}, v{S+2}, v{S+2}',
        f'v_fmac_f32 v{X2}, v{S+4}, v{S+4}', f'v_fmac_f32 v{X2}, v{S+6}, v{S+6}',
        f'v_fmac_f32 v{X3}, 0x42a00000, v{X2}',
        f'v_mov_b32 v{X4}, v{X3}',
        f'v_cvt_pk_bf16_f32 v{X5}, -v{X1}, -v{X1}',
        f's_lshl_b32 s30, s3, 8',
        f'v_permlane32_swap_b32 v{X3}, v{X4}',
        f'v_add_u32 v{X1}, s30, v{VSC}',
        f'v_add_f32 v{X3}, v{X3}, v{X4}',
        f'v_mul_f32 v{X3}, 0x3acccccd, v{X3}',
        f'v_cvt_pk_bf16_f32 v{X3}, v{X3}, v{X3}',
        f'v_lshlrev_b32 v{X3}, 16, v{X3}',
        f'v_add_f32 v{X3}, 0x3727c5ac, v{X3}',
        f'v_cvt_pk_bf16_f32 v{X3}, v{X3}, v{X3}',
        f'v_lshlrev_b32 v{X3}, 16, v{X3}',
        f'v_sqrt_f32 v{X3}, v{X3}',
        f'v_cvt_pk_bf16_f32 v{X3}, v{X3}, v{X3}',
        f'v_lshlrev_b32 v{X3}, 16, v{X3}',
        f'v_rcp_f32 v{X6}, v{X3}',
        ('i', f'ds_write_b64 v{X1}, v[{X5}:{X6}]', 'sc')]
    def st_loads(self, L):
        return [f'buffer_load_dwordx2 {vr(STR+2*c,2)}, v{VSTP}, s[8:11], s31 offen offset:{128*c} sc1' for c in range(4)]
    def st_soff(self, L):
        return [f's_lshl_b32 s31, s{S_RG}, 13', f's_add_u32 s31, s31, s{S_W2K}', f's_add_u32 s31, s31, {ST(L)}']
    def xchunk(self, c):
        it = [f's_add_u32 m0, s{S_W1K}, {4096*c}']
        if c == 39: it.append(f's_min_u32 m0, m0, {158*1024}')
        it += [('i', f'buffer_load_dwordx4 v{L16}, s[12:15], m0 offen sc1 lds', f'x{c}')]
        if c == 39:
            it += [f's_mov_b32 s30, {159*1024}',
                   ('i', f'buffer_load_dwordx4 {vr(XL,4)}, v{L16}, s[12:15], s30 offen sc1', f'x{c}')]
        return it
    def wloads(self, T, s0, n):
        it = [f's_add_u32 s30, s90, {WF[T] + 1024*s0}']
        for k in range(n):
            it.append(('i', f'buffer_load_dwordx4 {wreg(T, s0+k)}, v{L16}, s[8:11], s30 offen offset:{1024*k}{self.wsc}', f'w{T}{s0}'))
        return it
    def wo_dma(self, f0, f1):
        gs = []
        f = f0
        while f < f1:
            it = [f's_add_u32 m0, s{S_W1K}, {WOL + 1024*f}']
            if f + 4 > f1: it.append(f's_min_u32 m0, m0, {WOL + 1024*(f1-1)}')
            it += [('i', f'buffer_load_dwordx4 v{L16}, s[16:19], m0 offen{self.wsc} lds', 'wo')]
            gs.append(it); f += 4
        return gs
    def rec_toggle(self, T):
        return [f'v_lshrrev_b32 v{X2}, 5, v0', 's_and_b32 s30, s3, 1',
                f'v_subrev_u32 v{X2}, s30, v{X2}' if T == 'A' else f'v_sub_u32 v{X2}, s30, v{X2}',
                f'v_lshl_add_u32 v{REC0}, v{X2}, 6, v{REC0}']
    def scread(self, rb):
        b = rb & 1
        return [('i', f'ds_read_b64 v[{T0}:{T1}], v{VSC} offset:{256*rb}', 'scr'), ('wlg', 'scr'),
                f'v_mov_b32 v{NM}, v{T0}', f'v_mov_b32 v{NM+1}, v{T0}', f'v_mov_b32 v{NM+2}, v{T0}', f'v_mov_b32 v{NM+3}, v{T0}',
                f'v_mov_b32 v{VR[b]}, v{T1}', f'v_mul_f32 v{VRL[b]}, 0x3fb8aa3b, v{T1}']
    def epilogue(self, T, rb, ac=None, kadd=0):
        b = rb & 1
        if ac is None: ac = ACC + 16 * b
        R = VR[b]; RL = VRL[b]
        it = []
        a = it.append
        if kadd: a([f's_mov_b32 s31, {kadd}', 's_cmp_ge_u32 s3, 2', f's_cselect_b32 s30, {PQ(rb)-KREC[b]}, s31', f'v_add_u32 v{REC}, s30, v{REC0}'])
        else: a(['s_cmp_ge_u32 s3, 2', f's_cselect_b32 s30, {PQ(rb)-KREC[b]}, 0', f'v_add_u32 v{REC}, s30, v{REC0}'])
        KO = KREC[b]
        if T == 'B':
            for k in range(10, 16): a(f'v_mul_f32 v{ac+k}, v{ac+k}, v{R}')
            for k in range(3): a(f'v_cvt_pk_bf16_f32 v{VC+k}, v{ac+10+2*k}, v{ac+11+2*k}')
            a(('i', f'ds_write_b128 v{REC}, {vr(VC,4)} offset:{KO+48}', 'rec'))
        if T == 'A':
            for k in range(12, 16): a(f'v_mul_f32 v{ac+k}, v{ac+k}, v{R}')
            for k in range(2): a(f'v_cvt_pk_bf16_f32 v{PK+6+k}, v{ac+12+2*k}, v{ac+13+2*k}')
            for b0 in (8, 0, 4):
                blk = [ac + b0 + k for k in range(4)]
                t = [TMP + 2 * k for k in range(4)]
                for x, tt in zip(blk, t): a(f'v_mul_f32 v{tt}, v{x}, v{RL}')
                for x, tt in zip(blk, t): a(f'v_max_f32 v{tt+1}, {"s%d" % S_LO if b0 == 8 else 0}, v{x}')
                for x, tt in zip(blk, t): a(f'v_exp_f32_e64 v{tt}, v{tt} clamp')
                for x, tt in zip(blk, t): a(f'v_fma_f32 v{tt+1}, v{tt+1}, v{R}, s{S_EP2 if b0 == 8 else S_EPS}')
                for x, tt in zip(blk, t):
                    a(f'v_fma_f32 v{tt}, v{tt}, s{S_E}, v{tt+1}' if b0 == 8 else f'v_add_f32 v{tt}, v{tt}, v{tt+1}')
                for k in range(0, 4, 2): a(f'v_cvt_pk_bf16_f32 v{PK+(b0+k)//2}, v{t[k]}, v{t[k+1]}')
                if b0 == 8:
                    a(f'v_cndmask_b32 v{PK+8}, v{PK+4}, v{VC+3}, s[{S_EV}:{S_EV+1}]')
                    a(f'v_cndmask_b32 v{PK+9}, v{PK+5}, 0, s[{S_EV}:{S_EV+1}]')
                    a(f'v_cndmask_b32 v{PK+4}, 0, v{PK+4}, s[{S_EV}:{S_EV+1}]')
                    a(f'v_cndmask_b32 v{PK+5}, 0, v{PK+5}, s[{S_EV}:{S_EV+1}]')
                    a(('i', f'ds_write_b128 v{REC}, {vr(PK+6,4)} offset:{KO+48}', 'rec'))
                    a(('i', f'ds_write_b64 v{REC}, {vr(PK+4,2)} offset:{KO+16}', 'rec'))
            a(('i', f'ds_write_b128 v{REC}, {vr(PK,4)} offset:{KO}', 'rec'))
        else:
            s = [ac + k for k in range(10)]
            a(f'v_max3_f32 v{X1}, v{s[0]}, v{s[1]}, v{s[2]}')
            a(f'v_max3_f32 v{X2}, -v{s[0]}, -v{s[1]}, -v{s[2]}')
            for k in (3, 5, 7):
                a(f'v_max3_f32 v{X1}, v{X1}, v{s[k]}, v{s[k+1]}')
                a(f'v_max3_f32 v{X2}, v{X2}, -v{s[k]}, -v{s[k+1]}')
            a(f'v_max_f32 v{X1}, v{X1}, v{s[9]}')
            a(f'v_max_f32_e64 v{X2}, v{X2}, -v{s[9]}')
            a(f'v_permlane32_swap_b32 v{X1}, v{X2}')
            a(f'v_max_f32 v{X1}, v{X1}, v{X2}')
            a(f'v_mul_f32_e64 v{X1}, -v{X1}, v{RL}')
            a(f'v_mov_b32 v{X2}, v{X1}')
            a(f'v_permlane32_swap_b32 v{X1}, v{X2}')
            Pp = [TMP + k for k in range(10)]; N = [TMP + 10 + k for k in range(10)]
            prev = None
            def addblk(ks):
                for k in ks:
                    if k == 0: continue
                    if k == 1:
                        a(f'v_add_f32 v{X3}, v{Pp[0]}, v{Pp[1]}'); a(f'v_add_f32 v{X4}, v{N[0]}, v{N[1]}')
                    else:
                        a(f'v_add_f32 v{X3}, v{X3}, v{Pp[k]}'); a(f'v_add_f32 v{X4}, v{X4}, v{N[k]}')
            for ks in ((0, 1, 2, 3), (4, 5, 6, 7), (8, 9)):
                for k in ks:
                    a(f'v_fma_f32 v{Pp[k]}, v{s[k]}, v{RL}, v{X1}')
                    a(f'v_fma_f32 v{N[k]}, -v{s[k]}, v{RL}, v{X2}')
                for k in ks:
                    a(f'v_exp_f32 v{Pp[k]}, v{Pp[k]}')
                    a(f'v_exp_f32 v{N[k]}, v{N[k]}')
                if prev: addblk(prev)
                prev = ks
            addblk(prev)
            a(f'v_permlane32_swap_b32 v{X3}, v{X4}')
            a(f'v_add_f32 v{X3}, v{X3}, v{X4}')
            a(f'v_rcp_f32 v{X3}, v{X3}')
            a(f'v_mov_b32 v{X4}, v{X3}')
            a(f'v_permlane32_swap_b32 v{X3}, v{X4}')
            for half, (regs, sc) in enumerate(((Pp, X3), (N, X4))):
                for k in range(0, 10, 2):
                    a(f'v_mul_f32 v{regs[k]}, v{regs[k]}, v{sc}')
                    a(f'v_mul_f32 v{regs[k+1]}, v{regs[k+1]}, v{sc}')
                    a(f'v_cvt_pk_bf16_f32 v{PK+5*half+k//2}, v{regs[k]}, v{regs[k+1]}')
                    n = 5 * half + k // 2
                    if n == 3: a(('i', f'ds_write_b128 v{REC}, {vr(PK,4)} offset:{KO}', 'rec'))
                    if n == 7: a(('i', f'ds_write_b128 v{REC}, {vr(PK+4,4)} offset:{KO+16}', 'rec'))
                    if n == 9: a(('i', f'ds_write_b64 v{REC}, {vr(PK+8,2)} offset:{KO+32}', 'rec'))
        return it
    def kv(self, T, rb):
        b = rb & 1
        rd = [['s_bitcmp1_b32 s3, 0', f's_cselect_b32 s30, {PQ(rb)-KREC[b]}, 0', f'v_add_u32 v{TRB}, s30, v{TRB0}']]
        for jh in range(2):
            rd.append(('i', f'ds_read_b64_tr_b16 {vr(KFB+2*jh,2)}, v{TRB} offset:{KREC[b]+16*jh*RS}', 'kvr'))
        for mt, r in enumerate(TRA[T]):
            for jh in range(2):
                rd.append(('i', f'ds_read_b64_tr_b16 {vr(KFA+4*mt+2*jh,2)}, v{r} offset:{KREC[b]+16*jh*RS}', 'kvr'))
        mm = [('wlg', 'kvr')]
        for mt in range(len(TRA[T])):
            c = '0' if rb == 0 else vr(KC + 4 * mt, 4)
            mm.append(f'v_mfma_f32_16x16x32_bf16 {vr(KC+4*mt,4)}, {vr(KFA+4*mt,4)}, {vr(KFB,4)}, {c}')
        return rd, mm
    def kvp_addr(self, T):
        NG = 6 if T == 'A' else 10
        it = [f'v_bfe_u32 v{X1}, v0, 3, 1', f'v_lshrrev_b32 v{X2}, 4, v0',
              ['s_lshr_b32 s30, s3, 1', 's_mul_i32 s30, s30, 3', 's_and_b32 s31, s3, 1', 's_lshl_b32 s31, s31, 1',
               f'v_add_u32 v{X1}, s31, v{X1}', f'v_cmp_gt_u32 s[32:33], 3, v{X1}', f'v_add_u32 v{X1}, s30, v{X1}'],
              f'v_mul_u32_u24 v{X1}, {NG}, v{X1}', f'v_add_u32 v{X1}, v{X1}, v{X2}', f'v_mov_b32 v{X5}, {OOB}',
              f'v_and_b32 v{X3}, 7, v0', f'v_lshlrev_b32 v{X3}, 4, v{X3}', f'v_lshl_add_u32 v{X1}, v{X1}, 11, v{X3}',
              f'v_cndmask_b32 v{VKP[0]}, v{X5}, v{X1}, s[32:33]']
        nmt = len(TRA[T])
        for mt in range(1, nmt): it.append(f'v_add_u32 v{VKP[mt]}, {8192*mt}, v{VKP[0]}')
        it += [f'v_cmp_gt_u32 vcc, {NG-4*(nmt-1)}, v{X2}', f'v_cndmask_b32 v{VKP[nmt-1]}, v{X5}, v{VKP[nmt-1]}, vcc']
        return it
    def clears(self, L, lane=0, l16=L16, x5=X5, x6=X6, sent=SENT):
        n = L + 1
        g1 = [f'v_lshrrev_b32 v{x5}, 3, v{lane}', f'v_and_b32 v{x6}, 7, v{lane}', f'v_lshlrev_b32 v{x5}, 11, v{x5}',
              f'v_lshl_add_u32 v{x5}, v{x6}, 4, v{x5}',
              f's_mul_i32 s30, s{S_HP}, {KVPS(n)}', f's_lshl_b32 s31, s{S_RG}, 7', 's_add_u32 s30, s30, s31',
              's_lshl_b32 s31, s3, 15', 's_add_u32 s30, s30, s31', f's_add_u32 s30, s30, {KVP(n)}',
              ('i', f'buffer_store_dwordx4 {vr(sent,4)}, v{x5}, s[8:11], s30 offen sc1', 'clr'),
              's_add_u32 s30, s30, 16384',
              ('i', f'buffer_store_dwordx4 {vr(sent,4)}, v{x5}, s[8:11], s30 offen sc1', 'clr')]
        g2 = [f'v_lshrrev_b32 v{x5}, 3, v{lane}', f'v_lshlrev_b32 v{x5}, 17, v{x5}', f'v_lshl_add_u32 v{x5}, v{x6}, 4, v{x5}',
              f's_lshl_b32 s30, s{S_HP}, 13', f's_lshl_b32 s31, s{S_RG}, 7', 's_add_u32 s30, s30, s31',
              f's_add_u32 s30, s30, s{S_W2K}', f's_add_u32 s30, s30, {KVF(n)}',
              ('i', f'buffer_store_dwordx4 {vr(sent,4)}, v{x5}, s[8:11], s30 offen sc1', 'clr'),
              f's_lshl_b32 s31, s{S_RG}, 13', f's_add_u32 s31, s31, s{S_W2K}', f's_lshl_b32 s32, s{S_HP}, 7',
              's_add_u32 s31, s31, s32', f's_add_u32 s31, s31, {F2(n)}',
              f's_lshl_b32 s32, s{S_RBY}, 10', f's_lshl_b32 s33, s{S_CG}, 7', 's_add_u32 s32, s32, s33',
              f's_add_u32 s32, s32, {ST(n)}',
              ['s_mov_b64 exec, 0xff',
               ('i', f'buffer_store_dwordx4 {vr(sent,4)}, v{l16}, s[8:11], s32 offen sc1', 'clr'),
               's_mov_b64 exec, 0xf',
               ('i', f'buffer_store_dwordx4 {vr(sent,4)}, v{l16}, s[8:11], s31 offen sc1', 'clr'),
               's_mov_b64 exec, -1']]
        if L >= 1 and self.opt.get('FCL'):
            g2[-1] = ['s_mov_b64 exec, 0xff',
                      ('fn', lambda: self.fstore([f'buffer_store_dwordx4 {vr(sent,4)}, v{l16}, s[8:11], s{k} offen' for k in (32, 31)], tag='clr'), 'clr'),
                      's_mov_b64 exec, -1']
        return [g1, g2]

    def front(self, L):
        A = self.A; o = self.opt
        T = 'AB'[L & 1]
        last = (L == self.nl - 1)
        PF = 7
        queue = []
        if True:
            emit_items(A, self.st_soff(L))
            self.poll(self.st_loads(L), [STR + k for k in range(8)], X1)
            self.stamp('st')
            A('s_barrier')
            for c in range(o['PRE']): emit_items(A, self.xchunk(c))
            emit_items(A, self.stats_items() + self.rec_toggle(T))
            queue = [self.xchunk(c) for c in range(o['PRE'], 40)]
        def xread(n):
            if n == 159: return []
            r, off = dsaddr(1024 * n)
            return [('i', f'ds_read_b128 {vr(RING+4*(n%8),4)}, v{r} offset:{off}', f'r{n}')]
        bar = o.get('BAR', {8: 16, 16: 24, 24: 32, 32: 40, 40: 56, 56: 72, 72: 88, 104: 128, 144: 160})
        bend = o.get('BEND', {1: 104, 2: 144})
        def xwait(q):
            if not q: return
            c = q // 4 - 1
            while any(isinstance(i, tuple) and i[2] == f'x{c}' for g in queue for i in g):
                emit_items(A, queue.pop(0))
            A.wait_vm(f'x{c}')
        A.wait_vm('x1'); A.wait_lg('sc'); self.stamp('x0'); A('s_barrier')
        for n in range(PF): emit_items(A, xread(n))
        gcount = 0
        for rb in range(4):
            ac = vr(ACC + 16 * (rb & 1), 16)
            fill = []
            if rb >= 2:
                rd, mm = self.kv(T, rb - 2)
                fill += rd
            if rb >= 1:
                ep = self.epilogue(T, rb - 1)
                if rb >= 2: ep = ep[:12] + mm + ep[12:]
                fill += ep
            scr = self.scread(rb)
            if rb == 0:
                fill += self.kvp_addr(T)
                if not last: fill += self.clears(L)
                fill += [self.srd_wo_items(T)]
            fill = scr[:1] + fill + scr[1:]
            if rb == 2: queue += self.wo_dma(0, 26)
            if rb == 3: queue += self.wo_dma(42, 66)
            rate = max(o['RMIN'], (cost(fill) * o['RX'] + o['DCOST'] * 40 / o['DMA_EVERY']) / 38); credit = -rate
            for s in range(41):
                n = 40 * rb + s
                if s < 40:
                    nn = n + PF
                    if nn in bar:
                        xwait(bar[nn]); A('s_barrier')
                        if nn == 104: queue += self.wo_dma(26, 42)
                        if nn == 144: queue += self.wo_dma(66, 82)
                    if nn < 160: emit_items(A, xread(nn))
                    if L == 0 and rb == 0 and s % 4 == 0: A.wait_vm(f'wA{s}')
                    if n == 159:
                        src = vr(XL, 4)
                    else:
                        if o['W2'] and n % 2 == 0 and n < 158: A.wait_lg(f'r{n+1}')
                        A.wait_lg(f'r{n}'); src = vr(RING + 4 * (n % 8), 4)
                    A(f'v_mfma_f32_32x32x16_bf16 {ac}, {wreg(T, s)}, {src}, {"0" if s == 0 else ac}')
                else:
                    emit_items(A, flat(fill)); fill = []
                    if L == 0 and rb == 0: A.wait_vm('wc')
                    A(f'v_mfma_f32_32x32x16_bf16 {ac}, {vr(WCR[T],4)}, {vr(NM,4)}, {ac}')
                    break
                gcount += 1
                credit += rate
                if queue and gcount % o['DMA_EVERY'] == 0:
                    g = queue.pop(0); emit_items(A, g); credit -= o['DCOST']
                if s >= 1:
                    while fill and credit >= 0.5 * cost(fill[0]):
                        it = fill.pop(0); p0 = A.pos; c0 = cost(it) - len(flat([it]))
                        emit_items(A, flat([it])); credit -= (A.pos - p0) + c0
            if rb >= 1:
                if rb in bend: xwait(bend[rb])
                if rb == 3:
                    for g in queue: emit_items(A, g)
                    queue = []
                    A.wait_vm('clr')
                A.wait_lg('rec'); A.wait_lg('kvr')
                self.stamp(f'b{rb}_')
                A('s_barrier')
        rd, mm = self.kv(T, 2)
        ep = self.epilogue(T, 3)
        if o.get('FINE'):
            self.stamp('ea'); emit_items(A, flat(rd)); self.stamp('eb'); emit_items(A, flat(ep[:11])); self.stamp('ec')
            h = 11 + (len(ep) - 11) // 2
            emit_items(A, flat(ep[11:h])); self.stamp('ed'); emit_items(A, flat(ep[h:])); self.stamp('ee'); emit_items(A, flat(mm)); self.stamp('ef')
            print(T, 'counts', len(flat(rd)), len(flat(ep[:11])), len(flat(ep[11:h])), len(flat(ep[h:])))
        else:
            emit_items(A, flat(rd + ep[:12] + mm + ep[12:]))
        A(f's_mul_i32 s34, s{S_HP}, {KVPS(L)}'); A(f's_add_u32 s34, s34, {KVP(L)}')
        A(f's_lshl_b32 s31, s{S_RG}, 7'); A('s_add_u32 s35, s34, s31')
        A(f'v_mov_b32 v{X5}, {OOB}')
        A.wait_lg()
        self.stamp('ep3_')
        A('s_barrier')
        rd, mm = self.kv(T, 3)
        emit_items(A, flat(rd + mm))
        for mt in range(len(TRA[T])):
            A(f'buffer_store_dwordx4 {vr(KC+4*mt,4)}, v{VKP[mt]}, s[8:11], s35 offen sc1')

    def front0(self):
        A = self.A; o = self.opt
        nm = self.name
        T = 'A'; L = 0
        acc = [ACC, ACC + 16, 192, 208]
        XA = TMP; XSA = TMP + 4; WA = TMP + 8; SA = TMP + 12; SR = KFA; CS = 224
        FE = KC; FA = KC + 8; MR = KC + 9
        CP = o.get('CP', 6)
        A(f's_lshl_b32 s90, s{S_HP}, 2'); A('s_add_u32 s90, s90, s3'); A('s_mul_i32 s90, s90, 40960')
        for k in range(8): A(f'v_mov_b32 v{SA+k}, 0')
        for k in range(4): A(f'v_mov_b32 v{NM+k}, 0x3f803f80')
        def xread(i):
            if i >= 160: return
            sg, s_, rb = i >> 4, (i >> 2) & 3, i & 3
            A(f'ds_read_b128 {vr(RING+4*(i%8),4)}, v{XA+s_} offset:{32768*(sg&1) + 16384 + 4096*rb}', tag=f'r{i}')
        def wread(s):
            sg, s_ = s >> 2, s & 3
            for jh in range(2):
                A(f'ds_read_b64_tr_b16 {ar(4*s+2*jh,2)}, v{WA} offset:{32768*(sg&1) + 4096*s_ + 1024*jh}', tag=f'w{s}')
        def sread(sg):
            for j in range(4):
                A(f'ds_read_b128 {vr(SR+4*j,4)}, v{XSA+j} offset:{32768*(sg&1) + 16384}', tag=f's{sg}')
        def dots():
            it = []
            for j in range(4):
                it += [f'v_dot2c_f32_bf16 v{SA+k}, 0x3f803f80, v{SR+4*j+k}' for k in range(4)]
                it += [f'v_dot2c_f32_bf16 v{SA+4+k}, v{SR+4*j+k}, v{SR+4*j+k}' for k in range(4)]
            return it
        def flloads():
            A(f'buffer_load_dwordx4 {vr(FE,4)}, v{FA}, s[8:11], s32 offen sc1', tag='fl')
            A(f'buffer_load_dwordx4 {vr(FE+4,4)}, v{FA}, s[8:11], s32 offen offset:16 sc1', tag='fl')
        def flchk():
            for k in (0, 2, 4, 6): A(f'v_xor_b32 v{FE+k}, s{S_M}, v{FE+k}')
            A(f'v_or3_b32 v{FE}, v{FE}, v{FE+2}, v{FE+4}'); A(f'v_or_b32 v{FE}, v{FE}, v{FE+6}')
            A(f'v_cmp_ne_u32 vcc, 0, v{FE}')
        misc = []
        xo = [f'v_and_b32 v{X1}, 15, v0', f'v_mul_u32_u24 v{X1}, 1280, v{X1}', f'v_lshrrev_b32 v{X2}, 4, v0',
              f'v_lshl_add_u32 v{X3}, v{X2}, 4, v{X1}', f'v_lshl_add_u32 v{X4}, v{X2}, 3, v{X1}',
              f's_and_b32 s30, s{S_RBY}, 7', 's_mul_i32 s30, s30, 20480', f's_mul_i32 s31, s{S_CG}, 160', 's_add_u32 s30, s30, s31',
              ('i', f'buffer_load_dwordx4 {vr(XOLD,4)}, v{X3}, s[12:15], s30 offen', 'xo'),
              ('i', f'buffer_load_dwordx4 {vr(XOLD+4,4)}, v{X3}, s[12:15], s30 offen offset:64', 'xo'),
              ('i', f'buffer_load_dwordx2 {vr(XOLD+8,2)}, v{X4}, s[12:15], s30 offen offset:128', 'xo')]
        PF = 7
        queue = []; fill = []
        wbq = [self.wloads('B', 4*g, 4) for g in range(6)] if self.nl > 1 else []
        for i in range(-PF, 160):
            nn = i + PF
            if nn < 160 and nn % 16 == 0:
                sg = nn >> 4
                for g in queue: emit_items(A, flat(g))
                emit_items(A, fill); fill = []
                if sg > 0:
                    if sg >= 2: A.wait_vm(f'g{sg}')
                    A.wait_lg()
                    if sg in (1, 3, 5, 7, 9): self.stamp(f's{sg}_')
                    A('s_barrier')
                    if sg % 2 == 0:
                        for k in range(9): A(f'v_xor_b32 v{TMP+k}, 0x10000, v{TMP+k}')
                wread(4 * sg)
                queue = self.ring(sg + 3) if sg + 3 < 10 else []
                if sg == 1:
                    A(f'v_mov_b32 v{MR}, {MW}')
                    A(f'ds_read_b32 v{MR}, v{MR}', tag='mw')
                    queue.append(flat(self.kvp_addr(T)))
                if sg == 2:
                    A(f'v_readfirstlane_b32 s{S_M}, v{MR}')
                    if self.nl > 1: queue += self.clears(0)
                if sg == 3: queue.append(xo)
                if sg == o.get('PT', -1): queue.append(self.touch())
                if sg == CP - 1:
                    A(f'v_lshlrev_b32 v{FA}, 5, v0'); A(f's_mov_b32 s32, {FL}')
                    flloads()
                if sg == CP:
                    A.wait_vm('fl')
                    sv = list(A.vm)
                    A(f's_branch {nm}_c1')
                    A.label(f'{nm}_c0')
                    A(f's_mov_b32 s32, {FL}')
                    A('s_cmp_lg_u32 s38, 2')
                    A(f's_cbranch_scc1 {nm}_c2')
                    A(f's_mov_b32 s30, {AR}'); A(f's_mov_b32 s31, {EC}')
                    A(f'buffer_load_dwordx4 {vr(FE,4)}, v{L16}, s[8:11], s30 offen sc1')
                    A.wait_vm()
                    A(f'v_mov_b32 v{FE+6}, v{FE+3}'); A(f'v_mov_b32 v{FE+4}, v{FE+2}'); A(f'v_mov_b32 v{FE+2}, v{FE+1}')
                    for k in range(4): A(f'v_mov_b32 v{FE+1+2*k}, s{S_M}')
                    A(f'buffer_store_dwordx4 {vr(FE,4)}, v{FA}, s[8:11], s31 offen sc1')
                    A(f'buffer_store_dwordx4 {vr(FE+4,4)}, v{FA}, s[8:11], s31 offen offset:16 sc1')
                    A.wait_vm()
                    A.label(f'{nm}_c2')
                    flloads()
                    A.wait_vm()
                    A.label(f'{nm}_c1')
                    flchk()
                    A(f's_sub_u32 s{S_BUD}, s{S_BUD}, 1')
                    A(f's_cbranch_scc1 {nm}_c3')
                    A('s_nop 4')
                    A(f's_cbranch_vccnz {nm}_c0')
                    A.label(f'{nm}_c3')
                    A(f's_max_i32 s{S_BUD}, s{S_BUD}, 0')
                    A.vm = sv
                    self.stamp('cp')
                    for k in (1, 3, 5, 7): A(f'v_xor_b32 v{FE+k}, s{S_XCC}, v{FE+k}')
                    A(f'v_or3_b32 v{FE}, v{FE+1}, v{FE+3}, v{FE+5}'); A(f'v_or_b32 v{FE}, v{FE}, v{FE+7}')
                    A(f'v_cmp_ne_u32 vcc, 0, v{FE}')
                    A(f's_lshl_b32 s30, s{S_RG}, 2')
                    A('s_lshr_b64 s[30:31], vcc, s30')
                    A('s_and_b32 s30, s30, 15')
                    A(f's_cselect_b32 s{S_SAME}, 0, 1')
                    if o.get('FORCE_SLOW'): A(f's_mov_b32 s{S_SAME}, 0')
                    if self.nl > 1:
                        wc = [f's_mul_i32 s30, s{S_HP}, 2560', 's_lshl_b32 s31, s3, 7', 's_add_u32 s30, s30, s31', f's_add_u32 s30, s30, {WC["B"]}',
                              f'v_and_b32 v{FA}, 31, v0', f'v_lshlrev_b32 v{FA}, 2, v{FA}']
                        wc += [('i', f'buffer_load_dword v{FE+k}, v{FA}, s[8:11], s30 offen offset:{512*k} sc1', 'wc') for k in range(5)]
                        queue.append(wc)
                if sg >= CP:
                    nw = 2 if sg < 9 else 6
                    queue += wbq[:nw]; wbq = wbq[nw:]
            if nn < 160:
                if nn % 4 == 2 and (nn & 15) < 12: wread((nn >> 2) + 1)
                xread(nn)
                if nn % 16 == 8: sread(nn >> 4)
            if i < 0: continue
            s_ = i >> 2; rb = i & 3
            if i % 16 == 5:
                A.wait_lg(f's{i>>4}'); fill += dots()
            if rb == 0: A.wait_lg(f'w{s_}')
            A.wait_lg(f'r{i}')
            A(f'v_mfma_f32_32x32x16_bf16 {vr(acc[rb],16)}, {wreg(T, s_)}, {vr(RING+4*(i%8),4)}, {"0" if s_ == 0 else vr(acc[rb],16)}')
            if rb == 1:
                A(f'v_mfma_f32_32x32x16_bf16 {vr(CS,16)}, {vr(NM,4)}, {wreg(T, s_)}, {"0" if s_ == 0 else vr(CS,16)}')
            if queue: emit_items(A, flat(queue.pop(0)))
            emit_items(A, fill[:8]); fill = fill[8:]
        for g in queue: emit_items(A, flat(g))
        emit_items(A, fill)
        A(f'v_add_f32 v{X1}, v{SA}, v{SA+1}'); A(f'v_add_f32 v{X2}, v{SA+2}, v{SA+3}')
        A(f'v_add_f32 v{X3}, v{SA+4}, v{SA+5}'); A(f'v_add_f32 v{X4}, v{SA+6}, v{SA+7}')
        A(f'v_add_f32 v{X1}, v{X1}, v{X2}'); A(f'v_add_f32 v{X3}, v{X3}, v{X4}')
        A(f'v_mov_b32 v{X2}, v{X1}'); A(f'v_mov_b32 v{X4}, v{X3}')
        A(f'v_permlane32_swap_b32 v{X1}, v{X2}'); A(f'v_permlane32_swap_b32 v{X3}, v{X4}')
        A(f'v_add_f32 v{X2}, v{X1}, v{X2}')
        A(f'v_add_f32 v{X3}, v{X3}, v{X4}')
        A(f'v_mul_f32 v{X1}, 0x3acccccd, v{X2}')
        A(f'v_fma_f32 v{X3}, -v{X1}, v{X2}, v{X3}')
        A(f'v_max_f32 v{X3}, 0, v{X3}')
        A(f'v_cvt_pk_bf16_f32 v{X5}, -v{X1}, -v{X1}')
        A('s_lshl_b32 s30, s3, 8')
        A(f'v_add_u32 v{X1}, s30, v{VSC}')
        st = self.stats_items()
        emit_items(A, st[st.index(f'v_mul_f32 v{X3}, 0x3acccccd, v{X3}'):])
        def split(src, dst):
            A(f'v_cvt_pk_bf16_f32 v{dst}, v{src}, v{src}')
            A(f'v_lshlrev_b32 v{dst+1}, 16, v{dst}')
            A(f'v_sub_f32 v{src}, v{src}, v{dst+1}')
            A(f'v_cvt_pk_bf16_f32 v{dst+1}, v{src}, v{src}')
            A(f'v_and_b32 v{dst+1}, 0xffff0000, v{dst+1}')
            A(f'v_sub_f32 v{src}, v{src}, v{dst+1}')
            A(f'v_and_b32 v{dst}, 0xffff, v{dst}')
            A(f'v_or_b32 v{dst}, v{dst}, v{dst+1}')
            A(f'v_mov_b32 v{dst+2}, 0')
            A(f'v_cvt_pk_bf16_f32 v{dst+1}, v{src}, v{dst+2}')
            A(f'v_mov_b32 v{dst+3}, 0')
            A(f'v_cmp_gt_u32 vcc, 32, v0')
            A(f'v_cndmask_b32 v{dst}, 0, v{dst}, vcc')
            A(f'v_cndmask_b32 v{dst+1}, 0, v{dst+1}, vcc')
        split(CS, WCR['A'])
        emit_items(A, self.srd_wo_items(T) + [f's_mov_b32 s18, {WOL + 102400}'])
        A.wait_lg()
        self.stamp('m_')
        A('s_barrier')
        NMx = TMP + 12
        for rb in range(4): A(f'ds_read_b32 v{NMx+rb}, v{VSC} offset:{256*rb}', tag='nm')
        def rread(rb):
            b = rb & 1
            return [('i', f'ds_read_b32 v{VR[b]}, v{VSC} offset:{256*rb+4}', 'scr'), ('wlg', 'scr'), f'v_mul_f32 v{VRL[b]}, 0x3fb8aa3b, v{VR[b]}']
        emit_items(A, rread(0)[:1] + rread(1) + rread(0)[2:])
        NB = [NM, KFA]
        for rb in range(4):
            for k in range(4): A(f'v_mov_b32 v{NB[rb&1]+k}, v{NMx+rb}')
            A(f'v_mfma_f32_32x32x16_bf16 {vr(acc[rb],16)}, {vr(WCR[T],4)}, {vr(NB[rb&1],4)}, {vr(acc[rb],16)}')
        if self.nl > 1:
            A.wait_vm('wc')
            A(f'v_add_f32 v{FE}, v{FE}, v{FE+1}'); A(f'v_add_f32 v{FE+2}, v{FE+2}, v{FE+3}')
            A(f'v_add_f32 v{FE}, v{FE}, v{FE+4}'); A(f'v_add_f32 v{FE}, v{FE}, v{FE+2}')
            split(FE, WCR['B'])
        if o.get('PT') == 10: emit_items(A, self.touch())
        wq = self.wo_dma(0, 82)
        for rb in range(4):
            ep = self.epilogue(T, rb, ac=acc[rb], kadd=KR2 if rb >= 2 else 0)
            if rb < 2: ep += rread(rb + 2)
            for k, it in enumerate(ep):
                emit_items(A, flat([it]))
                if wq and k % o.get('WOE', 6) == 3: emit_items(A, wq.pop(0))
        for g in wq: emit_items(A, g)
        if self.nl > 1 and o.get('WB2', 0) == 0:
            for g in range(6, 10): emit_items(A, self.wloads('B', 4*g, 4))
        A(f's_mul_i32 s34, s{S_HP}, {KVPS(L)}'); A(f's_add_u32 s34, s34, {KVP(L)}')
        A(f's_lshl_b32 s31, s{S_RG}, 7'); A('s_add_u32 s35, s34, s31')
        A(f'v_mov_b32 v{X5}, {OOB}')
        TB = TMP; TA2 = TMP + 4; F = ACC
        A(f's_mov_b32 s31, {KR2}')
        A('s_bitcmp1_b32 s3, 0')
        for rb in range(4):
            A(f's_cselect_b32 s30, {PQ(rb)-KREC[rb&1]}, {"s31" if rb >= 2 else "0"}')
            A(f'v_add_u32 v{TB+rb}, s30, v{TRB0}')
        for mt in range(2): A(f'v_add_u32 v{TA2+mt}, s31, v{TRA[T][mt]}')
        A.wait_lg()
        self.stamp('ep3_')
        A('s_barrier')
        for rb in range(4):
            f = F + 12 * rb
            for jh in range(2):
                A(f'ds_read_b64_tr_b16 {vr(f+2*jh,2)}, v{TB+rb} offset:{KREC[rb&1]+16*jh*RS}', tag=f'kv{rb}')
            for mt in range(2):
                r = TRA[T][mt] if rb < 2 else TA2 + mt
                for jh in range(2):
                    A(f'ds_read_b64_tr_b16 {vr(f+4+4*mt+2*jh,2)}, v{r} offset:{KREC[rb&1]+16*jh*RS}', tag=f'kv{rb}')
        for rb in range(4):
            f = F + 12 * rb
            A.wait_lg(f'kv{rb}')
            for mt in range(2):
                c = '0' if rb == 0 else vr(KC + 4 * mt, 4)
                A(f'v_mfma_f32_16x16x32_bf16 {vr(KC+4*mt,4)}, {vr(f+4+4*mt,4)}, {vr(f,4)}, {c}')
        for mt in range(2):
            A(f'buffer_store_dwordx4 {vr(KC+4*mt,4)}, v{VKP[mt]}, s[8:11], s35 offen sc1')

    def layer(self, L):
        A = self.A; o = self.opt
        self.L = L
        T = 'AB'[L & 1]
        NG = 6 if T == 'A' else 10
        NR = 6 * NG
        last = (L == self.nl - 1)
        final = (L == 3)
        PF = 7
        if L == 0: self.front0()
        else: self.front(L)
        self.stamp('kvp')
        wo1 = 82 if L == 0 else o['WO1']
        for g in self.wo_dma(82, wo1): emit_items(A, g)
        QF = RING; KF = TMP; RD = 104; GQ = 136
        nks = 3 if T == 'B' else 2
        for hd in range(2):
            for ks in range(nks):
                q = QF + 12 * hd + 4 * ks
                if ks < nks - 1:
                    A(f'ds_read_b128 {vr(q,4)}, v{VPQ} offset:{128*hd+16*ks}', tag='qf')
                else:
                    A(f'ds_read_b64 {vr(q,2)}, v{VPQ} offset:{128*hd+16*ks}', tag='qf')
                    A(f'v_mov_b32 v{q+2}, 0'); A(f'v_mov_b32 v{q+3}, 0')
        A('s_lshl_b32 s30, s3, 4'); A(f's_add_u32 s30, s30, s{S_RG}')
        A('s_lshl_b32 s31, s30, 11'); A('s_add_u32 s34, s34, s31')
        A(f's_lshl_b32 s35, s{S_HP}, 13'); A(f's_add_u32 s35, s35, {KVF(L)}')
        A('s_lshl_b32 s31, s30, 7'); A('s_add_u32 s36, s35, s31')
        VO = PK
        A(f'v_and_b32 v{X1}, 7, v0'); A(f'v_lshrrev_b32 v{X2}, 5, v0')
        A(f'v_lshlrev_b32 v{X1}, 3, v{X1}'); A(f'v_lshl_add_u32 v{X1}, v{X2}, 2, v{X1}')
        A(f'v_bfe_u32 v{X2}, v0, 3, 2'); A(f'v_lshl_add_u32 v{VO}, v{X2}, 17, v{X1}')
        A(f'v_add_u32 v{VO+3}, {4*KVC}, v{VO}')
        A(f'v_lshrrev_b32 v{X1}, 2, v0'); A(f'v_and_b32 v{X2}, 3, v0'); A(f'v_lshlrev_b32 v{X2}, 4, v{X2}')
        A(f'v_lshl_add_u32 v{X1}, v{X1}, 7, v{X2}')
        A(f'v_cmp_gt_u32 vcc, {NR}, v0')
        A(f'v_cndmask_b32 v{VO+1}, v{X5}, v{X1}, vcc')
        A(f's_mul_i32 s31, s3, {16*NR}')
        A('s_add_u32 s35, s35, s31'); A('s_add_u32 s35, s35, s31')
        A(f's_lshr_b32 s32, s{S_RG}, 1'); A('s_lshl_b32 s32, s32, 17'); A('s_add_u32 s35, s35, s32')
        A(f'v_add_u32 v{X1}, s31, v{L16}'); A(f'v_add_u32 v{X2}, 0x1000, v{L16}')
        A(f'v_cndmask_b32 v{VO+2}, v{X2}, v{X1}, vcc')
        for hd in range(2):
            k = KF + 12 * hd + 4 * (nks - 1)
            A(f'v_mov_b32 v{k+2}, 0'); A(f'v_mov_b32 v{k+3}, 0')
        lsk = self.lab('nored')
        A(f's_cmp_ge_u32 s30, {NR}')
        A(f's_cbranch_scc1 {lsk}')
        self.poll([f'buffer_load_dwordx4 {vr(RD,4)}, v{L16}, s[8:11], s34 offen sc1',
                   f'buffer_load_dwordx4 {vr(RD+4,4)}, v{L16}, s[8:11], s34 offen offset:1024 sc1'], [RD + k for k in range(8)], X1, sleep=o.get('SL1', 0), pre=o.get('PRE1', 0))
        for k in range(4): A(f'v_add_f32 v{RD+k}, v{RD+k}, v{RD+4+k}')
        A(f'v_permlane32_swap_b32 v{RD}, v{RD+2}')
        A(f'v_permlane32_swap_b32 v{RD+1}, v{RD+3}')
        A(f'v_add_f32 v{RD}, v{RD}, v{RD+2}')
        A(f'v_add_f32 v{RD+1}, v{RD+1}, v{RD+3}')
        A(f'v_add_f32_dpp v{RD+2}, v{RD}, v{RD} row_ror:8 row_mask:0xf bank_mask:0xf')
        A(f'v_add_f32_dpp v{RD+3}, v{RD+1}, v{RD+1} row_ror:8 row_mask:0xf bank_mask:0xf')
        A(f'v_mov_b32 v{RD}, v{RD+2}'); A(f'v_mov_b32 v{RD+1}, v{RD+3}')
        A(f'v_permlane16_swap_b32 v{RD}, v{RD+2}')
        A(f'v_permlane16_swap_b32 v{RD+1}, v{RD+3}')
        A(f'v_add_f32 v{RD}, v{RD}, v{RD+2}')
        A(f'v_add_f32 v{RD+1}, v{RD+1}, v{RD+3}')
        A(f'v_cvt_pk_bf16_f32 v{RD}, v{RD}, v{RD+1}')
        A(f'buffer_store_dword v{RD}, v{VO}, s[8:11], s36 offen sc1')
        A(f'buffer_store_dword v{RD}, v{VO+3}, s[8:11], s36 offen sc1')
        A.label(lsk)
        self.stamp('red')
        if o.get('RBAR', 1): A('s_barrier')
        for g in self.wo_dma(wo1, 100): emit_items(A, g)
        self.poll([f'buffer_load_dwordx4 {vr(RD+4,4)}, v{VO+1}, s[8:11], s35 offen sc1'], [RD + 4 + k for k in range(4)], X1, sleep=o.get('SL2', 0), pre=o.get('PRE2', 0))
        A(f'ds_write_b128 v{VO+2}, {vr(RD+4,4)}')
        A(f'v_bfe_u32 v{X1}, v0, 4, 1'); A(f'v_mul_u32_u24 v{X1}, 20480, v{X1}')
        A(f'v_and_b32 v{X2}, 15, v0'); A(f'v_lshl_add_u32 v{X1}, v{X2}, 4, v{X1}')
        A(f'v_lshrrev_b32 v{X2}, 5, v0')
        A(f'v_lshl_add_u32 v{VO}, v{X2}, 8, v{X1}')
        A(f'v_lshl_add_u32 v{VO+1}, v{X2}, 3, v{X1}')
        A.wait_lg()
        self.stamp('kvf')
        A('s_barrier')
        for hd in range(2):
            for ks in range(nks):
                k = KF + 12 * hd + 4 * ks
                o8 = 192 * NG * hd + 128 * ks
                A(f'ds_read_b64 {vr(k,2)}, v{VKA[T]} offset:{o8}', tag=f'kf{hd}{ks}')
                if ks < nks - 1:
                    A(f'ds_read_b64 {vr(k+2,2)}, v{VKA[T]} offset:{o8+64}', tag=f'kf{hd}{ks}')
        A(f's_lshl_b32 s30, s{S_RG}, 2'); A('s_add_u32 s30, s30, s3')
        A('s_mul_i32 s31, s30, 40960'); A(f's_mul_i32 s32, s{S_HP}, 1280'); A('s_add_u32 s31, s31, s32')
        A(f's_add_u32 s31, s31, {O(L)}')
        A('s_lshl_b32 s30, s30, 11'); A(f's_lshl_b32 s32, s{S_HP}, 7'); A('s_add_u32 s30, s30, s32')
        A(f's_add_u32 s30, s30, {F2(L)}')
        for ks in range(nks):
            for hd in range(2):
                d = vr(ACC + 16 * hd, 16)
                A.wait_lg(f'kf{hd}{ks}')
                A(f'v_mfma_f32_32x32x16_bf16 {d}, {vr(KF+12*hd+4*ks,4)}, {vr(QF+12*hd+4*ks,4)}, {"0" if ks == 0 else d}')
        OPK = 140
        for hd in range(2):
            d = ACC + 16 * hd
            A(f'v_add_f32 v{d+10}, s{S_EPS}, v{d+10}')
            A(f'v_rcp_f32 v{d+10}, v{d+10}')
            A(f'v_mov_b32 v{d+11}, v{d+10}')
            for k in range(0, 10, 2):
                A(f'v_pk_mul_f32 {vr(d+k,2)}, {vr(d+k,2)}, {vr(d+10,2)}')
            for k in range(5):
                dst = OPK + 4 * hd + k if k < 4 else OPK + 8 + hd
                A(f'v_cvt_pk_bf16_f32 v{dst}, v{d+2*k}, v{d+2*k+1}')
        self.fstore([f'buffer_store_dwordx4 {vr(OPK,4)}, v{VO}, s[8:11], s31 offen',
                     f'buffer_store_dwordx4 {vr(OPK+4,4)}, v{VO}, s[8:11], s31 offen offset:512',
                     f'buffer_store_dwordx2 {vr(OPK+8,2)}, v{VO+1}, s[8:11], s31 offen offset:1024'])
        OF = 48; WR = 128; YA = 168
        def woread(f):
            r, off = dsaddr(WOL + 1024 * f)
            return ('i', f'ds_read_b128 {vr(WR+4*(f%10),4)}, v{r} offset:{off}', f'wr{f}')
        for k in range(10):
            A(f'v_lshlrev_b32 v{YA+2*k}, 16, v{XOLD+k}')
            A(f'v_and_b32 v{YA+2*k+1}, 0xffff0000, v{XOLD+k}')
        A(f'v_and_b32 v{T0}, 15, v0'); A(f'v_lshlrev_b32 v{T0}, 7, v{T0}')
        A(f's_lshr_b32 s32, s{S_RBY}, 1'); A('s_lshl_b32 s32, s32, 11'); A(f's_add_u32 s32, s32, {F2(L)}')
        A(f's_mul_i32 s33, s{S_RBY}, 20480'); A(f's_add_u32 s33, s33, {O(L)}')
        A.wait_vm()
        A('s_mov_b64 exec, 1')
        self.fstore([f'buffer_store_dword v{L16}, off, s[8:11], s30'])
        A('s_mov_b64 exec, -1')
        self.stamp('f2')
        for f in range(9): emit_items(A, [woread(f)])
        self.poll([f'buffer_load_dword v{T1}, v{T0}, s[8:11], s32 offen sc1'], [T1], None)
        self.stamp('e2')
        for kk in range(20):
            if kk % 4 == 0 and kk: A('s_add_u32 s33, s33, 4096')
            A(f'buffer_load_dwordx4 {vr(OF+4*kk,4)}, v{L16}, s[8:11], s33 offen offset:{1024*(kk%4)} sc1', tag=f'o{kk}')
        if final:
            A('s_mov_b32 s16, s78'); A('s_and_b32 s17, s79, 0xffff'); A(f's_mov_b32 s18, {2048*640*2}')
            A(f'v_and_b32 v{T0}, 15, v0'); A(f'v_mul_u32_u24 v{T0}, 1280, v{T0}'); A(f'v_lshrrev_b32 v{T1}, 4, v0')
            A(f'v_lshl_add_u32 v{VR[0]}, v{T1}, 4, v{T0}'); A(f'v_lshl_add_u32 v{VR[1]}, v{T1}, 3, v{T0}')
            A(f's_mul_i32 s30, s{S_RBY}, 20480'); A(f's_mul_i32 s31, s{S_CG}, 160'); A('s_add_u32 s30, s30, s31')
        else:
            if DBG[0] or L == 0: self.srd_x(L + 1)
            A(f's_bfe_u32 s30, s{S_RBY}, 0x20001'); A('s_mul_i32 s30, s30, 40960'); A(f's_mul_i32 s31, s{S_CG}, 5120')
            xa = [(VX, 0), (VX, 2048), (VX3, 0)]
            if T == 'B':
                A(f's_lshl_b32 s32, s{S_ROT}, 12'); A('s_sub_u32 s31, s31, s32'); A('s_add_u32 s32, s31, 40960'); A('s_min_u32 s31, s31, s32')
                A(f'v_add_u32 v{VR[0]}, s31, v{VX}'); A(f'v_add_u32 v{VR[1]}, 0x800, v{VR[0]}'); A(f'v_add_u32 v{VRL[0]}, s31, v{VX3}')
                xa = [(VR[0], 0), (VR[1], 0), (VRL[0], 0)]
                for r, _ in xa:
                    A(f'v_subrev_u32 v{T0}, 40960, v{r}'); A(f'v_min_u32 v{r}, v{r}, v{T0}')
            else: A('s_add_u32 s30, s30, s31')
            A(f's_lshl_b32 s31, s{S_RBY}, 10'); A(f's_lshl_b32 s32, s{S_CG}, 7'); A('s_add_u32 s31, s31, s32')
            A(f's_add_u32 s31, s31, {ST(L+1)}')
            A(f'v_lshlrev_b32 v{T0}, 3, v0')
        for kk in range(20):
            A.wait_vm(f'o{kk}')
            if kk == 0: self.stamp('o0_')
            for mt in range(5):
                f = 5 * kk + mt
                if f + 9 < 100: emit_items(A, [woread(f + 9)])
                A.wait_lg(f'wr{f}')
                A(f'v_mfma_f32_16x16x32_bf16 {vr(YA+4*mt,4)}, {vr(WR+4*(f%10),4)}, {vr(OF+4*kk,4)}, {vr(YA+4*mt,4)}')
        self.stamp('y')
        for k in range(10):
            A(f'v_cvt_pk_bf16_f32 v{XOLD+k}, v{YA+2*k}, v{YA+2*k+1}')
        if final:
            A(f'buffer_store_dwordx4 {vr(XOLD,4)}, v{VR[0]}, s[16:19], s30 offen')
            A(f'buffer_store_dwordx4 {vr(XOLD+4,4)}, v{VR[0]}, s[16:19], s30 offen offset:64')
            A(f'buffer_store_dwordx2 {vr(XOLD+8,2)}, v{VR[1]}, s[16:19], s30 offen offset:128')
            return
        self.fstore([f'buffer_store_dwordx4 {vr(XOLD,4)}, v{xa[0][0]}, s[12:15], s30 offen',
                     f'buffer_store_dwordx4 {vr(XOLD+4,4)}, v{xa[1][0]}, s[12:15], s30 offen offset:{xa[1][1]}',
                     f'buffer_store_dwordx2 {vr(XOLD+8,2)}, v{xa[2][0]}, s[12:15], s30 offen'])
        U = OF; a = OF + 20; b = OF + 22; c = OF + 24
        for k in range(10):
            A(f'v_lshlrev_b32 v{U+2*k}, 16, v{XOLD+k}')
            A(f'v_and_b32 v{U+2*k+1}, 0xffff0000, v{XOLD+k}')
        A(f'v_pk_add_f32 {vr(a,2)}, {vr(U,2)}, {vr(U+2,2)}')
        A(f'v_pk_add_f32 {vr(b,2)}, {vr(U+4,2)}, {vr(U+6,2)}')
        for k in range(4, 10, 2):
            A(f'v_pk_add_f32 {vr(a,2)}, {vr(a,2)}, {vr(U+2*k,2)}')
            A(f'v_pk_add_f32 {vr(b,2)}, {vr(b,2)}, {vr(U+2*k+2,2)}')
        A(f'v_pk_add_f32 {vr(a,2)}, {vr(a,2)}, {vr(b,2)}')
        def allsum(x, y):
            A(f'v_mov_b32 v{y}, v{x}')
            A(f'v_permlane16_swap_b32 v{x}, v{y}')
            A(f'v_add_f32 v{x}, v{x}, v{y}')
            A(f'v_mov_b32 v{y}, v{x}')
            A(f'v_permlane32_swap_b32 v{x}, v{y}')
            A(f'v_add_f32 v{x}, v{x}, v{y}')
        A(f'v_add_f32 v{a}, v{a}, v{a+1}')
        allsum(a, a + 1)
        A(f'v_mul_f32 v{a}, 0x3c4ccccd, v{a}')
        A(f'v_mul_f32 v{b}, -1.0, v{a}')
        A(f'v_mul_f32 v{b+1}, -1.0, v{a}')
        for k in range(10):
            A(f'v_pk_add_f32 {vr(U+2*k,2)}, {vr(U+2*k,2)}, {vr(b,2)}')
        A(f'v_pk_mul_f32 {vr(b,2)}, {vr(U,2)}, {vr(U,2)}')
        A(f'v_pk_mul_f32 {vr(c,2)}, {vr(U+2,2)}, {vr(U+2,2)}')
        for k in range(2, 10, 2):
            A(f'v_pk_fma_f32 {vr(b,2)}, {vr(U+2*k,2)}, {vr(U+2*k,2)}, {vr(b,2)}')
            A(f'v_pk_fma_f32 {vr(c,2)}, {vr(U+2*k+2,2)}, {vr(U+2*k+2,2)}, {vr(c,2)}')
        A(f'v_pk_add_f32 {vr(b,2)}, {vr(b,2)}, {vr(c,2)}')
        A(f'v_add_f32 v{a+1}, v{b}, v{b+1}')
        allsum(a + 1, b)
        A(f'v_mov_b32 v{VC+3}, 0x3f80')
        for k in range(4): A(f'v_mov_b32 v{SENT+k}, -1')
        A.wait_vm()
        A('s_mov_b64 exec, 0xffff')
        self.fstore([f'buffer_store_dwordx2 {vr(a,2)}, v{T0}, s[8:11], s31 offen'])
        A('s_mov_b64 exec, -1')
        self.stamp('xs')

    def gen(self):
        self.prologue()
        for L in range(self.nl): self.layer(L)
        A = self.A
        A.prof_end()
        A.label(f'{self.name}_END')
        A('s_endpgm')
        return A.text()

def make(path, prof=False, nl=4, dbg=False, sl=(0, 1, 2, 3), opt=None):
    import gen, json, emit
    DBG[0] = dbg
    p = P('pk', prof=1 if prof else None, nl=nl, stamp_layers=sl, opt=opt)
    ks = [('pk_kernel', p.gen(), 512, 256)]
    ls = [('pk_kernel', 256, P_LDS)]
    gen.build(ks, ls, path)
    if prof: json.dump(emit.PROF_NAMES, open(path + '.names', 'w'))
    print('nops', p.A.nops, 'lines', len(p.A.lines))

if __name__ == '__main__':
    import sys
    kw = eval('dict(' + (sys.argv[2] if len(sys.argv) > 2 else '') + ')')
    make(sys.argv[1], **kw)
```

```python
from emit import *
from lay2 import *
def emit_items(A, items):
    for it in items:
        if isinstance(it, str): A(it)
        elif it[0] == 'i': A(it[1], tag=it[2])
        elif it[0] == 'wvm': A.wait_vm(it[1])
        elif it[0] == 'wlg': A.wait_lg(it[1])
        elif it[0] == 'fn': it[1]()
        else: raise ValueError(it)

P_LDS = 163840
RS = 288
KREC = [0, 9216]
def PQ(rb): return 18432 + 9216 * rb
WOL = 55296
SC = 162816
LANE = 0; L16 = 1
VR = [2, 3]; VRL = [4, 5]; T0 = 6; T1 = 7
NM = 8; WCR = {'A': 12, 'B': 16}; XOLD = 20
DS1 = 30; DS2 = 31; REC0 = 32; REC = 33
TRA = {'B': [34, 35, 36], 'A': [37, 38]}; TRB0 = 39; TRB = 40
VSC = 41; VSTP = 42; VX = 43; VX3 = 44; VKA = {'A': 45, 'B': 46}; VPQ = 47
ACC = 48; RING = 80; TMP = 112; X1 = 132; X2 = 133; X3 = 134; X4 = 135; X5 = 136; X6 = 137
PK = 138; VC = 148; KFA = 152; KFB = 164; KC = 168; XL = 180; SENT = 184; STR = 112
S_RG = 20; S_HP = 21; S_BUD = 22; S_SAME = 23; S_EPS = 24; S_W2K = 25; S_XCC = 26
S_RBY = 27; S_CG = 28; S_W1K = 37
VKP = [188, 189, 190]
S_N = 80; S_M = 81; VXD = 244; VWD = 245
S_LO = 84; S_EP2 = 85; S_E = 86; S_EV = 88; S_ROT = 29
MW = 131072
STG = 132096; STG2 = STG + 10240; EV = 232; S0 = 0x1D10000
KR2 = WOL + 82 * 1024
BUDGET = 400000

def cost(it):
    if isinstance(it, str):
        if it.startswith(('v_exp', 'v_rcp', 'v_sqrt', 'v_rsq')): return 2
        if it.startswith('v_mfma'): return 4
        return 1
    if isinstance(it, list): return sum(cost(x) for x in it)
    return 1

def flat(items):
    out = []
    for it in items:
        if isinstance(it, list): out += flat(it)
        else: out.append(it)
    return out

def wreg(T, s):
    if T == 'A': return ar(4 * s, 4)
    return ar(160 + 4 * s, 4) if s < 24 else vr(192 + 4 * (s - 24), 4)

def dsaddr(off):
    return [L16, DS1, DS2][off >> 16], off & 0xffff

class P:
    def __init__(self, name, prof=None, nl=4, stamp_layers=(0, 1, 2, 3), opt=None):
        self.name = name; self.nl = nl; self.sl = stamp_layers
        self.A = Asm(); self.A.prof = prof
        self.nlab = 0
        self.opt = dict(FB=4, PRE=9, DMA_EVERY=3, YFB=1, MASK=1, WO1=100, W2=1, DCOST=2, RMIN=2.0, RX=1.1)
        if opt: self.opt.update(opt)
        self.L = 0
        self.wsc = ' sc1' if self.opt.get('WSC', 1) else ''
    def lab(self, s):
        self.nlab += 1
        return f'{self.name}_{s}{self.nlab}'
    def stamp(self, n):
        if self.L in self.sl: self.A.stamp(f'{n}{self.L}')
    def poll(self, loads, regs, tmp, sleep=0, pre=0):
        A = self.A
        lp, lg = self.lab('poll'), self.lab('go')
        A('s_nop 4')
        if pre: A(f's_sleep {pre}')
        if sleep:
            l1 = self.lab('p1')
            A(f's_branch {l1}')
            A.label(lp)
            A(f's_sleep {sleep}')
            A.label(l1)
        else:
            A.label(lp)
        for t in loads: A(t)
        A.wait_vm()
        r = list(regs)
        if len(r) == 1: m = r[0]
        else:
            m = tmp
            if len(r) == 2:
                A(f'v_max_u32 v{m}, v{r[0]}, v{r[1]}'); r = []
            else:
                A(f'v_max3_u32 v{m}, v{r[0]}, v{r[1]}, v{r[2]}'); r = r[3:]
            while len(r) >= 2:
                A(f'v_max3_u32 v{m}, v{m}, v{r[0]}, v{r[1]}'); r = r[2:]
            if r: A(f'v_max_u32 v{m}, v{m}, v{r[0]}')
        A(f'v_cmp_eq_u32 vcc, -1, v{m}')
        A(f's_sub_u32 s{S_BUD}, s{S_BUD}, 1')
        A(f's_cbranch_scc1 {lg}')
        if self.opt['MASK']: A('s_mov_b64 exec, vcc')
        A(f's_cbranch_vccnz {lp}')
        A.label(lg)
        if self.opt['MASK']: A('s_mov_b64 exec, -1')
        A(f's_max_i32 s{S_BUD}, s{S_BUD}, 0')
    def fstore(self, stores, tag=None):
        A = self.A
        ls, lj = self.lab('slow'), self.lab('join')
        A(f's_cmp_eq_u32 s{S_SAME}, 0')
        A(f's_cbranch_scc1 {ls}')
        n0 = len(A.lines)
        for t in stores: A(t, tag=tag)
        body = A.lines[n0:]
        A(f's_branch {lj}')
        A.label(ls)
        for ln in body:
            A.raw(ln + ' sc1' if 'buffer_store' in ln else ln)
        A.raw('    s_nop 0')
        A.label(lj)
    def srd_x(self, L):
        A = self.A
        A(f's_mul_i32 s30, s{S_RG}, 163840')
        A(f's_add_u32 s30, s30, {X(L)}')
        A('s_add_u32 s12, s4, s30')
        A('s_addc_u32 s13, s5, 0')
        A('s_and_b32 s13, s13, 0xffff')
    def srd_wo_items(self, T):
        return [f's_mul_i32 s30, s{S_CG}, 102400', f's_add_u32 s30, s30, {WOF[T] - WOL}',
                's_add_u32 s16, s4, s30', 's_addc_u32 s17, s5, 0', 's_and_b32 s17, s17, 0xffff']

    def ring(self, sg):
        sl = 32768 * (sg & 3)
        gs = []
        for t in range(4):
            gs.append([f's_add_u32 s101, s7, {15360*t}', f's_add_u32 m0, s100, {sl + 1024*t}',
                       ('i', f'buffer_load_dwordx4 v{VWD}, s[16:19], s101 offen lds', f'g{sg}')])
            gs.append([f's_add_u32 s101, s6, {40960*t}', f's_add_u32 m0, s{S_W1K}, {sl + 16384 + 4096*t}',
                       ('i', f'buffer_load_dwordx4 v{VXD}, s[12:15], s101 offen lds', f'g{sg}')])
        gs[-1] += [f's_cmp_eq_u32 s{S_ROT}, {9 - sg}', 's_cselect_b32 s101, -9, 1', 's_lshl_b32 s101, s101, 7', 's_add_u32 s6, s6, s101',
                   's_mul_i32 s101, s101, 1920', 's_add_u32 s7, s7, s101']
        return gs
    def prologue(self):
        A = self.A; o = self.opt
        nm = self.name
        A('s_load_dwordx2 s[4:5], s[0:1], 72')
        A('s_load_dwordx16 s[64:79], s[0:1], 0')
        A(f's_memrealtime s[{S_N}:{S_N+1}]')
        A('s_cmp_ge_u32 s2, 256')
        A(f's_cbranch_scc1 {nm}_END')
        A.stamp('rstart', real=True); A.stamp('start')
        A('v_lshrrev_b32 v2, 6, v0')
        A('v_and_b32 v0, 63, v0')
        A('v_readfirstlane_b32 s3, v2')
        A(f'v_lshlrev_b32 v{L16}, 4, v0')
        A('s_and_b32 s30, s2, 7')
        A('s_lshr_b32 s31, s2, 3')
        A(f's_lshl_b32 s{S_RG}, s30, 1')
        A('s_and_b32 s30, s31, 1')
        A(f's_add_u32 s{S_RG}, s{S_RG}, s30')
        A(f's_lshr_b32 s{S_HP}, s31, 1')
        A('s_mov_b32 s10, %d' % WS_SIZE); A('s_mov_b32 s11, 0x00020000')
        A(f's_lshl_b32 s83, s{S_RG}, 4'); A(f's_add_u32 s83, s83, s{S_HP}'); A('s_lshl_b32 s83, s83, 3')
        A('s_lshr_b32 s39, s83, 1'); A(f's_add_u32 s39, s39, {AR}')
        A(f's_lshr_b32 s{S_CG}, s{S_HP}, 1')
        A(f's_and_b32 s30, s{S_HP}, 1')
        A(f's_lshl_b32 s82, s{S_RG}, 1'); A('s_add_u32 s82, s82, s30')
        A('s_lshl_b32 s30, s30, 2')
        A(f's_lshl_b32 s{S_RBY}, s{S_RG}, 3')
        A(f's_add_u32 s{S_RBY}, s{S_RBY}, s30')
        A(f's_add_u32 s{S_RBY}, s{S_RBY}, s3')
        A(f's_lshl_b32 s{S_W2K}, s3, 11')
        A(f's_lshl_b32 s{S_W1K}, s3, 10')
        A(f's_mov_b32 s{S_BUD}, {BUDGET}')
        A(f's_mov_b32 s{S_EPS}, 0x358637bd')
        A(f's_getreg_b32 s{S_XCC}, hwreg(HW_REG_XCC_ID, 0, 16)')
        A('s_mov_b32 s14, 163840'); A('s_mov_b32 s15, 0x00020000')
        A('s_mov_b32 s19, 0x00020000'); A('s_mov_b32 s95, 0x00020000'); A('s_mov_b32 s99, 0x00020000'); A('s_mov_b32 s87, 0x00020000')
        A(f's_mov_b32 s98, {640*640*2}'); A(f's_mov_b32 s86, {32*400*2}')
        A(f's_mul_i32 s34, s{S_RG}, 163840')
        A(f's_mul_i32 s35, s{S_HP}, 80')
        A(f's_sub_u32 s18, {640*1920*2}, s35'); A('s_mov_b32 s94, s18')
        A('s_mul_i32 s6, s3, 10240'); A('s_mul_i32 s7, s3, 61440'); A('s_lshl_b32 s100, s3, 12')
        A(f's_lshr_b32 s32, s{S_RG}, 1'); A('s_sub_u32 s33, s32, 5'); A('s_min_u32 s32, s32, s33')
        A(f's_and_b32 s33, s{S_RG}, 1'); A('s_mul_i32 s33, s33, 5'); A(f's_add_u32 s{S_ROT}, s32, s33')
        A(f's_mul_i32 s32, s{S_ROT}, 245760'); A('s_add_u32 s7, s7, s32')
        A(f's_lshl_b32 s32, s{S_ROT}, 7'); A('s_add_u32 s6, s6, s32')
        A('s_lshl_b32 s38, s2, 2'); A('s_add_u32 s38, s38, s3')
        XS = 48; AX1 = 58; AX2 = 59; WP = 60; AP1 = 72; AP2 = 73; AOD = 74; PHI = 76; AOP = 84; AA = 100
        AOR = 104; AOS = 107; OD = 112; D0 = 192; PKB = 224
        G = 120; N_ = 121; SG = 122; G2 = 123; U1 = 124; U2 = 125; U3 = 126; U4 = 127
        A(f'v_lshrrev_b32 v{G}, 5, v0'); A(f'v_and_b32 v{N_}, 31, v0')
        A(f'v_mul_u32_u24 v{U1}, 1280, v{G}')
        A(f'v_lshl_add_u32 v{AX1}, v{N_}, 4, v{U1}'); A(f'v_lshl_add_u32 v{AX2}, v{N_}, 3, v{U1}')
        A(f'v_min_u32 v{U1}, 59, v0'); A(f'v_mul_u32_u24 v{U2}, 205, v{U1}'); A(f'v_lshrrev_b32 v{U2}, 10, v{U2}')
        A(f'v_mul_u32_u24 v{U2}, 1200, v{U2}'); A(f'v_lshl_add_u32 v{VWD}, v{U1}, 4, v{U2}')
        A('s_lshl_b32 s30, s3, 7')
        for j in range(2):
            A(f'v_add_u32 v{U1}, s30, v0')
            if j: A(f'v_add_u32 v{U1}, 64, v{U1}')
            A(f'v_min_u32 v{U1}, 399, v{U1}'); A(f'v_mul_u32_u24 v{U2}, 205, v{U1}'); A(f'v_lshrrev_b32 v{U2}, 11, v{U2}')
            A(f'v_mul_u32_u24 v{U2}, 1120, v{U2}'); A(f'v_lshl_add_u32 v{AOD+j}, v{U1}, 4, v{U2}')
        A(f'v_bfe_u32 v{U1}, v0, 3, 2'); A(f'v_and_b32 v{U2}, 3, v0'); A(f'v_lshl_add_u32 v{SG}, v{U1}, 2, v{U2}')
        A(f'v_bfe_u32 v{G2}, v0, 2, 1')
        A(f'v_mul_u32_u24 v{U1}, 20, v{G2}'); A(f'v_lshl_add_u32 v{U1}, v{SG}, 1, v{U1}')
        A(f'v_mov_b32 v{U3}, {OOB}'); A(f'v_cmp_gt_u32 vcc, 10, v{SG}'); A(f'v_cndmask_b32 v{U1}, v{U3}, v{U1}, vcc')
        A(f'v_mul_u32_u24 v{U2}, 320, v{G}'); A(f'v_add_u32 v{AP1}, v{U1}, v{U2}')
        A(f'v_cmp_gt_u32 vcc, 32, v0'); A(f'v_cndmask_b32 v{AP2}, v{U3}, v{U1}, vcc')
        A(f'v_lshrrev_b32 v{U1}, 3, v0'); A(f'v_and_b32 v{U2}, 6, v{U1}'); A(f'v_mul_u32_u24 v{U1}, 1280, v{U1}')
        A(f'v_and_b32 v{U3}, 7, v0'); A(f'v_xor_b32 v{U2}, v{U2}, v{U3}')
        A(f'v_lshl_add_u32 v{VXD}, v{U2}, 4, v{U1}')
        A('s_and_b32 s30, s3, 1'); A('s_lshl_b32 s30, s30, 4'); A(f'v_xor_b32 v{VXD}, s30, v{VXD}')
        A(f's_mul_i32 s30, s{S_HP}, 10240'); A('s_mul_i32 s31, s3, 2560'); A('s_add_u32 s30, s30, s31')
        A(f's_mul_i32 s31, s{S_HP}, 1600'); A('s_and_b32 s32, s3, 1'); A('s_mul_i32 s32, s32, 800'); A('s_add_u32 s31, s31, s32')
        A(f's_mul_i32 s32, s{S_RG}, {40*3840}')
        A('s_and_b32 s33, s82, 15'); A(f's_mul_i32 s33, s33, {40*1280}'); A(f's_mul_i32 s36, s{S_CG}, 160'); A('s_add_u32 s33, s33, s36')
        A.wait_lg()
        A('s_mov_b32 s8, s4')
        A('s_and_b32 s9, s5, 0xffff')
        A('s_add_u32 s12, s64, s34')
        A('s_addc_u32 s13, s65, 0')
        A('s_and_b32 s13, s13, 0xffff')
        A(f'v_mov_b32 v2, s{S_N}')
        A('s_cmp_lg_u32 s3, 2')
        A(f's_cbranch_scc1 {nm}_noar')
        A('s_mov_b64 exec, 1')
        A('buffer_store_dword v2, off, s[8:11], s39 sc1')
        A('s_mov_b64 exec, -1')
        A.label(f'{nm}_noar')
        A.vm = []
        A(f'buffer_load_dwordx4 {vr(XS,4)}, v{AX1}, s[12:15], s30 offen', tag='xs')
        A(f'buffer_load_dwordx4 {vr(XS+4,4)}, v{AX1}, s[12:15], s30 offen offset:512', tag='xs')
        A(f'buffer_load_dwordx2 {vr(XS+8,2)}, v{AX2}, s[12:15], s30 offen offset:1024', tag='xs')
        A('s_add_u32 s92, s72, s35'); A('s_addc_u32 s93, s73, 0'); A('s_and_b32 s93, s93, 0xffff')
        A('s_add_u32 s16, s66, s35'); A('s_addc_u32 s17, s67, 0'); A('s_and_b32 s17, s17, 0xffff')
        A('s_cmp_ge_u32 s82, 16'); A('s_cselect_b32 s96, s76, s68'); A('s_cselect_b32 s97, s77, s69'); A('s_and_b32 s97, s97, 0xffff')
        A('s_mov_b32 s84, s74'); A('s_and_b32 s85, s75, 0xffff')
        for j in range(3):
            A(f's_add_u32 s34, s3, {4*j}')
            if j == 2: A('s_min_u32 s34, s34, 9')
            A('s_mul_i32 s35, s34, 15360'); A('s_add_u32 s35, s35, s32')
            A('s_lshl_b32 s34, s34, 10'); A(f's_add_u32 m0, s34, {STG}')
            A(f'buffer_load_dwordx4 v{VWD}, s[92:95], s35 offen lds', tag='pl')
        for j in range(2):
            A(f's_add_u32 m0, s{S_W2K}, {STG2 + 1024*j}')
            A(f'buffer_load_dwordx4 v{AOD+j}, s[96:99], s33 offen lds', tag='pl')
        for j in range(12):
            A(f'buffer_load_ushort v{WP+j}, v{AP1 if j < 8 else AP2}, s[84:87], s31 offen offset:{40*j if j < 8 else 320+40*j}', tag='wp')
        self.stamp('p1')
        E = 208
        sv = list(A.vm)
        A('s_cmp_lg_u32 s38, 2')
        A(f's_cbranch_scc1 {nm}_nm')
        A(f's_mov_b32 s30, {AR}'); A(f's_mov_b32 s31, {EC}'); A(f's_mov_b32 s32, {o.get("MR", 8)}')
        A(f'v_lshlrev_b32 v{E+12}, 5, v0')
        A(f's_sub_u32 s33, 1000, s{S_N}')
        for k in range(4): A(f'v_mov_b32 v{E+17+2*k}, s{S_N}')
        A.label(f'{nm}_ml0')
        A(f'buffer_load_dwordx4 {vr(E+8,4)}, v{L16}, s[8:11], s30 offen sc1')
        A.wait_vm()
        for k in range(4): A(f'v_mov_b32 v{E+16+2*k}, v{E+8+k}')
        A(f'buffer_store_dwordx4 {vr(E+16,4)}, v{E+12}, s[8:11], s31 offen sc1')
        A(f'buffer_store_dwordx4 {vr(E+20,4)}, v{E+12}, s[8:11], s31 offen offset:16 sc1')
        for k in range(4): A(f'v_add_u32 v{E+8+k}, s33, v{E+8+k}')
        A(f'v_max3_u32 v{E+8}, v{E+8}, v{E+9}, v{E+10}'); A(f'v_max_u32 v{E+8}, v{E+8}, v{E+11}')
        A(f'v_cmp_lt_u32 vcc, 0xfa0, v{E+8}')
        A('s_sub_u32 s32, s32, 1')
        A(f's_cbranch_scc1 {nm}_nm')
        A('s_nop 4')
        A(f's_cbranch_vccnz {nm}_ml0')
        A.label(f'{nm}_nm'); A.vm = sv
        A('s_nop 4')
        dq = self.ring(0) + self.ring(1) + self.ring(2)
        def mix(items, every, n=None):
            k = 0
            for it in flat(items):
                emit_items(A, [it]); k += 1
                if k % every == 0 and dq and (n is None or n > 0) and not (isinstance(it, str) and it.startswith(('s_', 'v_cmp'))):
                    emit_items(A, dq.pop(0))
                    if n is not None: n -= 1
                elif k % every == 0: k -= 1
        for _ in range(o.get('R0', 8)): emit_items(A, dq.pop(0))
        for k in range(4): A(f'v_mov_b32 v{SENT+k}, -1')
        for g in self.clears(-1): emit_items(A, flat(g))
        self.stamp('p2')
        it = []
        a = it.append
        a('s_cmp_lt_u32 s3, 2'); a('s_cselect_b32 s30, 6, 4'); a('s_cselect_b32 s32, 6, 4')
        a(f'v_mul_u32_u24 v{U1}, s30, v{G2}'); a(f'v_add_u32 v{U1}, v{U1}, v{SG}'); a(f'v_lshl_add_u32 v{U2}, v{G}, 3, 6'); a(f'v_sub_u32 v{U1}, v{U1}, v{U2}')
        a(f'v_subrev_u32 v{U2}, 10, v{SG}'); a(f'v_cmp_gt_u32 vcc, s32, v{U2}'); a(f'v_cndmask_b32 v{U1}, 64, v{U1}, vcc')
        a(f'v_and_b32 v{U2}, 1, v{U1}'); a(f'v_lshlrev_b32 v{U2}, 4, v{U2}'); a(f'v_mov_b32 v{U3}, 0x3f80'); a(f'v_lshlrev_b32 v{U2}, v{U2}, v{U3}')
        a(f'v_lshrrev_b32 v{U1}, 1, v{U1}')
        for r in range(4):
            a(f'v_cmp_eq_u32 vcc, {r}, v{U1}'); a(f'v_cndmask_b32 v{PHI+4+r}, 0, v{U2}, vcc')
        a(f'v_bfe_u32 v{U1}, v0, 4, 1'); a(f'v_lshl_add_u32 v{U1}, v{U1}, 1, v{G2}'); a(f'v_bfe_u32 v{U2}, v0, 3, 1'); a(f'v_lshl_add_u32 v{U1}, v{U1}, 1, v{U2}')
        a(f'v_and_b32 v{U2}, 3, v0'); a(f'v_mul_u32_u24 v{U2}, 240, v{U2}'); a(f'v_lshl_add_u32 v{U1}, v{U1}, 10, v{U2}')
        a(f'v_lshl_add_u32 v{U2}, v{G}, 4, v{U1}')
        a('s_and_b32 s33, s3, 1'); a('s_mul_i32 s33, s33, 40'); a(f's_add_u32 s33, s33, {STG}')
        a('s_cmp_lt_u32 s3, 2'); a('s_cselect_b32 s30, 80, 0'); a('s_cselect_b32 s32, 0, 24'); a('s_add_u32 s32, s32, 160')
        a('s_add_u32 s30, s30, s33'); a('s_add_u32 s32, s32, s33')
        a(f'v_add_u32 v{AA}, s30, v{U2}'); a(f'v_add_u32 v{AA+2}, s32, v{U2}')
        a(f'v_add_u32 v{U3}, 32, v{AA}'); a(f'v_subrev_u32 v{U4}, 8, v{AA+2}')
        a(f'v_cmp_gt_u32 vcc, 32, v0'); a(f'v_cndmask_b32 v{AA+1}, v{U4}, v{U3}, vcc')
        G4 = G; R_ = N_; X_ = SG
        a(f'v_lshrrev_b32 v{G4}, 4, v0'); a(f'v_bfe_u32 v{R_}, v0, 2, 2'); a(f'v_and_b32 v{X_}, 3, v0')
        a(f'v_mul_u32_u24 v{U1}, 10, v{G4}'); a(f'v_add_u32 v{U1}, v{U1}, v{R_}'); a(f'v_mul_u32_u24 v{U1}, 160, v{U1}')
        a('s_and_b32 s30, s3, 1'); a('s_lshl_b32 s30, s30, 3'); a('s_lshr_b32 s32, s3, 1'); a('s_lshl_b32 s32, s32, 6'); a('s_add_u32 s30, s30, s32')
        a(f's_add_u32 s30, s30, {STG2}')
        a(f'v_lshl_add_u32 v{U2}, v{X_}, 4, s30'); a(f'v_add_u32 v{AOR}, v{U1}, v{U2}')
        a(f'v_bfe_u32 v{U2}, v0, 3, 1'); a(f'v_mul_u32_u24 v{U2}, 18, v{U2}'); a(f'v_add3_u32 v{U2}, v{U2}, v{R_}, 8'); a(f'v_mul_u32_u24 v{U2}, 160, v{U2}')
        a('s_cmp_eq_u32 s3, 1'); a('s_cselect_b64 vcc, -1, 0'); a('s_movk_i32 s32, 1600'); a('s_cselect_b32 s32, 640, s32')
        a(f'v_cndmask_b32 v{U1}, v{U2}, v{U1}, vcc')
        a(f'v_cndmask_b32 v{G2}, 4, v{G4}, vcc')
        a(f'v_and_b32 v{U2}, 1, v{G4}'); a(f'v_lshlrev_b32 v{U2}, 3, v{U2}'); a(f'v_lshl_add_u32 v{U2}, v{X_}, 4, v{U2}')
        a(f'v_lshrrev_b32 v{U3}, 1, v{G4}'); a(f'v_lshl_add_u32 v{U2}, v{U3}, 6, v{U2}')
        a(f'v_lshlrev_b32 v{U3}, 3, v{X_}'); a(f'v_add_u32 v{U3}, 0x80, v{U3}')
        a('s_cmp_eq_u32 s3, 0'); a('s_cselect_b64 vcc, -1, 0')
        a(f'v_cndmask_b32 v{U2}, v{U3}, v{U2}, vcc')
        a(f'v_cndmask_b32 v{U4}, 4, v{G4}, vcc')
        a(f's_mov_b32 s30, {STG2}'); a(f'v_add3_u32 v{AOR+1}, v{U1}, v{U2}, s30'); a(f'v_add_u32 v{AOR+2}, s32, v{AOR+1}')
        a('s_and_b32 s30, s82, 15'); a('s_mul_i32 s30, s30, 5')
        a(f'v_and_b32 v{U3}, 0xf0, v{L16}')
        for rd, (jj, mt) in enumerate(((G4, 's3'), (G2, f'v{U4}'))):
            a(f'v_add_u32 v{U1}, s30, v{jj}'); a(f'v_lshrrev_b32 v{U2}, 2, v{U1}'); a(f'v_and_b32 v{U1}, 3, v{U1}')
            a(f'v_mul_u32_u24 v{U2}, 5, v{U2}'); a(f'v_add_u32 v{U2}, {mt}, v{U2}')
            a(f'v_lshl_add_u32 v{U1}, v{U1}, 8, v{U3}'); a(f'v_lshl_add_u32 v{AOS+rd}, v{U2}, 10, v{U1}')
        it += self.setup0() + self.setup_addr() + self.rec_toggle('A')
        mix(it, o.get('M1', 20), o.get('R1', 8))
        self.stamp('p3')
        it = [('wvm', 'xs')]
        a = it.append
        for k in range(4): a(f'v_mov_b32 v{U1+k}, 0')
        for k in range(10):
            a(f'v_dot2c_f32_bf16 v{U1+(k&1)}, 0x3f803f80, v{XS+k}'); a(f'v_dot2c_f32_bf16 v{U3+(k&1)}, v{XS+k}, v{XS+k}')
        a(f'v_add_f32 v{X2}, v{U1}, v{U2}'); a(f'v_add_f32 v{X3}, v{U3}, v{U4}')
        for d in ('quad_perm:[1,0,3,2]', 'quad_perm:[2,3,0,1]', 'row_half_mirror', 'row_mirror'):
            for x in (X2, X3): a(f'v_add_f32_dpp v{x}, v{x}, v{x} {d} row_mask:0xf bank_mask:0xf')
        a(f'v_mov_b32 v{X1}, v{X2}'); a(f'v_mov_b32 v{X4}, v{X3}')
        a(f'v_permlane16_swap_b32 v{X1}, v{X2}'); a(f'v_permlane16_swap_b32 v{X3}, v{X4}')
        a(f'v_add_f32 v{X2}, v{X1}, v{X2}')
        a(f'v_add_f32 v{X3}, v{X3}, v{X4}')
        a(f'v_mul_f32 v{X1}, 0x3acccccd, v{X2}')
        a(f'v_fma_f32 v{X3}, -v{X1}, v{X2}, v{X3}')
        a(f'v_max_f32 v{X3}, 0, v{X3}')
        a(f'v_cvt_pk_bf16_f32 v{X5}, -v{X1}, -v{X1}')
        st = self.stats_items()
        it += st[st.index(f'v_mul_f32 v{X3}, 0x3acccccd, v{X3}'):-1]
        a(f'v_lshrrev_b32 v{X1}, 2, v0')
        a([f's_lshl_b32 s30, s83, 3', 's_lshl_b32 s32, s3, 4', 's_add_u32 s30, s30, s32', f's_add_u32 s30, s30, {S0}',
           's_mov_b32 exec_lo, 1', 's_mov_b32 exec_hi, 1'])
        a(('i', f'buffer_store_dwordx2 v[{X5}:{X6}], v{X1}, s[8:11], s30 offen sc1', 'pst'))
        emit_items(A, flat(it)); A('s_mov_b64 exec, -1')
        A.wait_vm('wp')
        self.stamp('p4')
        A('s_barrier')
        it = []
        a = it.append
        for mb in range(2):
            a(('i', f'ds_read_b64 {vr(AOP+8*mb,2)}, v{AA} offset:{8192*mb}', f'pa{mb}'))
            a(('i', f'ds_read_b64 {vr(AOP+8*mb+2,2)}, v{AA} offset:{8192*mb+8}', f'pa{mb}'))
            a(('i', f'ds_read_b64 {vr(AOP+8*mb+4,2)}, v{AA+1} offset:{8192*mb}', f'pa{mb}'))
            a(('i', f'ds_read_b64 {vr(AOP+8*mb+6,2)}, v{AA+2} offset:{8192*mb}', f'pa{mb}'))
        a(('i', f'ds_read_b64_tr_b16 {vr(OD,2)}, v{AOR}', 'po'))
        a(('i', f'ds_read_b64_tr_b16 {vr(OD+2,2)}, v{AOR} offset:640', 'po'))
        a(('i', f'ds_read_b64_tr_b16 {vr(OD+4,2)}, v{AOR+1}', 'po'))
        a(('i', f'ds_read_b64_tr_b16 {vr(OD+6,2)}, v{AOR+2}', 'po'))
        for k in range(4): a(f'v_lshl_or_b32 v{PHI+k}, v{WP+2*k+1}, 16, v{WP+2*k}')
        for k in range(2):
            a(f'v_lshl_or_b32 v{WP+8+2*k}, v{WP+9+2*k}, 16, v{WP+8+2*k}'); a(f'v_or_b32 v{PHI+4+k}, v{PHI+4+k}, v{WP+8+2*k}')
        a(f's_lshl_b32 s90, s{S_HP}, 2'); a('s_add_u32 s90, s90, s3'); a('s_mul_i32 s90, s90, 40960')
        a(f's_mul_i32 s34, s{S_RG}, 2560'); a('s_add_u32 s34, s34, s90'); a(f's_add_u32 s34, s34, {WF["B"]}')
        a('s_lshr_b32 s35, s82, 4'); a(f's_mul_i32 s35, s35, {WOF["B"]-WOF["A"]}'); a(f's_mul_i32 s30, s{S_CG}, 102400'); a('s_add_u32 s35, s35, s30')
        a(f's_add_u32 s35, s35, {WOF["A"]}')
        for mb in range(2):
            a(('wlg', f'pa{mb}'))
            for u in range(2):
                a(f'v_mfma_f32_32x32x16_bf16 {vr(D0+16*mb,16)}, {vr(AOP+8*mb+4*u,4)}, {vr(PHI+4*u,4)}, {"0" if u == 0 else vr(D0+16*mb,16)}')
        a(('wlg', 'po'))
        a(('i', f'buffer_store_dwordx4 {vr(OD,4)}, v{AOS}, s[8:11], s35 offen sc1', 'pst'))
        a(('i', f'buffer_store_dwordx4 {vr(OD+4,4)}, v{AOS+1}, s[8:11], s35 offen sc1', 'pst'))
        for x in range(12):
            a(f'v_cvt_pk_bf16_f32 v{PKB+x}, v{D0+2*x}, v{D0+2*x+1}')
            if x == 3: a(('i', f'buffer_store_dwordx4 {vr(PKB,4)}, v{L16}, s[8:11], s34 offen sc1', 'pst'))
            if x == 7: a(('i', f'buffer_store_dwordx4 {vr(PKB+4,4)}, v{L16}, s[8:11], s34 offen offset:1024 sc1', 'pst'))
        emit_items(A, it)
        A('s_mov_b32 exec_hi, 0')
        A(f'buffer_store_dwordx4 {vr(PKB+8,4)}, v{L16}, s[8:11], s34 offen offset:2048 sc1', tag='pst')
        A('s_mov_b64 exec, -1')
        A(f's_add_u32 s39, s83, {EC}')
        A(f'buffer_load_dwordx2 {vr(EV,2)}, off, s[8:11], s39 sc1', tag='ec')
        self.stamp('pc')
        it = self.xa_items(TMP)
        a = it.append
        a('s_bitcmp1_b32 s3, 0')
        a(f's_cselect_b32 s{S_LO}, 0xff800000, 0'); a(f's_cselect_b32 s{S_EP2}, 0, s{S_EPS}'); a(f's_cselect_b32 s{S_E}, 0, 1.0')
        a(f's_cselect_b64 s[{S_EV}:{S_EV+1}], 0, -1')
        WA = TMP + 4
        tb = [[10, 11, 12, 20], [13, 14, 22, 21], [0, 1, 2, 23], [3, 4, 24, 24]]
        tb = [sum(x << (8 * k) for k, x in enumerate(t)) for t in tb]
        a(f's_mov_b32 s30, {tb[1]}'); a(f's_mov_b32 s33, {tb[0]}'); a('s_cselect_b32 s30, s30, s33')
        a(f's_mov_b32 s33, {tb[3]}'); a(f's_mov_b32 s32, {tb[2]}'); a('s_cselect_b32 s33, s33, s32')
        a('s_bitcmp1_b32 s3, 1'); a('s_cselect_b32 s30, s33, s30')
        a(f'v_bfe_u32 v{X1}, v0, 4, 1'); a(f'v_bfe_u32 v{X2}, v0, 1, 1'); a(f'v_lshl_add_u32 v{X1}, v{X1}, 1, v{X2}')
        a(f'v_lshlrev_b32 v{X1}, 3, v{X1}'); a(f'v_lshrrev_b32 v{X1}, v{X1}, s30'); a(f'v_and_b32 v{X1}, 31, v{X1}')
        a(f'v_and_b32 v{X2}, 1, v0'); a(f'v_mul_u32_u24 v{X2}, 5, v{X2}')
        a(f'v_bfe_u32 v{X3}, v0, 2, 2'); a(f'v_mul_u32_u24 v{X3}, 30, v{X3}')
        a(f'v_add3_u32 v{X1}, v{X1}, v{X2}, v{X3}')
        a(f'v_lshrrev_b32 v{X2}, 5, v0'); a(f'v_lshlrev_b32 v{X2}, 11, v{X2}')
        a(f'v_lshl_add_u32 v{WA}, v{X1}, 3, v{X2}')
        a(f's_add_u32 s36, s83, {FL}')
        a(f'v_mov_b32 v{EV+3}, s{S_XCC}')
        a(f'v_mov_b32 v{EV+4}, {MW}')
        it += self.onesel(NM)
        emit_items(A, it)
        self.dq = dq
    def onesel(self, d):
        return [f'v_lshrrev_b32 v{X1}, 2, v0', f'v_xor_b32 v{X1}, v{X1}, v0', f'v_and_b32 v{X1}, 4, v{X1}', f'v_cmp_eq_u32 vcc, 0, v{X1}',
                f'v_mov_b32 v{X1}, 0x3f803f80'] + [f'v_cndmask_b32 v{d+k}, 0, v{X1}, vcc' for k in range(4)]
    def flag(self):
        A = self.A; nm = self.name
        A('s_cmp_lg_u32 s3, 2')
        A(f's_cbranch_scc1 {nm}_go')
        sv = list(A.vm); sl = list(A.lg)
        A(f'v_mov_b32 v{EV+2}, s{S_N}')
        A('s_cmp_eq_u32 s38, 2')
        A(f's_cbranch_scc1 {nm}_ex')
        A(f's_branch {nm}_e1')
        A.label(f'{nm}_ec')
        A(f'buffer_load_dwordx2 {vr(EV,2)}, off, s[8:11], s39 sc1')
        A.wait_vm()
        A.label(f'{nm}_e1')
        A(f'v_readfirstlane_b32 s33, v{EV}')
        A(f'v_mov_b32 v{EV+2}, v{EV+1}')
        A(f's_sub_u32 s{S_BUD}, s{S_BUD}, 1')
        A(f's_cbranch_scc1 {nm}_ex')
        A(f's_cmp_lg_u32 s33, s{S_N}')
        A(f's_cbranch_scc1 {nm}_ec')
        A.label(f'{nm}_ex')
        A(f's_max_i32 s{S_BUD}, s{S_BUD}, 0')
        A('s_mov_b64 exec, 1')
        A(f'buffer_store_dwordx2 {vr(EV+2,2)}, off, s[8:11], s36 sc1')
        A(f'ds_write_b32 v{EV+4}, v{EV+2}')
        A('s_mov_b64 exec, -1')
        A.label(f'{nm}_go')
        A.vm = sv; A.lg = sl
        A('s_nop 4')
    def touch(self, d0=XL, va=X1, lane=0):
        it = [f'v_min_u32 v{va}, 19, v{lane}', f'v_lshlrev_b32 v{va}, 7, v{va}',
              f's_mul_i32 s30, s{S_RG}, 163840', f's_mul_i32 s31, s{S_HP}, 10240', 's_add_u32 s30, s30, s31', 's_mul_i32 s31, s3, 2560',
              's_add_u32 s30, s30, s31', f's_add_u32 s31, s30, {O(0)}', f's_add_u32 s30, s30, {X(1)}',
              ('i', f'buffer_load_dword v{d0}, v{va}, s[8:11], s31 offen', 'pt'),
              ('i', f'buffer_load_dword v{d0+1}, v{va}, s[8:11], s30 offen', 'pt')]
        return it
    def xa_items(self, dst):
        return [f'v_and_b32 v{X1}, 31, v0', f'v_lshlrev_b32 v{X1}, 7, v{X1}',
                f'v_and_b32 v{X2}, 6, v0', f'v_bfe_u32 v{X3}, v0, 3, 1', f'v_lshrrev_b32 v{X4}, 5, v0',
                f'v_xor_b32 v{X2}, v{X2}, v{X3}', f'v_xor_b32 v{X2}, v{X2}, v{X4}',
                f'v_lshl_add_u32 v{dst}, v{X2}, 4, v{X1}'] + [f'v_xor_b32 v{dst+j}, {32*j}, v{dst}' for j in (1, 2, 3)]
    def setup0(self):
        it = []
        a = it.append
        a(f'v_bfe_u32 v{T0}, v0, 4, 1')
        a(f'v_lshrrev_b32 v{T1}, 5, v0')
        a(f'v_lshlrev_b32 v{T0}, 10, v{T0}')
        a(f'v_lshl_add_u32 v{T0}, v{T1}, 9, v{T0}')
        a(f'v_and_b32 v{T1}, 15, v0')
        a(f'v_lshl_add_u32 v{VSTP}, v{T1}, 3, v{T0}')
        a('s_and_b32 s30, s3, 1')
        a('s_lshl_b32 s30, s30, 8')
        a(f'v_lshlrev_b32 v{T1}, 4, v{T1}')
        a(f'v_add_u32 v{T1}, s30, v{T1}')
        a(f'v_lshrrev_b32 v{T0}, 4, v0')
        a(f'v_lshl_add_u32 v{VX}, v{T0}, 9, v{T1}')
        a(f'v_lshrrev_b32 v2, 5, v0')
        a(f'v_lshl_add_u32 v{T1}, v2, 9, v{T1}')
        a(f'v_and_b32 v{T0}, 1, v{T0}')
        a(f'v_lshl_add_u32 v{T1}, v{T0}, 3, v{T1}')
        a(f'v_add_u32 v{VX3}, 0x1000, v{T1}')
        return it

    def setup_addr(self):
        it = []
        a = it.append
        a(f'v_add_u32 v{DS1}, 0x10000, v{L16}')
        a(f'v_add_u32 v{DS2}, 0x20000, v{L16}')
        a(f'v_and_b32 v{T0}, 31, v0')
        a(f'v_lshrrev_b32 v{T1}, 5, v0')
        a(f'v_lshlrev_b32 v{VSC}, 3, v{T0}')
        a(f'v_add_u32 v{VSC}, {SC}, v{VSC}')
        a(f'v_mul_u32_u24 v{T0}, {RS}, v{T0}')
        a(f'v_lshl_add_u32 v{T0}, v{T1}, 6, v{T0}')
        a('s_and_b32 s30, s3, 1')
        a('s_lshl_b32 s30, s30, 7')
        a(f'v_add_u32 v{REC0}, s30, v{T0}')
        a('s_mul_i32 s30, s3, 9216')
        a(f's_add_u32 s30, s30, {PQ(0)}')
        a(f'v_add_u32 v{VPQ}, s30, v{T0}')
        a(f'v_lshrrev_b32 v{T0}, 2, v0')
        a(f'v_mul_u32_u24 v{T0}, {RS}, v{T0}')
        a('s_lshr_b32 s30, s3, 1')
        a('s_lshl_b32 s30, s30, 7')
        a(f'v_add_u32 v{T0}, s30, v{T0}')
        a(f'v_and_b32 v{T1}, 3, v0')
        for T, nch in (('B', 5), ('A', 3)):
            for mt, r in enumerate(TRA[T]):
                a(f'v_add_u32 v{X1}, {4*mt}, v{T1}')
                a(f'v_min_u32 v{X1}, {2*nch-1}, v{X1}')
                a(f'v_cmp_le_u32 vcc, {nch}, v{X1}')
                a(f'v_cndmask_b32 v{X2}, 0, {64-8*nch}, vcc')
                a(f'v_lshl_add_u32 v{X1}, v{X1}, 3, v{X2}')
                a(f'v_add_u32 v{r}, v{X1}, v{T0}')
        a(f'v_lshrrev_b32 v{X1}, 1, v{T1}')
        a(f'v_and_b32 v{X2}, 1, v{T1}')
        a(f'v_lshlrev_b32 v{X1}, 6, v{X1}')
        a(f'v_lshl_add_u32 v{X1}, v{X2}, 3, v{X1}')
        a(f'v_lshlrev_b32 v{X2}, 6, v{X2}')
        a('s_bitcmp1_b32 s3, 0')
        a('s_cselect_b64 vcc, -1, 0')
        a(f'v_cndmask_b32 v{X1}, v{X1}, v{X2}, vcc')
        a(f'v_add3_u32 v{TRB0}, v{X1}, v{T0}, 48')
        a(f'v_bfe_u32 v{X1}, v0, 3, 2')
        a(f'v_and_b32 v{X2}, 3, v0')
        a(f'v_lshl_add_u32 v{X1}, v{X1}, 2, v{X2}')
        a(f'v_bfe_u32 v{X2}, v0, 2, 1')
        a(f'v_mul_u32_u24 v{X2}, 10, v{X2}')
        a(f'v_add_u32 v{X2}, v{X2}, v{X1}')
        a(f'v_cmp_gt_u32 s[30:31], 10, v{X1}')
        a(f'v_lshrrev_b32 v{X1}, 5, v0')
        for T in 'BA':
            if T == 'B':
                a(f'v_cmp_le_u32 vcc, 6, v{X2}')
                a(f'v_cndmask_b32 v{X3}, 0, 2, vcc')
                a(f'v_cmp_le_u32 vcc, 12, v{X2}')
                a(f'v_cndmask_b32 v{X4}, 0, 2, vcc')
                a(f'v_add3_u32 v{X3}, v{X2}, v{X3}, v{X4}')
                a(f'v_cndmask_b32 v{X3}, 6, v{X3}, s[30:31]')
            else:
                a(f'v_cmp_le_u32 vcc, 4, v{X2}')
                a(f'v_cndmask_b32 v{X3}, 0, 4, vcc')
                a(f'v_add_u32 v{X3}, v{X2}, v{X3}')
                a(f'v_cndmask_b32 v{X3}, 4, v{X3}, s[30:31]')
            a(f'v_lshrrev_b32 v{X4}, 3, v{X3}')
            a(f'v_lshl_add_u32 v{X4}, v{X4}, 1, v{X1}')
            a(f'v_and_b32 v{X3}, 7, v{X3}')
            a(f'v_mul_u32_u24 v{X4}, {0xc0 if T == "A" else 0x140}, v{X4}')
            a(f'v_lshl_add_u32 v{VKA[T]}, v{X3}, 3, v{X4}')
        for k in range(4): a(f'v_mov_b32 v{SENT+k}, -1')
        a(f'v_mov_b32 v{VC+3}, 0x3f80')
        return it

    def stats_items(self):
        S = STR
        return [
        f'v_add_f32 v{X1}, v{S}, v{S+2}', f'v_add_f32 v{X2}, v{S+4}, v{S+6}',
        f'v_add_f32 v{X1}, v{X1}, v{X2}', f'v_mov_b32 v{X2}, v{X1}',
        f'v_add_f32 v{X3}, v{S+1}, v{S+3}',
        f'v_add_f32 v{X4}, v{S+5}, v{S+7}',
        f'v_permlane32_swap_b32 v{X1}, v{X2}',
        f'v_add_f32 v{X3}, v{X3}, v{X4}',
        f'v_add_f32 v{X1}, v{X1}, v{X2}',
        f'v_mul_f32 v{X1}, 0.125, v{X1}',
        f'v_sub_f32 v{S}, v{S}, v{X1}', f'v_sub_f32 v{S+2}, v{S+2}, v{X1}',
        f'v_sub_f32 v{S+4}, v{S+4}, v{X1}', f'v_sub_f32 v{S+6}, v{S+6}, v{X1}',
        f'v_mul_f32 v{X2}, v{S}, v{S}', f'v_fmac_f32 v{X2}, v{S+2}, v{S+2}',
        f'v_fmac_f32 v{X2}, v{S+4}, v{S+4}', f'v_fmac_f32 v{X2}, v{S+6}, v{S+6}',
        f'v_fmac_f32 v{X3}, 0x42a00000, v{X2}',
        f'v_mov_b32 v{X4}, v{X3}',
        f'v_cvt_pk_bf16_f32 v{X5}, -v{X1}, -v{X1}',
        f's_lshl_b32 s30, s3, 8',
        f'v_permlane32_swap_b32 v{X3}, v{X4}',
        f'v_add_u32 v{X1}, s30, v{VSC}',
        f'v_add_f32 v{X3}, v{X3}, v{X4}',
        f'v_mul_f32 v{X3}, 0x3acccccd, v{X3}',
        f'v_cvt_pk_bf16_f32 v{X3}, v{X3}, v{X3}',
        f'v_lshlrev_b32 v{X3}, 16, v{X3}',
        f'v_add_f32 v{X3}, 0x3727c5ac, v{X3}',
        f'v_cvt_pk_bf16_f32 v{X3}, v{X3}, v{X3}',
        f'v_lshlrev_b32 v{X3}, 16, v{X3}',
        f'v_sqrt_f32 v{X3}, v{X3}',
        f'v_cvt_pk_bf16_f32 v{X3}, v{X3}, v{X3}',
        f'v_lshlrev_b32 v{X3}, 16, v{X3}',
        f'v_rcp_f32 v{X6}, v{X3}',
        ('i', f'ds_write_b64 v{X1}, v[{X5}:{X6}]', 'sc')]
    def st_loads(self, L):
        return [f'buffer_load_dwordx2 {vr(STR+2*c,2)}, v{VSTP}, s[8:11], s31 offen offset:{128*c} sc1' for c in range(4)]
    def st_soff(self, L):
        return [f's_lshl_b32 s31, s{S_RG}, 13', f's_add_u32 s31, s31, s{S_W2K}', f's_add_u32 s31, s31, {ST(L)}']
    def xchunk(self, c):
        it = [f's_add_u32 m0, s{S_W1K}, {4096*c}']
        if c == 39: it.append(f's_min_u32 m0, m0, {158*1024}')
        it += [('i', f'buffer_load_dwordx4 v{L16}, s[12:15], m0 offen sc1 lds', f'x{c}')]
        if c == 39:
            it += [f's_mov_b32 s30, {159*1024}',
                   ('i', f'buffer_load_dwordx4 {vr(XL,4)}, v{L16}, s[12:15], s30 offen sc1', f'x{c}')]
        return it
    def wloads(self, T, s0, n):
        it = [f's_add_u32 s30, s90, {WF[T] + 1024*s0}']
        for k in range(n):
            it.append(('i', f'buffer_load_dwordx4 {wreg(T, s0+k)}, v{L16}, s[8:11], s30 offen offset:{1024*k}{self.wsc}', f'w{T}{s0}'))
        return it
    def wo_dma(self, f0, f1):
        gs = []
        f = f0
        while f < f1:
            it = [f's_add_u32 m0, s{S_W1K}, {WOL + 1024*f}']
            if f + 4 > f1: it.append(f's_min_u32 m0, m0, {WOL + 1024*(f1-1)}')
            it += [('i', f'buffer_load_dwordx4 v{L16}, s[16:19], m0 offen{self.wsc} lds', 'wo')]
            gs.append(it); f += 4
        return gs
    def rec_toggle(self, T):
        return [f'v_lshrrev_b32 v{X2}, 5, v0', 's_and_b32 s30, s3, 1',
                f'v_subrev_u32 v{X2}, s30, v{X2}' if T == 'A' else f'v_sub_u32 v{X2}, s30, v{X2}',
                f'v_lshl_add_u32 v{REC0}, v{X2}, 6, v{REC0}']
    def scread(self, rb):
        b = rb & 1
        return [('i', f'ds_read_b64 v[{T0}:{T1}], v{VSC} offset:{256*rb}', 'scr'), ('wlg', 'scr'),
                f'v_mov_b32 v{NM}, v{T0}', f'v_mov_b32 v{NM+1}, v{T0}', f'v_mov_b32 v{NM+2}, v{T0}', f'v_mov_b32 v{NM+3}, v{T0}',
                f'v_mov_b32 v{VR[b]}, v{T1}', f'v_mul_f32 v{VRL[b]}, 0x3fb8aa3b, v{T1}']
    def epilogue(self, T, rb, ac=None, kadd=0):
        b = rb & 1
        if ac is None: ac = ACC + 16 * b
        R = VR[b]; RL = VRL[b]
        it = []
        a = it.append
        if kadd: a([f's_mov_b32 s31, {kadd}', 's_cmp_ge_u32 s3, 2', f's_cselect_b32 s30, {PQ(rb)-KREC[b]}, s31', f'v_add_u32 v{REC}, s30, v{REC0}'])
        else: a(['s_cmp_ge_u32 s3, 2', f's_cselect_b32 s30, {PQ(rb)-KREC[b]}, 0', f'v_add_u32 v{REC}, s30, v{REC0}'])
        KO = KREC[b]
        if T == 'B':
            for k in range(10, 16): a(f'v_mul_f32 v{ac+k}, v{ac+k}, v{R}')
            for k in range(3): a(f'v_cvt_pk_bf16_f32 v{VC+k}, v{ac+10+2*k}, v{ac+11+2*k}')
            a(('i', f'ds_write_b128 v{REC}, {vr(VC,4)} offset:{KO+48}', 'rec'))
        if T == 'A':
            for k in range(12, 16): a(f'v_mul_f32 v{ac+k}, v{ac+k}, v{R}')
            for k in range(2): a(f'v_cvt_pk_bf16_f32 v{PK+6+k}, v{ac+12+2*k}, v{ac+13+2*k}')
            for b0 in (8, 0, 4):
                blk = [ac + b0 + k for k in range(4)]
                t = [TMP + 2 * k for k in range(4)]
                for x, tt in zip(blk, t): a(f'v_mul_f32 v{tt}, v{x}, v{RL}')
                for x, tt in zip(blk, t): a(f'v_max_f32 v{tt+1}, {"s%d" % S_LO if b0 == 8 else 0}, v{x}')
                for x, tt in zip(blk, t): a(f'v_exp_f32_e64 v{tt}, v{tt} clamp')
                for x, tt in zip(blk, t): a(f'v_fma_f32 v{tt+1}, v{tt+1}, v{R}, s{S_EP2 if b0 == 8 else S_EPS}')
                for x, tt in zip(blk, t):
                    a(f'v_fma_f32 v{tt}, v{tt}, s{S_E}, v{tt+1}' if b0 == 8 else f'v_add_f32 v{tt}, v{tt}, v{tt+1}')
                for k in range(0, 4, 2): a(f'v_cvt_pk_bf16_f32 v{PK+(b0+k)//2}, v{t[k]}, v{t[k+1]}')
                if b0 == 8:
                    a(f'v_cndmask_b32 v{PK+8}, v{PK+4}, v{VC+3}, s[{S_EV}:{S_EV+1}]')
                    a(f'v_cndmask_b32 v{PK+9}, v{PK+5}, 0, s[{S_EV}:{S_EV+1}]')
                    a(f'v_cndmask_b32 v{PK+4}, 0, v{PK+4}, s[{S_EV}:{S_EV+1}]')
                    a(f'v_cndmask_b32 v{PK+5}, 0, v{PK+5}, s[{S_EV}:{S_EV+1}]')
                    a(('i', f'ds_write_b128 v{REC}, {vr(PK+6,4)} offset:{KO+48}', 'rec'))
                    a(('i', f'ds_write_b64 v{REC}, {vr(PK+4,2)} offset:{KO+16}', 'rec'))
            a(('i', f'ds_write_b128 v{REC}, {vr(PK,4)} offset:{KO}', 'rec'))
        else:
            s = [ac + k for k in range(10)]
            a(f'v_max3_f32 v{X1}, v{s[0]}, v{s[1]}, v{s[2]}')
            a(f'v_max3_f32 v{X2}, -v{s[0]}, -v{s[1]}, -v{s[2]}')
            for k in (3, 5, 7):
                a(f'v_max3_f32 v{X1}, v{X1}, v{s[k]}, v{s[k+1]}')
                a(f'v_max3_f32 v{X2}, v{X2}, -v{s[k]}, -v{s[k+1]}')
            a(f'v_max_f32 v{X1}, v{X1}, v{s[9]}')
            a(f'v_max_f32_e64 v{X2}, v{X2}, -v{s[9]}')
            a(f'v_permlane32_swap_b32 v{X1}, v{X2}')
            a(f'v_max_f32 v{X1}, v{X1}, v{X2}')
            a(f'v_mul_f32_e64 v{X1}, -v{X1}, v{RL}')
            a(f'v_mov_b32 v{X2}, v{X1}')
            a(f'v_permlane32_swap_b32 v{X1}, v{X2}')
            Pp = [TMP + k for k in range(10)]; N = [TMP + 10 + k for k in range(10)]
            prev = None
            def addblk(ks):
                for k in ks:
                    if k == 0: continue
                    if k == 1:
                        a(f'v_add_f32 v{X3}, v{Pp[0]}, v{Pp[1]}'); a(f'v_add_f32 v{X4}, v{N[0]}, v{N[1]}')
                    else:
                        a(f'v_add_f32 v{X3}, v{X3}, v{Pp[k]}'); a(f'v_add_f32 v{X4}, v{X4}, v{N[k]}')
            for ks in ((0, 1, 2, 3), (4, 5, 6, 7), (8, 9)):
                for k in ks:
                    a(f'v_fma_f32 v{Pp[k]}, v{s[k]}, v{RL}, v{X1}')
                    a(f'v_fma_f32 v{N[k]}, -v{s[k]}, v{RL}, v{X2}')
                for k in ks:
                    a(f'v_exp_f32 v{Pp[k]}, v{Pp[k]}')
                    a(f'v_exp_f32 v{N[k]}, v{N[k]}')
                if prev: addblk(prev)
                prev = ks
            addblk(prev)
            a(f'v_permlane32_swap_b32 v{X3}, v{X4}')
            a(f'v_add_f32 v{X3}, v{X3}, v{X4}')
            a(f'v_rcp_f32 v{X3}, v{X3}')
            a(f'v_mov_b32 v{X4}, v{X3}')
            a(f'v_permlane32_swap_b32 v{X3}, v{X4}')
            for half, (regs, sc) in enumerate(((Pp, X3), (N, X4))):
                for k in range(0, 10, 2):
                    a(f'v_mul_f32 v{regs[k]}, v{regs[k]}, v{sc}')
                    a(f'v_mul_f32 v{regs[k+1]}, v{regs[k+1]}, v{sc}')
                    a(f'v_cvt_pk_bf16_f32 v{PK+5*half+k//2}, v{regs[k]}, v{regs[k+1]}')
                    n = 5 * half + k // 2
                    if n == 3: a(('i', f'ds_write_b128 v{REC}, {vr(PK,4)} offset:{KO}', 'rec'))
                    if n == 7: a(('i', f'ds_write_b128 v{REC}, {vr(PK+4,4)} offset:{KO+16}', 'rec'))
                    if n == 9: a(('i', f'ds_write_b64 v{REC}, {vr(PK+8,2)} offset:{KO+32}', 'rec'))
        return it
    def kv(self, T, rb):
        b = rb & 1
        rd = [['s_bitcmp1_b32 s3, 0', f's_cselect_b32 s30, {PQ(rb)-KREC[b]}, 0', f'v_add_u32 v{TRB}, s30, v{TRB0}']]
        for jh in range(2):
            rd.append(('i', f'ds_read_b64_tr_b16 {vr(KFB+2*jh,2)}, v{TRB} offset:{KREC[b]+16*jh*RS}', 'kvr'))
        for mt, r in enumerate(TRA[T]):
            for jh in range(2):
                rd.append(('i', f'ds_read_b64_tr_b16 {vr(KFA+4*mt+2*jh,2)}, v{r} offset:{KREC[b]+16*jh*RS}', 'kvr'))
        mm = [('wlg', 'kvr')]
        for mt in range(len(TRA[T])):
            c = '0' if rb == 0 else vr(KC + 4 * mt, 4)
            mm.append(f'v_mfma_f32_16x16x32_bf16 {vr(KC+4*mt,4)}, {vr(KFA+4*mt,4)}, {vr(KFB,4)}, {c}')
        return rd, mm
    def kvp_addr(self, T):
        NG = 6 if T == 'A' else 10
        it = [f'v_bfe_u32 v{X1}, v0, 3, 1', f'v_lshrrev_b32 v{X2}, 4, v0',
              ['s_lshr_b32 s30, s3, 1', 's_mul_i32 s30, s30, 3', 's_and_b32 s31, s3, 1', 's_lshl_b32 s31, s31, 1',
               f'v_add_u32 v{X1}, s31, v{X1}', f'v_cmp_gt_u32 s[32:33], 3, v{X1}', f'v_add_u32 v{X1}, s30, v{X1}'],
              f'v_mul_u32_u24 v{X1}, {NG}, v{X1}', f'v_add_u32 v{X1}, v{X1}, v{X2}', f'v_mov_b32 v{X5}, {OOB}',
              f'v_and_b32 v{X3}, 7, v0', f'v_lshlrev_b32 v{X3}, 4, v{X3}', f'v_lshl_add_u32 v{X1}, v{X1}, 11, v{X3}',
              f'v_cndmask_b32 v{VKP[0]}, v{X5}, v{X1}, s[32:33]']
        nmt = len(TRA[T])
        for mt in range(1, nmt): it.append(f'v_add_u32 v{VKP[mt]}, {8192*mt}, v{VKP[0]}')
        it += [f'v_cmp_gt_u32 vcc, {NG-4*(nmt-1)}, v{X2}', f'v_cndmask_b32 v{VKP[nmt-1]}, v{X5}, v{VKP[nmt-1]}, vcc']
        return it
    def clears(self, L, lane=0, l16=L16, x5=X5, x6=X6, sent=SENT):
        n = L + 1
        g1 = [f'v_lshrrev_b32 v{x5}, 3, v{lane}', f'v_and_b32 v{x6}, 7, v{lane}', f'v_lshlrev_b32 v{x5}, 11, v{x5}',
              f'v_lshl_add_u32 v{x5}, v{x6}, 4, v{x5}',
              f's_mul_i32 s30, s{S_HP}, {KVPS(n)}', f's_lshl_b32 s31, s{S_RG}, 7', 's_add_u32 s30, s30, s31',
              's_lshl_b32 s31, s3, 15', 's_add_u32 s30, s30, s31', f's_add_u32 s30, s30, {KVP(n)}',
              ('i', f'buffer_store_dwordx4 {vr(sent,4)}, v{x5}, s[8:11], s30 offen sc1', 'clr'),
              's_add_u32 s30, s30, 16384',
              ('i', f'buffer_store_dwordx4 {vr(sent,4)}, v{x5}, s[8:11], s30 offen sc1', 'clr')]
        g2 = [f'v_lshrrev_b32 v{x5}, 3, v{lane}', f'v_lshlrev_b32 v{x5}, 17, v{x5}', f'v_lshl_add_u32 v{x5}, v{x6}, 4, v{x5}',
              f's_lshl_b32 s30, s{S_HP}, 13', f's_lshl_b32 s31, s{S_RG}, 7', 's_add_u32 s30, s30, s31',
              f's_add_u32 s30, s30, s{S_W2K}', f's_add_u32 s30, s30, {KVF(n)}',
              ('i', f'buffer_store_dwordx4 {vr(sent,4)}, v{x5}, s[8:11], s30 offen sc1', 'clr'),
              f's_lshl_b32 s31, s{S_RG}, 13', f's_add_u32 s31, s31, s{S_W2K}', f's_lshl_b32 s32, s{S_HP}, 7',
              's_add_u32 s31, s31, s32', f's_add_u32 s31, s31, {F2(n)}',
              f's_lshl_b32 s32, s{S_RBY}, 10', f's_lshl_b32 s33, s{S_CG}, 7', 's_add_u32 s32, s32, s33',
              f's_add_u32 s32, s32, {ST(n)}',
              ['s_mov_b64 exec, 0xff',
               ('i', f'buffer_store_dwordx4 {vr(sent,4)}, v{l16}, s[8:11], s32 offen sc1', 'clr'),
               's_mov_b64 exec, 0xf',
               ('i', f'buffer_store_dwordx4 {vr(sent,4)}, v{l16}, s[8:11], s31 offen sc1', 'clr'),
               's_mov_b64 exec, -1']]
        if L >= 1 and self.opt.get('FCL'):
            g2[-1] = ['s_mov_b64 exec, 0xff',
                      ('fn', lambda: self.fstore([f'buffer_store_dwordx4 {vr(sent,4)}, v{l16}, s[8:11], s{k} offen' for k in (32, 31)], tag='clr'), 'clr'),
                      's_mov_b64 exec, -1']
        return [g1, g2]

    def front(self, L):
        A = self.A; o = self.opt
        T = 'AB'[L & 1]
        last = (L == self.nl - 1)
        PF = 7
        queue = []
        if True:
            emit_items(A, self.st_soff(L))
            self.poll(self.st_loads(L), [STR + k for k in range(8)], X1)
            self.stamp('st')
            A('s_barrier')
            for c in range(o['PRE']): emit_items(A, self.xchunk(c))
            emit_items(A, self.stats_items() + self.rec_toggle(T))
            queue = [self.xchunk(c) for c in range(o['PRE'], 40)]
        def xread(n):
            if n == 159: return []
            r, off = dsaddr(1024 * n)
            return [('i', f'ds_read_b128 {vr(RING+4*(n%8),4)}, v{r} offset:{off}', f'r{n}')]
        bar = o.get('BAR', {8: 16, 16: 24, 24: 32, 32: 40, 40: 56, 56: 72, 72: 88, 104: 128, 144: 160})
        bend = o.get('BEND', {1: 104, 2: 144})
        def xwait(q):
            if not q: return
            c = q // 4 - 1
            while any(isinstance(i, tuple) and i[2] == f'x{c}' for g in queue for i in g):
                emit_items(A, queue.pop(0))
            A.wait_vm(f'x{c}')
        A.wait_vm('x1'); A.wait_lg('sc'); self.stamp('x0'); A('s_barrier')
        for n in range(PF): emit_items(A, xread(n))
        gcount = 0
        for rb in range(4):
            ac = vr(ACC + 16 * (rb & 1), 16)
            fill = []
            if rb >= 2:
                rd, mm = self.kv(T, rb - 2)
                fill += rd
            if rb >= 1:
                ep = self.epilogue(T, rb - 1)
                if rb >= 2: ep = ep[:12] + mm + ep[12:]
                fill += ep
            scr = self.scread(rb)
            if rb == 0:
                fill += self.kvp_addr(T)
                if not last: fill += self.clears(L)
                fill += [self.srd_wo_items(T)]
            fill = scr[:1] + fill + scr[1:]
            if rb == 2: queue += self.wo_dma(0, 26)
            if rb == 3: queue += self.wo_dma(42, 66)
            rate = max(o['RMIN'], (cost(fill) * o['RX'] + o['DCOST'] * 40 / o['DMA_EVERY']) / 38); credit = -rate
            for s in range(41):
                n = 40 * rb + s
                if s < 40:
                    nn = n + PF
                    if nn in bar:
                        xwait(bar[nn]); A('s_barrier')
                        if nn == 104: queue += self.wo_dma(26, 42)
                        if nn == 144: queue += self.wo_dma(66, 82)
                    if nn < 160: emit_items(A, xread(nn))
                    if L == 0 and rb == 0 and s % 4 == 0: A.wait_vm(f'wA{s}')
                    if n == 159:
                        src = vr(XL, 4)
                    else:
                        if o['W2'] and n % 2 == 0 and n < 158: A.wait_lg(f'r{n+1}')
                        A.wait_lg(f'r{n}'); src = vr(RING + 4 * (n % 8), 4)
                    A(f'v_mfma_f32_32x32x16_bf16 {ac}, {wreg(T, s)}, {src}, {"0" if s == 0 else ac}')
                else:
                    emit_items(A, flat(fill)); fill = []
                    if L == 0 and rb == 0: A.wait_vm('wc')
                    A(f'v_mfma_f32_32x32x16_bf16 {ac}, {vr(WCR[T],4)}, {vr(NM,4)}, {ac}')
                    break
                gcount += 1
                credit += rate
                if queue and gcount % o['DMA_EVERY'] == 0:
                    g = queue.pop(0); emit_items(A, g); credit -= o['DCOST']
                if s >= 1:
                    while fill and credit >= 0.5 * cost(fill[0]):
                        it = fill.pop(0); p0 = A.pos; c0 = cost(it) - len(flat([it]))
                        emit_items(A, flat([it])); credit -= (A.pos - p0) + c0
            if rb >= 1:
                if rb in bend: xwait(bend[rb])
                if rb == 3:
                    for g in queue: emit_items(A, g)
                    queue = []
                    A.wait_vm('clr')
                A.wait_lg('rec'); A.wait_lg('kvr')
                self.stamp(f'b{rb}_')
                A('s_barrier')
        rd, mm = self.kv(T, 2)
        ep = self.epilogue(T, 3)
        if o.get('FINE'):
            self.stamp('ea'); emit_items(A, flat(rd)); self.stamp('eb'); emit_items(A, flat(ep[:11])); self.stamp('ec')
            h = 11 + (len(ep) - 11) // 2
            emit_items(A, flat(ep[11:h])); self.stamp('ed'); emit_items(A, flat(ep[h:])); self.stamp('ee'); emit_items(A, flat(mm)); self.stamp('ef')
            print(T, 'counts', len(flat(rd)), len(flat(ep[:11])), len(flat(ep[11:h])), len(flat(ep[h:])))
        else:
            emit_items(A, flat(rd + ep[:12] + mm + ep[12:]))
        A(f's_mul_i32 s34, s{S_HP}, {KVPS(L)}'); A(f's_add_u32 s34, s34, {KVP(L)}')
        A(f's_lshl_b32 s31, s{S_RG}, 7'); A('s_add_u32 s35, s34, s31')
        A(f'v_mov_b32 v{X5}, {OOB}')
        A.wait_lg()
        self.stamp('ep3_')
        A('s_barrier')
        rd, mm = self.kv(T, 3)
        emit_items(A, flat(rd + mm))
        for mt in range(len(TRA[T])):
            A(f'buffer_store_dwordx4 {vr(KC+4*mt,4)}, v{VKP[mt]}, s[8:11], s35 offen sc1')

    def split(self, src, dst):
        return [f'v_cvt_pk_bf16_f32 v{dst}, v{src}, v{src}',
            f'v_lshlrev_b32 v{dst+1}, 16, v{dst}',
            f'v_sub_f32 v{src}, v{src}, v{dst+1}',
            f'v_cvt_pk_bf16_f32 v{dst+1}, v{src}, v{src}',
            f'v_and_b32 v{dst+1}, 0xffff0000, v{dst+1}',
            f'v_sub_f32 v{src}, v{src}, v{dst+1}',
            f'v_and_b32 v{dst}, 0xffff, v{dst}',
            f'v_or_b32 v{dst}, v{dst}, v{dst+1}',
            f'v_mov_b32 v{dst+2}, 0',
            f'v_cvt_pk_bf16_f32 v{dst+1}, v{src}, v{dst+2}',
            f'v_mov_b32 v{dst+3}, 0',
            f'v_cmp_gt_u32 vcc, 32, v0',
            f'v_cndmask_b32 v{dst}, 0, v{dst}, vcc',
            f'v_cndmask_b32 v{dst+1}, 0, v{dst+1}, vcc']
    def checkpoint(self, FE, FA):
        A = self.A; o = self.opt; nm = self.name
        A.wait_vm('fl')
        sv = list(A.vm)
        A(f's_branch {nm}_c1')
        A.label(f'{nm}_c0')
        A(f's_mov_b32 s32, {FL}')
        A('s_cmp_lg_u32 s38, 2')
        A(f's_cbranch_scc1 {nm}_c2')
        A(f's_mov_b32 s30, {AR}'); A(f's_mov_b32 s31, {EC}')
        A(f'buffer_load_dwordx4 {vr(FE,4)}, v{L16}, s[8:11], s30 offen sc1')
        A.wait_vm()
        A(f'v_mov_b32 v{FE+6}, v{FE+3}'); A(f'v_mov_b32 v{FE+4}, v{FE+2}'); A(f'v_mov_b32 v{FE+2}, v{FE+1}')
        for k in range(4): A(f'v_mov_b32 v{FE+1+2*k}, s{S_M}')
        A(f'buffer_store_dwordx4 {vr(FE,4)}, v{FA}, s[8:11], s31 offen sc1')
        A(f'buffer_store_dwordx4 {vr(FE+4,4)}, v{FA}, s[8:11], s31 offen offset:16 sc1')
        A.wait_vm()
        A.label(f'{nm}_c2')
        self.flloads(FE, FA)
        A.wait_vm()
        A.label(f'{nm}_c1')
        for k in (0, 2, 4, 6): A(f'v_xor_b32 v{FE+k}, s{S_M}, v{FE+k}')
        A(f'v_or3_b32 v{FE}, v{FE}, v{FE+2}, v{FE+4}'); A(f'v_or_b32 v{FE}, v{FE}, v{FE+6}')
        A(f'v_cmp_ne_u32 vcc, 0, v{FE}')
        A(f's_sub_u32 s{S_BUD}, s{S_BUD}, 1')
        A(f's_cbranch_scc1 {nm}_c3')
        A('s_nop 4')
        A(f's_cbranch_vccnz {nm}_c0')
        A.label(f'{nm}_c3')
        A(f's_max_i32 s{S_BUD}, s{S_BUD}, 0')
        A.vm = sv
        self.stamp('cp')
        for k in (1, 3, 5, 7): A(f'v_xor_b32 v{FE+k}, s{S_XCC}, v{FE+k}')
        A(f'v_or3_b32 v{FE}, v{FE+1}, v{FE+3}, v{FE+5}'); A(f'v_or_b32 v{FE}, v{FE}, v{FE+7}')
        A(f'v_cmp_ne_u32 vcc, 0, v{FE}')
        A(f's_lshl_b32 s30, s{S_RG}, 2')
        A('s_lshr_b64 s[30:31], vcc, s30')
        A('s_and_b32 s30, s30, 15')
        A(f's_cselect_b32 s{S_SAME}, 0, 1')
        if o.get('FORCE_SLOW'): A(f's_mov_b32 s{S_SAME}, 0')
        A(f'v_lshlrev_b32 v{FA}, 2, v0')
        A(f's_lshl_b32 s30, s{S_RG}, 10'); A('s_lshl_b32 s31, s3, 8'); A('s_add_u32 s30, s30, s31'); A(f's_add_u32 s30, s30, {S0}')
        A(f's_add_u32 m0, s31, {SC}')
        A(f'buffer_load_dword v{FA}, s[8:11], s30 offen sc1 lds', tag='sc')
    def flloads(self, FE, FA):
        self.A(f'buffer_load_dwordx4 {vr(FE,4)}, v{FA}, s[8:11], s32 offen sc1', tag='fl')
        self.A(f'buffer_load_dwordx4 {vr(FE+4,4)}, v{FA}, s[8:11], s32 offen offset:16 sc1', tag='fl')
    def xo_items(self):
        return [f'v_and_b32 v{X1}, 15, v0', f'v_mul_u32_u24 v{X1}, 1280, v{X1}', f'v_lshrrev_b32 v{X2}, 4, v0',
              f'v_lshl_add_u32 v{X3}, v{X2}, 4, v{X1}', f'v_lshl_add_u32 v{X4}, v{X2}, 3, v{X1}',
              f's_and_b32 s30, s{S_RBY}, 7', 's_mul_i32 s30, s30, 20480', f's_mul_i32 s31, s{S_CG}, 160', 's_add_u32 s30, s30, s31',
              ('i', f'buffer_load_dwordx4 {vr(XOLD,4)}, v{X3}, s[12:15], s30 offen', 'xo'),
              ('i', f'buffer_load_dwordx4 {vr(XOLD+4,4)}, v{X3}, s[12:15], s30 offen offset:64', 'xo'),
              ('i', f'buffer_load_dwordx2 {vr(XOLD+8,2)}, v{X4}, s[12:15], s30 offen offset:128', 'xo')]
    def front0(self):
        A = self.A; o = self.opt
        nm = self.name
        T = 'A'; L = 0
        acc = [ACC, ACC + 16, 192, 208]
        XA = TMP; WA = TMP + 4; CS = 224
        FE = KC; FA = KC + 8; MR = KC + 9
        CP = o.get('CP', 8)
        FS = o.get('FS', 1)
        def xread(i):
            if i >= 160: return
            sg, s_, rb = i >> 4, (i >> 2) & 3, i & 3
            A(f'ds_read_b128 {vr(RING+4*(i%8),4)}, v{XA+s_} offset:{32768*(sg&1) + 16384 + 4096*rb}', tag=f'r{i}')
        def wread(s):
            sg, s_ = s >> 2, s & 3
            for jh in range(2):
                A(f'ds_read_b64_tr_b16 {ar(4*s+2*jh,2)}, v{WA} offset:{32768*(sg&1) + 4096*s_ + 1024*jh}', tag=f'w{s}')
        PF = 7
        queue = []
        wbq = [self.wloads('B', 4*g, 4) for g in range(6)] if self.nl > 1 else []
        for i in range(-PF, 160):
            nn = i + PF
            if nn < 160 and nn % 16 == 0:
                sg = nn >> 4
                for g in queue: emit_items(A, flat(g))
                A.wait_vm(f'g{sg}')
                if sg == FS: A.wait_vm('ec')
                A.wait_lg()
                if sg in (0, 1, 2, 3, 5, 7, 9): self.stamp(f's{sg}_')
                A('s_barrier')
                if sg % 2 == 0 and sg > 0:
                    for k in range(5): A(f'v_xor_b32 v{TMP+k}, 0x10000, v{TMP+k}')
                wread(4 * sg)
                if sg == FS: self.flag()
                queue = self.ring(sg + 3) if sg + 3 < 10 else []
                if sg == 0: queue = self.dq + queue
                if sg == 1: queue.append(flat(self.kvp_addr(T)))
                if sg == FS + 1:
                    A(f'v_mov_b32 v{MR}, {MW}')
                    A(f'ds_read_b32 v{MR}, v{MR}', tag='mw')
                if sg == FS + 2: A(f'v_readfirstlane_b32 s{S_M}, v{MR}')
                if sg == o.get('CL0', 7) and self.nl > 1: queue += self.clears(0)
                if sg == o.get('XO', 7): queue.append(self.xo_items())
                if sg == CP - 1:
                    A(f'v_lshlrev_b32 v{FA}, 5, v0'); A(f's_mov_b32 s32, {FL}')
                    self.flloads(FE, FA)
                if sg == CP: self.checkpoint(FE, FA)
                if sg == o.get('PT', -1): queue.append(self.touch())
                if sg >= CP:
                    nw = o.get('NWB', 3) if sg < 9 else 6
                    queue += wbq[:nw]; wbq = wbq[nw:]
            if nn < 160:
                if nn % 4 == 2 and (nn & 15) < 12: wread((nn >> 2) + 1)
                xread(nn)
            if i < 0: continue
            s_ = i >> 2; rb = i & 3
            if rb == 0: A.wait_lg(f'w{s_}')
            A.wait_lg(f'r{i}')
            A(f'v_mfma_f32_32x32x16_bf16 {vr(acc[rb],16)}, {wreg(T, s_)}, {vr(RING+4*(i%8),4)}, {"0" if s_ == 0 else vr(acc[rb],16)}')
            if rb == 1:
                A(f'v_mfma_f32_16x16x32_bf16 {vr(CS,4)}, {vr(NM,4)}, {wreg(T, s_)}, {"0" if s_ == 0 else vr(CS,4)}')
            if queue: emit_items(A, flat(queue.pop(0)))
        for g in queue: emit_items(A, flat(g))
        emit_items(A, self.split(CS, WCR['A']))
        emit_items(A, self.srd_wo_items(T) + [f's_mov_b32 s18, {WOL + 102400}'])
        A.wait_vm('sc')
        A.wait_lg()
        self.stamp('m_')
        A('s_barrier')
        NMx = TMP + 12
        for rb in range(4): A(f'ds_read_b32 v{NMx+rb}, v{VSC} offset:{256*rb}', tag='nm')
        def rread(rb):
            b = rb & 1
            return [('i', f'ds_read_b32 v{VR[b]}, v{VSC} offset:{256*rb+4}', 'scr'), ('wlg', 'scr'), f'v_mul_f32 v{VRL[b]}, 0x3fb8aa3b, v{VR[b]}']
        emit_items(A, rread(0)[:1] + rread(1) + rread(0)[2:])
        NB = [NM, KFA]
        for rb in range(4):
            for k in range(4): A(f'v_mov_b32 v{NB[rb&1]+k}, v{NMx+rb}')
            A(f'v_mfma_f32_32x32x16_bf16 {vr(acc[rb],16)}, {vr(WCR[T],4)}, {vr(NB[rb&1],4)}, {vr(acc[rb],16)}')
        if o.get('PT') == 10: emit_items(A, self.touch())
        wq = self.wo_dma(0, 82)
        for rb in range(4):
            ep = self.epilogue(T, rb, ac=acc[rb], kadd=KR2 if rb >= 2 else 0)
            if rb < 2: ep += rread(rb + 2)
            for k, it in enumerate(ep):
                emit_items(A, flat([it]))
                if wq and k % o.get('WOE', 6) == 3: emit_items(A, wq.pop(0))
        for g in wq: emit_items(A, g)
        if self.nl > 1 and o.get('WB2', 0) == 0:
            for g in range(6, 10): emit_items(A, self.wloads('B', 4*g, 4))
        A(f's_mul_i32 s34, s{S_HP}, {KVPS(L)}'); A(f's_add_u32 s34, s34, {KVP(L)}')
        A(f's_lshl_b32 s31, s{S_RG}, 7'); A('s_add_u32 s35, s34, s31')
        A(f'v_mov_b32 v{X5}, {OOB}')
        TB = TMP; TA2 = TMP + 4; F = ACC
        A(f's_mov_b32 s31, {KR2}')
        A('s_bitcmp1_b32 s3, 0')
        for rb in range(4):
            A(f's_cselect_b32 s30, {PQ(rb)-KREC[rb&1]}, {"s31" if rb >= 2 else "0"}')
            A(f'v_add_u32 v{TB+rb}, s30, v{TRB0}')
        for mt in range(2): A(f'v_add_u32 v{TA2+mt}, s31, v{TRA[T][mt]}')
        A.wait_vm('clr')
        A.wait_lg()
        self.stamp('ep3_')
        A('s_barrier')
        for rb in range(4):
            f = F + 12 * rb
            for jh in range(2):
                A(f'ds_read_b64_tr_b16 {vr(f+2*jh,2)}, v{TB+rb} offset:{KREC[rb&1]+16*jh*RS}', tag=f'kv{rb}')
            for mt in range(2):
                r = TRA[T][mt] if rb < 2 else TA2 + mt
                for jh in range(2):
                    A(f'ds_read_b64_tr_b16 {vr(f+4+4*mt+2*jh,2)}, v{r} offset:{KREC[rb&1]+16*jh*RS}', tag=f'kv{rb}')
        for rb in range(4):
            f = F + 12 * rb
            A.wait_lg(f'kv{rb}')
            for mt in range(2):
                c = '0' if rb == 0 else vr(KC + 4 * mt, 4)
                A(f'v_mfma_f32_16x16x32_bf16 {vr(KC+4*mt,4)}, {vr(f+4+4*mt,4)}, {vr(f,4)}, {c}')
        for mt in range(2):
            A(f'buffer_store_dwordx4 {vr(KC+4*mt,4)}, v{VKP[mt]}, s[8:11], s35 offen sc1')

    def layer(self, L):
        A = self.A; o = self.opt
        self.L = L
        T = 'AB'[L & 1]
        NG = 6 if T == 'A' else 10
        NR = 6 * NG
        last = (L == self.nl - 1)
        final = (L == 3)
        PF = 7
        if L == 0: self.front0()
        else: self.front(L)
        self.stamp('kvp')
        wo1 = 82 if L == 0 else o['WO1']
        for g in self.wo_dma(82, wo1): emit_items(A, g)
        QF = RING; KF = TMP; RD = 104; GQ = 136
        nks = 3 if T == 'B' else 2
        for hd in range(2):
            for ks in range(nks):
                q = QF + 12 * hd + 4 * ks
                if ks < nks - 1:
                    A(f'ds_read_b128 {vr(q,4)}, v{VPQ} offset:{128*hd+16*ks}', tag='qf')
                else:
                    A(f'ds_read_b64 {vr(q,2)}, v{VPQ} offset:{128*hd+16*ks}', tag='qf')
                    A(f'v_mov_b32 v{q+2}, 0'); A(f'v_mov_b32 v{q+3}, 0')
        A('s_lshl_b32 s30, s3, 4'); A(f's_add_u32 s30, s30, s{S_RG}')
        A('s_lshl_b32 s31, s30, 11'); A('s_add_u32 s34, s34, s31')
        A(f's_lshl_b32 s35, s{S_HP}, 13'); A(f's_add_u32 s35, s35, {KVF(L)}')
        A('s_lshl_b32 s31, s30, 7'); A('s_add_u32 s36, s35, s31')
        VO = PK
        A(f'v_and_b32 v{X1}, 7, v0'); A(f'v_lshrrev_b32 v{X2}, 5, v0')
        A(f'v_lshlrev_b32 v{X1}, 3, v{X1}'); A(f'v_lshl_add_u32 v{X1}, v{X2}, 2, v{X1}')
        A(f'v_bfe_u32 v{X2}, v0, 3, 2'); A(f'v_lshl_add_u32 v{VO}, v{X2}, 17, v{X1}')
        A(f'v_add_u32 v{VO+3}, {4*KVC}, v{VO}')
        A(f'v_lshrrev_b32 v{X1}, 2, v0'); A(f'v_and_b32 v{X2}, 3, v0'); A(f'v_lshlrev_b32 v{X2}, 4, v{X2}')
        A(f'v_lshl_add_u32 v{X1}, v{X1}, 7, v{X2}')
        A(f'v_cmp_gt_u32 vcc, {NR}, v0')
        A(f'v_cndmask_b32 v{VO+1}, v{X5}, v{X1}, vcc')
        A(f's_mul_i32 s31, s3, {16*NR}')
        A('s_add_u32 s35, s35, s31'); A('s_add_u32 s35, s35, s31')
        A(f's_lshr_b32 s32, s{S_RG}, 1'); A('s_lshl_b32 s32, s32, 17'); A('s_add_u32 s35, s35, s32')
        A(f'v_add_u32 v{X1}, s31, v{L16}'); A(f'v_add_u32 v{X2}, 0x1000, v{L16}')
        A(f'v_cndmask_b32 v{VO+2}, v{X2}, v{X1}, vcc')
        for hd in range(2):
            k = KF + 12 * hd + 4 * (nks - 1)
            A(f'v_mov_b32 v{k+2}, 0'); A(f'v_mov_b32 v{k+3}, 0')
        lsk = self.lab('nored')
        A(f's_cmp_ge_u32 s30, {NR}')
        A(f's_cbranch_scc1 {lsk}')
        self.poll([f'buffer_load_dwordx4 {vr(RD,4)}, v{L16}, s[8:11], s34 offen sc1',
                   f'buffer_load_dwordx4 {vr(RD+4,4)}, v{L16}, s[8:11], s34 offen offset:1024 sc1'], [RD + k for k in range(8)], X1, sleep=o.get('SL1', 0), pre=o.get('PRE1', 0))
        for k in range(4): A(f'v_add_f32 v{RD+k}, v{RD+k}, v{RD+4+k}')
        A(f'v_permlane32_swap_b32 v{RD}, v{RD+2}')
        A(f'v_permlane32_swap_b32 v{RD+1}, v{RD+3}')
        A(f'v_add_f32 v{RD}, v{RD}, v{RD+2}')
        A(f'v_add_f32 v{RD+1}, v{RD+1}, v{RD+3}')
        A(f'v_add_f32_dpp v{RD+2}, v{RD}, v{RD} row_ror:8 row_mask:0xf bank_mask:0xf')
        A(f'v_add_f32_dpp v{RD+3}, v{RD+1}, v{RD+1} row_ror:8 row_mask:0xf bank_mask:0xf')
        A(f'v_mov_b32 v{RD}, v{RD+2}'); A(f'v_mov_b32 v{RD+1}, v{RD+3}')
        A(f'v_permlane16_swap_b32 v{RD}, v{RD+2}')
        A(f'v_permlane16_swap_b32 v{RD+1}, v{RD+3}')
        A(f'v_add_f32 v{RD}, v{RD}, v{RD+2}')
        A(f'v_add_f32 v{RD+1}, v{RD+1}, v{RD+3}')
        A(f'v_cvt_pk_bf16_f32 v{RD}, v{RD}, v{RD+1}')
        A(f'buffer_store_dword v{RD}, v{VO}, s[8:11], s36 offen sc1')
        A(f'buffer_store_dword v{RD}, v{VO+3}, s[8:11], s36 offen sc1')
        A.label(lsk)
        self.stamp('red')
        if o.get('RBAR', 1): A('s_barrier')
        pre2 = o.get('PRE2', 0)
        if L == 0 and self.nl > 1:
            emit_items(A, self.onesel(NM))
            A('s_waitcnt vmcnt(2)')
        for g in self.wo_dma(wo1, 100): emit_items(A, g)
        if L == 0 and self.nl > 1:
            for s_ in range(40):
                d = vr(ACC + 4 * (s_ & 1), 4)
                A(f'v_mfma_f32_16x16x32_bf16 {d}, {vr(NM,4)}, {wreg("B", s_)}, {"0" if s_ < 2 else d}')
            A(f'v_add_f32 v{ACC}, v{ACC}, v{ACC+4}')
            emit_items(A, self.split(ACC, WCR['B']))
            pre2 = o.get('PRE20', 0)
        self.poll([f'buffer_load_dwordx4 {vr(RD+4,4)}, v{VO+1}, s[8:11], s35 offen sc1'], [RD + 4 + k for k in range(4)], X1, sleep=o.get('SL2', 0), pre=pre2)
        A(f'ds_write_b128 v{VO+2}, {vr(RD+4,4)}')
        A(f'v_bfe_u32 v{X1}, v0, 4, 1'); A(f'v_mul_u32_u24 v{X1}, 20480, v{X1}')
        A(f'v_and_b32 v{X2}, 15, v0'); A(f'v_lshl_add_u32 v{X1}, v{X2}, 4, v{X1}')
        A(f'v_lshrrev_b32 v{X2}, 5, v0')
        A(f'v_lshl_add_u32 v{VO}, v{X2}, 8, v{X1}')
        A(f'v_lshl_add_u32 v{VO+1}, v{X2}, 3, v{X1}')
        A.wait_lg()
        self.stamp('kvf')
        A('s_barrier')
        for hd in range(2):
            for ks in range(nks):
                k = KF + 12 * hd + 4 * ks
                o8 = 192 * NG * hd + 128 * ks
                A(f'ds_read_b64 {vr(k,2)}, v{VKA[T]} offset:{o8}', tag=f'kf{hd}{ks}')
                if ks < nks - 1:
                    A(f'ds_read_b64 {vr(k+2,2)}, v{VKA[T]} offset:{o8+64}', tag=f'kf{hd}{ks}')
        A(f's_lshl_b32 s30, s{S_RG}, 2'); A('s_add_u32 s30, s30, s3')
        A('s_mul_i32 s31, s30, 40960'); A(f's_mul_i32 s32, s{S_HP}, 1280'); A('s_add_u32 s31, s31, s32')
        A(f's_add_u32 s31, s31, {O(L)}')
        A('s_lshl_b32 s30, s30, 11'); A(f's_lshl_b32 s32, s{S_HP}, 7'); A('s_add_u32 s30, s30, s32')
        A(f's_add_u32 s30, s30, {F2(L)}')
        for ks in range(nks):
            for hd in range(2):
                d = vr(ACC + 16 * hd, 16)
                A.wait_lg(f'kf{hd}{ks}')
                A(f'v_mfma_f32_32x32x16_bf16 {d}, {vr(KF+12*hd+4*ks,4)}, {vr(QF+12*hd+4*ks,4)}, {"0" if ks == 0 else d}')
        OPK = 140
        for hd in range(2):
            d = ACC + 16 * hd
            A(f'v_add_f32 v{d+10}, s{S_EPS}, v{d+10}')
            A(f'v_rcp_f32 v{d+10}, v{d+10}')
            A(f'v_mov_b32 v{d+11}, v{d+10}')
            for k in range(0, 10, 2):
                A(f'v_pk_mul_f32 {vr(d+k,2)}, {vr(d+k,2)}, {vr(d+10,2)}')
            for k in range(5):
                dst = OPK + 4 * hd + k if k < 4 else OPK + 8 + hd
                A(f'v_cvt_pk_bf16_f32 v{dst}, v{d+2*k}, v{d+2*k+1}')
        self.fstore([f'buffer_store_dwordx4 {vr(OPK,4)}, v{VO}, s[8:11], s31 offen',
                     f'buffer_store_dwordx4 {vr(OPK+4,4)}, v{VO}, s[8:11], s31 offen offset:512',
                     f'buffer_store_dwordx2 {vr(OPK+8,2)}, v{VO+1}, s[8:11], s31 offen offset:1024'])
        OF = 48; WR = 128; YA = 168
        def woread(f):
            r, off = dsaddr(WOL + 1024 * f)
            return ('i', f'ds_read_b128 {vr(WR+4*(f%10),4)}, v{r} offset:{off}', f'wr{f}')
        for k in range(10):
            A(f'v_lshlrev_b32 v{YA+2*k}, 16, v{XOLD+k}')
            A(f'v_and_b32 v{YA+2*k+1}, 0xffff0000, v{XOLD+k}')
        A(f'v_and_b32 v{T0}, 15, v0'); A(f'v_lshlrev_b32 v{T0}, 7, v{T0}')
        A(f's_lshr_b32 s32, s{S_RBY}, 1'); A('s_lshl_b32 s32, s32, 11'); A(f's_add_u32 s32, s32, {F2(L)}')
        A(f's_mul_i32 s33, s{S_RBY}, 20480'); A(f's_add_u32 s33, s33, {O(L)}')
        A.wait_vm()
        A('s_mov_b64 exec, 1')
        self.fstore([f'buffer_store_dword v{L16}, off, s[8:11], s30'])
        A('s_mov_b64 exec, -1')
        self.stamp('f2')
        for f in range(9): emit_items(A, [woread(f)])
        self.poll([f'buffer_load_dword v{T1}, v{T0}, s[8:11], s32 offen sc1'], [T1], None)
        self.stamp('e2')
        for kk in range(20):
            if kk % 4 == 0 and kk: A('s_add_u32 s33, s33, 4096')
            A(f'buffer_load_dwordx4 {vr(OF+4*kk,4)}, v{L16}, s[8:11], s33 offen offset:{1024*(kk%4)} sc1', tag=f'o{kk}')
        if final:
            A('s_mov_b32 s16, s78'); A('s_and_b32 s17, s79, 0xffff'); A(f's_mov_b32 s18, {2048*640*2}')
            A(f'v_and_b32 v{T0}, 15, v0'); A(f'v_mul_u32_u24 v{T0}, 1280, v{T0}'); A(f'v_lshrrev_b32 v{T1}, 4, v0')
            A(f'v_lshl_add_u32 v{VR[0]}, v{T1}, 4, v{T0}'); A(f'v_lshl_add_u32 v{VR[1]}, v{T1}, 3, v{T0}')
            A(f's_mul_i32 s30, s{S_RBY}, 20480'); A(f's_mul_i32 s31, s{S_CG}, 160'); A('s_add_u32 s30, s30, s31')
        else:
            if DBG[0] or L == 0: self.srd_x(L + 1)
            A(f's_bfe_u32 s30, s{S_RBY}, 0x20001'); A('s_mul_i32 s30, s30, 40960'); A(f's_mul_i32 s31, s{S_CG}, 5120')
            xa = [(VX, 0), (VX, 2048), (VX3, 0)]
            if T == 'B':
                A(f's_lshl_b32 s32, s{S_ROT}, 12'); A('s_sub_u32 s31, s31, s32'); A('s_add_u32 s32, s31, 40960'); A('s_min_u32 s31, s31, s32')
                A(f'v_add_u32 v{VR[0]}, s31, v{VX}'); A(f'v_add_u32 v{VR[1]}, 0x800, v{VR[0]}'); A(f'v_add_u32 v{VRL[0]}, s31, v{VX3}')
                xa = [(VR[0], 0), (VR[1], 0), (VRL[0], 0)]
                for r, _ in xa:
                    A(f'v_subrev_u32 v{T0}, 40960, v{r}'); A(f'v_min_u32 v{r}, v{r}, v{T0}')
            else: A('s_add_u32 s30, s30, s31')
            A(f's_lshl_b32 s31, s{S_RBY}, 10'); A(f's_lshl_b32 s32, s{S_CG}, 7'); A('s_add_u32 s31, s31, s32')
            A(f's_add_u32 s31, s31, {ST(L+1)}')
            A(f'v_lshlrev_b32 v{T0}, 3, v0')
        for kk in range(20):
            A.wait_vm(f'o{kk}')
            if kk == 0: self.stamp('o0_')
            for mt in range(5):
                f = 5 * kk + mt
                if f + 9 < 100: emit_items(A, [woread(f + 9)])
                A.wait_lg(f'wr{f}')
                A(f'v_mfma_f32_16x16x32_bf16 {vr(YA+4*mt,4)}, {vr(WR+4*(f%10),4)}, {vr(OF+4*kk,4)}, {vr(YA+4*mt,4)}')
        self.stamp('y')
        for k in range(10):
            A(f'v_cvt_pk_bf16_f32 v{XOLD+k}, v{YA+2*k}, v{YA+2*k+1}')
        if final:
            A(f'buffer_store_dwordx4 {vr(XOLD,4)}, v{VR[0]}, s[16:19], s30 offen')
            A(f'buffer_store_dwordx4 {vr(XOLD+4,4)}, v{VR[0]}, s[16:19], s30 offen offset:64')
            A(f'buffer_store_dwordx2 {vr(XOLD+8,2)}, v{VR[1]}, s[16:19], s30 offen offset:128')
            return
        self.fstore([f'buffer_store_dwordx4 {vr(XOLD,4)}, v{xa[0][0]}, s[12:15], s30 offen',
                     f'buffer_store_dwordx4 {vr(XOLD+4,4)}, v{xa[1][0]}, s[12:15], s30 offen offset:{xa[1][1]}',
                     f'buffer_store_dwordx2 {vr(XOLD+8,2)}, v{xa[2][0]}, s[12:15], s30 offen'])
        U = OF; a = OF + 20; b = OF + 22; c = OF + 24
        for k in range(10):
            A(f'v_lshlrev_b32 v{U+2*k}, 16, v{XOLD+k}')
            A(f'v_and_b32 v{U+2*k+1}, 0xffff0000, v{XOLD+k}')
        A(f'v_pk_add_f32 {vr(a,2)}, {vr(U,2)}, {vr(U+2,2)}')
        A(f'v_pk_add_f32 {vr(b,2)}, {vr(U+4,2)}, {vr(U+6,2)}')
        for k in range(4, 10, 2):
            A(f'v_pk_add_f32 {vr(a,2)}, {vr(a,2)}, {vr(U+2*k,2)}')
            A(f'v_pk_add_f32 {vr(b,2)}, {vr(b,2)}, {vr(U+2*k+2,2)}')
        A(f'v_pk_add_f32 {vr(a,2)}, {vr(a,2)}, {vr(b,2)}')
        def allsum(x, y):
            A(f'v_mov_b32 v{y}, v{x}')
            A(f'v_permlane16_swap_b32 v{x}, v{y}')
            A(f'v_add_f32 v{x}, v{x}, v{y}')
            A(f'v_mov_b32 v{y}, v{x}')
            A(f'v_permlane32_swap_b32 v{x}, v{y}')
            A(f'v_add_f32 v{x}, v{x}, v{y}')
        A(f'v_add_f32 v{a}, v{a}, v{a+1}')
        allsum(a, a + 1)
        A(f'v_mul_f32 v{a}, 0x3c4ccccd, v{a}')
        A(f'v_mul_f32 v{b}, -1.0, v{a}')
        A(f'v_mul_f32 v{b+1}, -1.0, v{a}')
        for k in range(10):
            A(f'v_pk_add_f32 {vr(U+2*k,2)}, {vr(U+2*k,2)}, {vr(b,2)}')
        A(f'v_pk_mul_f32 {vr(b,2)}, {vr(U,2)}, {vr(U,2)}')
        A(f'v_pk_mul_f32 {vr(c,2)}, {vr(U+2,2)}, {vr(U+2,2)}')
        for k in range(2, 10, 2):
            A(f'v_pk_fma_f32 {vr(b,2)}, {vr(U+2*k,2)}, {vr(U+2*k,2)}, {vr(b,2)}')
            A(f'v_pk_fma_f32 {vr(c,2)}, {vr(U+2*k+2,2)}, {vr(U+2*k+2,2)}, {vr(c,2)}')
        A(f'v_pk_add_f32 {vr(b,2)}, {vr(b,2)}, {vr(c,2)}')
        A(f'v_add_f32 v{a+1}, v{b}, v{b+1}')
        allsum(a + 1, b)
        A(f'v_mov_b32 v{VC+3}, 0x3f80')
        for k in range(4): A(f'v_mov_b32 v{SENT+k}, -1')
        A.wait_vm()
        A('s_mov_b64 exec, 0xffff')
        self.fstore([f'buffer_store_dwordx2 {vr(a,2)}, v{T0}, s[8:11], s31 offen'])
        A('s_mov_b64 exec, -1')
        self.stamp('xs')

    def gen(self):
        self.prologue()
        for L in range(self.nl): self.layer(L)
        A = self.A
        A.prof_end()
        A.label(f'{self.name}_END')
        A('s_endpgm')
        return A.text()

def make(path, prof=False, nl=4, dbg=False, sl=(0, 1, 2, 3), opt=None):
    import gen, json, emit
    DBG[0] = dbg
    p = P('pk', prof=1 if prof else None, nl=nl, stamp_layers=sl, opt=opt)
    ks = [('pk_kernel', p.gen(), 512, 256)]
    ls = [('pk_kernel', 256, P_LDS)]
    gen.build(ks, ls, path)
    if prof: json.dump(emit.PROF_NAMES, open(path + '.names', 'w'))
    print('nops', p.A.nops, 'lines', len(p.A.lines))

if __name__ == '__main__':
    import sys
    kw = eval('dict(' + (sys.argv[2] if len(sys.argv) > 2 else '') + ')')
    make(sys.argv[1], **kw)
```

```python
from emit import *
from lay2 import *
def emit_items(A, items):
    for it in items:
        if isinstance(it, str): A(it)
        elif it[0] == 'i': A(it[1], tag=it[2])
        elif it[0] == 'wvm': A.wait_vm(it[1])
        elif it[0] == 'wlg': A.wait_lg(it[1])
        elif it[0] == 'fn': it[1]()
        else: raise ValueError(it)

P_LDS = 163840
RS = 288
KREC = [0, 9216]
def PQ(rb): return 18432 + 9216 * rb
WOL = 55296
SC = 162816
LANE = 0; L16 = 1
VR = [2, 3]; VRL = [4, 5]; T0 = 6; T1 = 7
NM = 8; WCR = {'A': 12, 'B': 16}; XOLD = 20
DS1 = 30; DS2 = 31; REC0 = 32; REC = 33
TRA = {'B': [34, 35, 36], 'A': [37, 38]}; TRB0 = 39; TRB = 40
VSC = 41; VSTP = 42; VX = 43; VX3 = 44; VKA = {'A': 45, 'B': 46}; VPQ = 47
ACC = 48; RING = 80; TMP = 112; X1 = 132; X2 = 133; X3 = 134; X4 = 135; X5 = 136; X6 = 137
PK = 138; VC = 148; KFA = 152; KFB = 164; KC = 168; XL = 180; SENT = 184; STR = 112
S_RG = 20; S_HP = 21; S_BUD = 22; S_SAME = 23; S_EPS = 24; S_W2K = 25; S_XCC = 26
S_RBY = 27; S_CG = 28; S_W1K = 37
VKP = [188, 189, 190]
S_N = 80; S_M = 81; VXD = 244; VWD = 245
S_LO = 84; S_EP2 = 85; S_E = 86; S_EV = 88; S_ROT = 29
MW = 131072
STG = 132096; STG2 = STG + 10240; EV = 232; S0 = 0x1D10000
KR2 = WOL + 82 * 1024
BUDGET = 400000

def cost(it):
    if isinstance(it, str):
        if it.startswith(('v_exp', 'v_rcp', 'v_sqrt', 'v_rsq')): return 2
        if it.startswith('v_mfma'): return 4
        return 1
    if isinstance(it, list): return sum(cost(x) for x in it)
    return 1

def flat(items):
    out = []
    for it in items:
        if isinstance(it, list): out += flat(it)
        else: out.append(it)
    return out

def wreg(T, s):
    if T == 'A': return ar(4 * s, 4)
    return ar(160 + 4 * s, 4) if s < 24 else vr(192 + 4 * (s - 24), 4)

def dsaddr(off):
    return [L16, DS1, DS2][off >> 16], off & 0xffff

class P:
    def __init__(self, name, prof=None, nl=4, stamp_layers=(0, 1, 2, 3), opt=None):
        self.name = name; self.nl = nl; self.sl = stamp_layers
        self.A = Asm(); self.A.prof = prof
        self.nlab = 0
        self.opt = dict(FB=4, PRE=9, DMA_EVERY=3, YFB=1, MASK=1, WO1=100, W2=1, DCOST=2, RMIN=2.0, RX=1.1)
        if opt: self.opt.update(opt)
        self.L = 0
        self.wsc = ' sc1' if self.opt.get('WSC', 1) else ''
    def lab(self, s):
        self.nlab += 1
        return f'{self.name}_{s}{self.nlab}'
    def stamp(self, n):
        if self.L in self.sl: self.A.stamp(f'{n}{self.L}')
    def poll(self, loads, regs, tmp, sleep=0, pre=0):
        A = self.A
        lp, lg = self.lab('poll'), self.lab('go')
        A('s_nop 4')
        if pre: A(f's_sleep {pre}')
        if sleep:
            l1 = self.lab('p1')
            A(f's_branch {l1}')
            A.label(lp)
            A(f's_sleep {sleep}')
            A.label(l1)
        else:
            A.label(lp)
        for t in loads: A(t)
        A.wait_vm()
        r = list(regs)
        if len(r) == 1: m = r[0]
        else:
            m = tmp
            if len(r) == 2:
                A(f'v_max_u32 v{m}, v{r[0]}, v{r[1]}'); r = []
            else:
                A(f'v_max3_u32 v{m}, v{r[0]}, v{r[1]}, v{r[2]}'); r = r[3:]
            while len(r) >= 2:
                A(f'v_max3_u32 v{m}, v{m}, v{r[0]}, v{r[1]}'); r = r[2:]
            if r: A(f'v_max_u32 v{m}, v{m}, v{r[0]}')
        A(f'v_cmp_eq_u32 vcc, -1, v{m}')
        A(f's_sub_u32 s{S_BUD}, s{S_BUD}, 1')
        A(f's_cbranch_scc1 {lg}')
        if self.opt['MASK']: A('s_mov_b64 exec, vcc')
        A(f's_cbranch_vccnz {lp}')
        A.label(lg)
        if self.opt['MASK']: A('s_mov_b64 exec, -1')
        A(f's_max_i32 s{S_BUD}, s{S_BUD}, 0')
    def fstore(self, stores, tag=None):
        A = self.A
        ls, lj = self.lab('slow'), self.lab('join')
        A(f's_cmp_eq_u32 s{S_SAME}, 0')
        A(f's_cbranch_scc1 {ls}')
        n0 = len(A.lines)
        for t in stores: A(t, tag=tag)
        body = A.lines[n0:]
        A(f's_branch {lj}')
        A.label(ls)
        for ln in body:
            A.raw(ln + ' sc1' if 'buffer_store' in ln else ln)
        A.raw('    s_nop 0')
        A.label(lj)
    def srd_x(self, L):
        A = self.A
        A(f's_mul_i32 s30, s{S_RG}, 163840')
        A(f's_add_u32 s30, s30, {X(L)}')
        A('s_add_u32 s12, s4, s30')
        A('s_addc_u32 s13, s5, 0')
        A('s_and_b32 s13, s13, 0xffff')
    def srd_wo_items(self, T):
        return [f's_mul_i32 s30, s{S_CG}, 102400', f's_add_u32 s30, s30, {WOF[T] - WOL}',
                's_add_u32 s16, s4, s30', 's_addc_u32 s17, s5, 0', 's_and_b32 s17, s17, 0xffff']

    def ring(self, sg):
        sl = 32768 * (sg & 3)
        gs = []
        for t in range(4):
            gs.append([f's_add_u32 s101, s7, {15360*t}', f's_add_u32 m0, s100, {sl + 1024*t}',
                       ('i', f'buffer_load_dwordx4 v{VWD}, s[16:19], s101 offen lds', f'g{sg}')])
            gs.append([f's_add_u32 s101, s6, {40960*t}', f's_add_u32 m0, s{S_W1K}, {sl + 16384 + 4096*t}',
                       ('i', f'buffer_load_dwordx4 v{VXD}, s[12:15], s101 offen lds', f'g{sg}')])
        gs[-1] += [f's_cmp_eq_u32 s{S_ROT}, {9 - sg}', 's_cselect_b32 s101, -9, 1', 's_lshl_b32 s101, s101, 7', 's_add_u32 s6, s6, s101',
                   's_mul_i32 s101, s101, 1920', 's_add_u32 s7, s7, s101']
        return gs
    def prologue(self):
        A = self.A; o = self.opt
        nm = self.name
        A('s_load_dwordx2 s[4:5], s[0:1], 72')
        A('s_load_dwordx16 s[64:79], s[0:1], 0')
        A(f's_memrealtime s[{S_N}:{S_N+1}]')
        A('s_cmp_ge_u32 s2, 256')
        A(f's_cbranch_scc1 {nm}_END')
        A.stamp('rstart', real=True); A.stamp('start')
        if o.get('PFC', 0):
            n = o['PFC']
            A.raw('    s_getpc_b64 s[30:31]')
            A.label(f'{nm}_pcb')
            A('s_lshr_b32 s32, s2, 3'); A(f's_mul_i32 s32, s32, {4*n*64}')
            A('v_lshrrev_b32 v2, 6, v0'); A('v_and_b32 v1, 63, v0'); A(f'v_min_u32 v3, {n-1}, v1')
            A(f'v_mul_u32_u24 v4, {n}, v2'); A('v_add_lshl_u32 v3, v3, v4, 6'); A('v_add_u32 v3, s32, v3')
            A.raw(f'    v_min_u32 v3, {nm}_END-{nm}_pcb, v3')
            A('global_load_dword v246, v3, s[30:31]')
            A.vm = []
        A('v_lshrrev_b32 v2, 6, v0')
        A('v_and_b32 v0, 63, v0')
        A('v_readfirstlane_b32 s3, v2')
        A(f'v_lshlrev_b32 v{L16}, 4, v0')
        A('s_and_b32 s30, s2, 7')
        A('s_lshr_b32 s31, s2, 3')
        A(f's_lshl_b32 s{S_RG}, s30, 1')
        A('s_and_b32 s30, s31, 1')
        A(f's_add_u32 s{S_RG}, s{S_RG}, s30')
        A(f's_lshr_b32 s{S_HP}, s31, 1')
        A('s_mov_b32 s10, %d' % WS_SIZE); A('s_mov_b32 s11, 0x00020000')
        A(f's_lshl_b32 s83, s{S_RG}, 4'); A(f's_add_u32 s83, s83, s{S_HP}'); A('s_lshl_b32 s83, s83, 3')
        A('s_lshr_b32 s39, s83, 1'); A(f's_add_u32 s39, s39, {AR}')
        A(f's_lshr_b32 s{S_CG}, s{S_HP}, 1')
        A(f's_and_b32 s30, s{S_HP}, 1')
        A(f's_lshl_b32 s82, s{S_RG}, 1'); A('s_add_u32 s82, s82, s30')
        A('s_lshl_b32 s30, s30, 2')
        A(f's_lshl_b32 s{S_RBY}, s{S_RG}, 3')
        A(f's_add_u32 s{S_RBY}, s{S_RBY}, s30')
        A(f's_add_u32 s{S_RBY}, s{S_RBY}, s3')
        A(f's_lshl_b32 s{S_W2K}, s3, 11')
        A(f's_lshl_b32 s{S_W1K}, s3, 10')
        A(f's_mov_b32 s{S_BUD}, {BUDGET}')
        A(f's_mov_b32 s{S_EPS}, 0x358637bd')
        A(f's_getreg_b32 s{S_XCC}, hwreg(HW_REG_XCC_ID, 0, 16)')
        A('s_mov_b32 s14, 163840'); A('s_mov_b32 s15, 0x00020000')
        A('s_mov_b32 s19, 0x00020000'); A('s_mov_b32 s95, 0x00020000'); A('s_mov_b32 s99, 0x00020000'); A('s_mov_b32 s87, 0x00020000')
        A(f's_mov_b32 s98, {640*640*2}'); A(f's_mov_b32 s86, {32*400*2}')
        A(f's_mul_i32 s34, s{S_RG}, 163840')
        A(f's_mul_i32 s35, s{S_HP}, 80')
        A(f's_sub_u32 s18, {640*1920*2}, s35'); A('s_mov_b32 s94, s18')
        A('s_mul_i32 s6, s3, 10240'); A('s_mul_i32 s7, s3, 61440'); A('s_lshl_b32 s100, s3, 12')
        A(f's_lshr_b32 s32, s{S_RG}, 1'); A('s_sub_u32 s33, s32, 5'); A('s_min_u32 s32, s32, s33')
        A(f's_and_b32 s33, s{S_RG}, 1'); A('s_mul_i32 s33, s33, 5'); A(f's_add_u32 s{S_ROT}, s32, s33')
        A(f's_mul_i32 s32, s{S_ROT}, 245760'); A('s_add_u32 s7, s7, s32')
        A(f's_lshl_b32 s32, s{S_ROT}, 7'); A('s_add_u32 s6, s6, s32')
        A('s_lshl_b32 s38, s2, 2'); A('s_add_u32 s38, s38, s3')
        XS = 48; AX1 = 58; AX2 = 59; WP = 60; AP1 = 72; AP2 = 73; AOD = 74; PHI = 76; AOP = 84; AA = 100
        AOR = 104; AOS = 107; OD = 112; D0 = 192; PKB = 224
        G = 120; N_ = 121; SG = 122; G2 = 123; U1 = 124; U2 = 125; U3 = 126; U4 = 127
        A(f'v_lshrrev_b32 v{G}, 5, v0'); A(f'v_and_b32 v{N_}, 31, v0')
        A(f'v_mul_u32_u24 v{U1}, 1280, v{G}')
        A(f'v_lshl_add_u32 v{AX1}, v{N_}, 4, v{U1}'); A(f'v_lshl_add_u32 v{AX2}, v{N_}, 3, v{U1}')
        A(f'v_min_u32 v{U1}, 59, v0'); A(f'v_mul_u32_u24 v{U2}, 205, v{U1}'); A(f'v_lshrrev_b32 v{U2}, 10, v{U2}')
        A(f'v_mul_u32_u24 v{U2}, 1200, v{U2}'); A(f'v_lshl_add_u32 v{VWD}, v{U1}, 4, v{U2}')
        A('s_lshl_b32 s30, s3, 7')
        for j in range(2):
            A(f'v_add_u32 v{U1}, s30, v0')
            if j: A(f'v_add_u32 v{U1}, 64, v{U1}')
            A(f'v_min_u32 v{U1}, 399, v{U1}'); A(f'v_mul_u32_u24 v{U2}, 205, v{U1}'); A(f'v_lshrrev_b32 v{U2}, 11, v{U2}')
            A(f'v_mul_u32_u24 v{U2}, 1120, v{U2}'); A(f'v_lshl_add_u32 v{AOD+j}, v{U1}, 4, v{U2}')
        A(f'v_bfe_u32 v{U1}, v0, 3, 2'); A(f'v_and_b32 v{U2}, 3, v0'); A(f'v_lshl_add_u32 v{SG}, v{U1}, 2, v{U2}')
        A(f'v_bfe_u32 v{G2}, v0, 2, 1')
        A(f'v_mul_u32_u24 v{U1}, 20, v{G2}'); A(f'v_lshl_add_u32 v{U1}, v{SG}, 1, v{U1}')
        A(f'v_mov_b32 v{U3}, {OOB}'); A(f'v_cmp_gt_u32 vcc, 10, v{SG}'); A(f'v_cndmask_b32 v{U1}, v{U3}, v{U1}, vcc')
        A(f'v_mul_u32_u24 v{U2}, 320, v{G}'); A(f'v_add_u32 v{AP1}, v{U1}, v{U2}')
        A(f'v_cmp_gt_u32 vcc, 32, v0'); A(f'v_cndmask_b32 v{AP2}, v{U3}, v{U1}, vcc')
        A(f'v_lshrrev_b32 v{U1}, 3, v0'); A(f'v_and_b32 v{U2}, 6, v{U1}'); A(f'v_mul_u32_u24 v{U1}, 1280, v{U1}')
        A(f'v_and_b32 v{U3}, 7, v0'); A(f'v_xor_b32 v{U2}, v{U2}, v{U3}')
        A(f'v_lshl_add_u32 v{VXD}, v{U2}, 4, v{U1}')
        A('s_and_b32 s30, s3, 1'); A('s_lshl_b32 s30, s30, 4'); A(f'v_xor_b32 v{VXD}, s30, v{VXD}')
        A(f's_mul_i32 s30, s{S_HP}, 10240'); A('s_mul_i32 s31, s3, 2560'); A('s_add_u32 s30, s30, s31')
        A(f's_mul_i32 s31, s{S_HP}, 1600'); A('s_and_b32 s32, s3, 1'); A('s_mul_i32 s32, s32, 800'); A('s_add_u32 s31, s31, s32')
        A(f's_mul_i32 s32, s{S_RG}, {40*3840}')
        A('s_and_b32 s33, s82, 15'); A(f's_mul_i32 s33, s33, {40*1280}'); A(f's_mul_i32 s36, s{S_CG}, 160'); A('s_add_u32 s33, s33, s36')
        if o.get('FINE0'): self.stamp('a')
        A.wait_lg()
        if o.get('FINE0'): self.stamp('ka')
        A('s_mov_b32 s8, s4')
        A('s_and_b32 s9, s5, 0xffff')
        A('s_add_u32 s12, s64, s34')
        A('s_addc_u32 s13, s65, 0')
        A('s_and_b32 s13, s13, 0xffff')
        A(f'v_mov_b32 v2, s{S_N}')
        A('s_cmp_lg_u32 s3, 2')
        A(f's_cbranch_scc1 {nm}_noar')
        A('s_mov_b64 exec, 1')
        A('buffer_store_dword v2, off, s[8:11], s39 sc1')
        A('s_mov_b64 exec, -1')
        A.label(f'{nm}_noar')
        A.vm = []
        A(f'buffer_load_dwordx4 {vr(XS,4)}, v{AX1}, s[12:15], s30 offen', tag='xs')
        A(f'buffer_load_dwordx4 {vr(XS+4,4)}, v{AX1}, s[12:15], s30 offen offset:512', tag='xs')
        A(f'buffer_load_dwordx2 {vr(XS+8,2)}, v{AX2}, s[12:15], s30 offen offset:1024', tag='xs')
        if o.get('FINE0'): self.stamp('lx')
        A('s_add_u32 s92, s72, s35'); A('s_addc_u32 s93, s73, 0'); A('s_and_b32 s93, s93, 0xffff')
        A('s_add_u32 s16, s66, s35'); A('s_addc_u32 s17, s67, 0'); A('s_and_b32 s17, s17, 0xffff')
        A('s_cmp_ge_u32 s82, 16'); A('s_cselect_b32 s96, s76, s68'); A('s_cselect_b32 s97, s77, s69'); A('s_and_b32 s97, s97, 0xffff')
        A('s_mov_b32 s84, s74'); A('s_and_b32 s85, s75, 0xffff')
        for j in range(3):
            A(f's_add_u32 s34, s3, {4*j}')
            if j == 2: A('s_min_u32 s34, s34, 9')
            A('s_mul_i32 s35, s34, 15360'); A('s_add_u32 s35, s35, s32')
            A('s_lshl_b32 s34, s34, 10'); A(f's_add_u32 m0, s34, {STG}')
            A(f'buffer_load_dwordx4 v{VWD}, s[92:95], s35 offen lds', tag='pl')
        if o.get('FINE0'): self.stamp('lb')
        for j in range(2):
            A(f's_add_u32 m0, s{S_W2K}, {STG2 + 1024*j}')
            A(f'buffer_load_dwordx4 v{AOD+j}, s[96:99], s33 offen lds', tag='pl')
        if o.get('FINE0'): self.stamp('lo')
        for j in range(12):
            A(f'buffer_load_ushort v{WP+j}, v{AP1 if j < 8 else AP2}, s[84:87], s31 offen offset:{40*j if j < 8 else 320+40*j}', tag='wp')
        self.stamp('p1')
        E = 208
        sv = list(A.vm)
        A('s_cmp_lg_u32 s38, 2')
        A(f's_cbranch_scc1 {nm}_nm')
        A(f's_mov_b32 s30, {AR}'); A(f's_mov_b32 s31, {EC}'); A(f's_mov_b32 s32, {o.get("MR", 8)}')
        A(f'v_lshlrev_b32 v{E+12}, 5, v0')
        A(f's_sub_u32 s33, 1000, s{S_N}')
        for k in range(4): A(f'v_mov_b32 v{E+17+2*k}, s{S_N}')
        A.label(f'{nm}_ml0')
        A(f'buffer_load_dwordx4 {vr(E+8,4)}, v{L16}, s[8:11], s30 offen sc1')
        A.wait_vm()
        for k in range(4): A(f'v_mov_b32 v{E+16+2*k}, v{E+8+k}')
        A(f'buffer_store_dwordx4 {vr(E+16,4)}, v{E+12}, s[8:11], s31 offen sc1')
        A(f'buffer_store_dwordx4 {vr(E+20,4)}, v{E+12}, s[8:11], s31 offen offset:16 sc1')
        for k in range(4): A(f'v_add_u32 v{E+8+k}, s33, v{E+8+k}')
        A(f'v_max3_u32 v{E+8}, v{E+8}, v{E+9}, v{E+10}'); A(f'v_max_u32 v{E+8}, v{E+8}, v{E+11}')
        A(f'v_cmp_lt_u32 vcc, 0xfa0, v{E+8}')
        A('s_sub_u32 s32, s32, 1')
        A(f's_cbranch_scc1 {nm}_nm')
        A('s_nop 4')
        A(f's_cbranch_vccnz {nm}_ml0')
        A.label(f'{nm}_nm'); A.vm = sv
        A('s_nop 4')
        dq = self.ring(0) + self.ring(1) + self.ring(2)
        def mix(items, every, n=None):
            k = 0
            for it in flat(items):
                emit_items(A, [it]); k += 1
                if k % every == 0 and dq and (n is None or n > 0) and not (isinstance(it, str) and it.startswith(('s_', 'v_cmp'))):
                    emit_items(A, dq.pop(0))
                    if n is not None: n -= 1
                elif k % every == 0: k -= 1
        for _ in range(o.get('R0', 8)): emit_items(A, dq.pop(0))
        if o.get('FINE0'): self.stamp('r0')
        for k in range(4): A(f'v_mov_b32 v{SENT+k}, -1')
        for g in self.clears(-1): emit_items(A, flat(g))
        self.stamp('p2')
        it = []
        a = it.append
        a('s_cmp_lt_u32 s3, 2'); a('s_cselect_b32 s30, 6, 4'); a('s_cselect_b32 s32, 6, 4')
        a(f'v_mul_u32_u24 v{U1}, s30, v{G2}'); a(f'v_add_u32 v{U1}, v{U1}, v{SG}'); a(f'v_lshl_add_u32 v{U2}, v{G}, 3, 6'); a(f'v_sub_u32 v{U1}, v{U1}, v{U2}')
        a(f'v_subrev_u32 v{U2}, 10, v{SG}'); a(f'v_cmp_gt_u32 vcc, s32, v{U2}'); a(f'v_cndmask_b32 v{U1}, 64, v{U1}, vcc')
        a(f'v_and_b32 v{U2}, 1, v{U1}'); a(f'v_lshlrev_b32 v{U2}, 4, v{U2}'); a(f'v_mov_b32 v{U3}, 0x3f80'); a(f'v_lshlrev_b32 v{U2}, v{U2}, v{U3}')
        a(f'v_lshrrev_b32 v{U1}, 1, v{U1}')
        for r in range(4):
            a(f'v_cmp_eq_u32 vcc, {r}, v{U1}'); a(f'v_cndmask_b32 v{PHI+4+r}, 0, v{U2}, vcc')
        a(f'v_bfe_u32 v{U1}, v0, 4, 1'); a(f'v_lshl_add_u32 v{U1}, v{U1}, 1, v{G2}'); a(f'v_bfe_u32 v{U2}, v0, 3, 1'); a(f'v_lshl_add_u32 v{U1}, v{U1}, 1, v{U2}')
        a(f'v_and_b32 v{U2}, 3, v0'); a(f'v_mul_u32_u24 v{U2}, 240, v{U2}'); a(f'v_lshl_add_u32 v{U1}, v{U1}, 10, v{U2}')
        a(f'v_lshl_add_u32 v{U2}, v{G}, 4, v{U1}')
        a('s_and_b32 s33, s3, 1'); a('s_mul_i32 s33, s33, 40'); a(f's_add_u32 s33, s33, {STG}')
        a('s_cmp_lt_u32 s3, 2'); a('s_cselect_b32 s30, 80, 0'); a('s_cselect_b32 s32, 0, 24'); a('s_add_u32 s32, s32, 160')
        a('s_add_u32 s30, s30, s33'); a('s_add_u32 s32, s32, s33')
        a(f'v_add_u32 v{AA}, s30, v{U2}'); a(f'v_add_u32 v{AA+2}, s32, v{U2}')
        a(f'v_add_u32 v{U3}, 32, v{AA}'); a(f'v_subrev_u32 v{U4}, 8, v{AA+2}')
        a(f'v_cmp_gt_u32 vcc, 32, v0'); a(f'v_cndmask_b32 v{AA+1}, v{U4}, v{U3}, vcc')
        G4 = G; R_ = N_; X_ = SG
        a(f'v_lshrrev_b32 v{G4}, 4, v0'); a(f'v_bfe_u32 v{R_}, v0, 2, 2'); a(f'v_and_b32 v{X_}, 3, v0')
        a(f'v_mul_u32_u24 v{U1}, 10, v{G4}'); a(f'v_add_u32 v{U1}, v{U1}, v{R_}'); a(f'v_mul_u32_u24 v{U1}, 160, v{U1}')
        a('s_and_b32 s30, s3, 1'); a('s_lshl_b32 s30, s30, 3'); a('s_lshr_b32 s32, s3, 1'); a('s_lshl_b32 s32, s32, 6'); a('s_add_u32 s30, s30, s32')
        a(f's_add_u32 s30, s30, {STG2}')
        a(f'v_lshl_add_u32 v{U2}, v{X_}, 4, s30'); a(f'v_add_u32 v{AOR}, v{U1}, v{U2}')
        a(f'v_bfe_u32 v{U2}, v0, 3, 1'); a(f'v_mul_u32_u24 v{U2}, 18, v{U2}'); a(f'v_add3_u32 v{U2}, v{U2}, v{R_}, 8'); a(f'v_mul_u32_u24 v{U2}, 160, v{U2}')
        a('s_cmp_eq_u32 s3, 1'); a('s_cselect_b64 vcc, -1, 0'); a('s_movk_i32 s32, 1600'); a('s_cselect_b32 s32, 640, s32')
        a(f'v_cndmask_b32 v{U1}, v{U2}, v{U1}, vcc')
        a(f'v_cndmask_b32 v{G2}, 4, v{G4}, vcc')
        a(f'v_and_b32 v{U2}, 1, v{G4}'); a(f'v_lshlrev_b32 v{U2}, 3, v{U2}'); a(f'v_lshl_add_u32 v{U2}, v{X_}, 4, v{U2}')
        a(f'v_lshrrev_b32 v{U3}, 1, v{G4}'); a(f'v_lshl_add_u32 v{U2}, v{U3}, 6, v{U2}')
        a(f'v_lshlrev_b32 v{U3}, 3, v{X_}'); a(f'v_add_u32 v{U3}, 0x80, v{U3}')
        a('s_cmp_eq_u32 s3, 0'); a('s_cselect_b64 vcc, -1, 0')
        a(f'v_cndmask_b32 v{U2}, v{U3}, v{U2}, vcc')
        a(f'v_cndmask_b32 v{U4}, 4, v{G4}, vcc')
        a(f's_mov_b32 s30, {STG2}'); a(f'v_add3_u32 v{AOR+1}, v{U1}, v{U2}, s30'); a(f'v_add_u32 v{AOR+2}, s32, v{AOR+1}')
        a('s_and_b32 s30, s82, 15'); a('s_mul_i32 s30, s30, 5')
        a(f'v_and_b32 v{U3}, 0xf0, v{L16}')
        for rd, (jj, mt) in enumerate(((G4, 's3'), (G2, f'v{U4}'))):
            a(f'v_add_u32 v{U1}, s30, v{jj}'); a(f'v_lshrrev_b32 v{U2}, 2, v{U1}'); a(f'v_and_b32 v{U1}, 3, v{U1}')
            a(f'v_mul_u32_u24 v{U2}, 5, v{U2}'); a(f'v_add_u32 v{U2}, {mt}, v{U2}')
            a(f'v_lshl_add_u32 v{U1}, v{U1}, 8, v{U3}'); a(f'v_lshl_add_u32 v{AOS+rd}, v{U2}, 10, v{U1}')
        it += self.setup0() + self.setup_addr() + self.rec_toggle('A')
        mix(it, o.get('M1', 20), o.get('R1', 8))
        self.stamp('p3')
        it = [('wvm', 'xs')]
        a = it.append
        for k in range(4): a(f'v_mov_b32 v{U1+k}, 0')
        for k in range(10):
            a(f'v_dot2c_f32_bf16 v{U1+(k&1)}, 0x3f803f80, v{XS+k}'); a(f'v_dot2c_f32_bf16 v{U3+(k&1)}, v{XS+k}, v{XS+k}')
        a(f'v_add_f32 v{X2}, v{U1}, v{U2}'); a(f'v_add_f32 v{X3}, v{U3}, v{U4}')
        for d in ('quad_perm:[1,0,3,2]', 'quad_perm:[2,3,0,1]', 'row_half_mirror', 'row_mirror'):
            for x in (X2, X3): a(f'v_add_f32_dpp v{x}, v{x}, v{x} {d} row_mask:0xf bank_mask:0xf')
        a(f'v_mov_b32 v{X1}, v{X2}'); a(f'v_mov_b32 v{X4}, v{X3}')
        a(f'v_permlane16_swap_b32 v{X1}, v{X2}'); a(f'v_permlane16_swap_b32 v{X3}, v{X4}')
        a(f'v_add_f32 v{X2}, v{X1}, v{X2}')
        a(f'v_add_f32 v{X3}, v{X3}, v{X4}')
        a(f'v_mul_f32 v{X1}, 0x3acccccd, v{X2}')
        a(f'v_fma_f32 v{X3}, -v{X1}, v{X2}, v{X3}')
        a(f'v_max_f32 v{X3}, 0, v{X3}')
        a(f'v_cvt_pk_bf16_f32 v{X5}, -v{X1}, -v{X1}')
        st = self.stats_items()
        it += st[st.index(f'v_mul_f32 v{X3}, 0x3acccccd, v{X3}'):-1]
        a(f'v_lshrrev_b32 v{X1}, 2, v0')
        a([f's_lshl_b32 s30, s83, 3', 's_lshl_b32 s32, s3, 4', 's_add_u32 s30, s30, s32', f's_add_u32 s30, s30, {S0}',
           's_mov_b32 exec_lo, 1', 's_mov_b32 exec_hi, 1'])
        a(('i', f'buffer_store_dwordx2 v[{X5}:{X6}], v{X1}, s[8:11], s30 offen sc1', 'pst'))
        emit_items(A, flat(it)); A('s_mov_b64 exec, -1')
        A.wait_vm('wp')
        self.stamp('p4')
        A('s_barrier')
        it = []
        a = it.append
        for mb in range(2):
            a(('i', f'ds_read_b64 {vr(AOP+8*mb,2)}, v{AA} offset:{8192*mb}', f'pa{mb}'))
            a(('i', f'ds_read_b64 {vr(AOP+8*mb+2,2)}, v{AA} offset:{8192*mb+8}', f'pa{mb}'))
            a(('i', f'ds_read_b64 {vr(AOP+8*mb+4,2)}, v{AA+1} offset:{8192*mb}', f'pa{mb}'))
            a(('i', f'ds_read_b64 {vr(AOP+8*mb+6,2)}, v{AA+2} offset:{8192*mb}', f'pa{mb}'))
        a(('i', f'ds_read_b64_tr_b16 {vr(OD,2)}, v{AOR}', 'po'))
        a(('i', f'ds_read_b64_tr_b16 {vr(OD+2,2)}, v{AOR} offset:640', 'po'))
        a(('i', f'ds_read_b64_tr_b16 {vr(OD+4,2)}, v{AOR+1}', 'po'))
        a(('i', f'ds_read_b64_tr_b16 {vr(OD+6,2)}, v{AOR+2}', 'po'))
        for k in range(4): a(f'v_lshl_or_b32 v{PHI+k}, v{WP+2*k+1}, 16, v{WP+2*k}')
        for k in range(2):
            a(f'v_lshl_or_b32 v{WP+8+2*k}, v{WP+9+2*k}, 16, v{WP+8+2*k}'); a(f'v_or_b32 v{PHI+4+k}, v{PHI+4+k}, v{WP+8+2*k}')
        a(f's_lshl_b32 s90, s{S_HP}, 2'); a('s_add_u32 s90, s90, s3'); a('s_mul_i32 s90, s90, 40960')
        a(f's_mul_i32 s34, s{S_RG}, 2560'); a('s_add_u32 s34, s34, s90'); a(f's_add_u32 s34, s34, {WF["B"]}')
        a('s_lshr_b32 s35, s82, 4'); a(f's_mul_i32 s35, s35, {WOF["B"]-WOF["A"]}'); a(f's_mul_i32 s30, s{S_CG}, 102400'); a('s_add_u32 s35, s35, s30')
        a(f's_add_u32 s35, s35, {WOF["A"]}')
        for mb in range(2):
            a(('wlg', f'pa{mb}'))
            for u in range(2):
                a(f'v_mfma_f32_32x32x16_bf16 {vr(D0+16*mb,16)}, {vr(AOP+8*mb+4*u,4)}, {vr(PHI+4*u,4)}, {"0" if u == 0 else vr(D0+16*mb,16)}')
        a(('wlg', 'po'))
        a(('i', f'buffer_store_dwordx4 {vr(OD,4)}, v{AOS}, s[8:11], s35 offen sc1', 'pst'))
        a(('i', f'buffer_store_dwordx4 {vr(OD+4,4)}, v{AOS+1}, s[8:11], s35 offen sc1', 'pst'))
        for x in range(12):
            a(f'v_cvt_pk_bf16_f32 v{PKB+x}, v{D0+2*x}, v{D0+2*x+1}')
            if x == 3: a(('i', f'buffer_store_dwordx4 {vr(PKB,4)}, v{L16}, s[8:11], s34 offen sc1', 'pst'))
            if x == 7: a(('i', f'buffer_store_dwordx4 {vr(PKB+4,4)}, v{L16}, s[8:11], s34 offen offset:1024 sc1', 'pst'))
        emit_items(A, it)
        A('s_mov_b32 exec_hi, 0')
        A(f'buffer_store_dwordx4 {vr(PKB+8,4)}, v{L16}, s[8:11], s34 offen offset:2048 sc1', tag='pst')
        A('s_mov_b64 exec, -1')
        A(f's_add_u32 s39, s83, {EC}')
        A(f'buffer_load_dwordx2 {vr(EV,2)}, off, s[8:11], s39 sc1', tag='ec')
        self.stamp('pc')
        it = self.xa_items(TMP)
        a = it.append
        a('s_bitcmp1_b32 s3, 0')
        a(f's_cselect_b32 s{S_LO}, 0xff800000, 0'); a(f's_cselect_b32 s{S_EP2}, 0, s{S_EPS}'); a(f's_cselect_b32 s{S_E}, 0, 1.0')
        a(f's_cselect_b64 s[{S_EV}:{S_EV+1}], 0, -1')
        WA = TMP + 4
        tb = [[10, 11, 12, 20], [13, 14, 22, 21], [0, 1, 2, 23], [3, 4, 24, 24]]
        tb = [sum(x << (8 * k) for k, x in enumerate(t)) for t in tb]
        a(f's_mov_b32 s30, {tb[1]}'); a(f's_mov_b32 s33, {tb[0]}'); a('s_cselect_b32 s30, s30, s33')
        a(f's_mov_b32 s33, {tb[3]}'); a(f's_mov_b32 s32, {tb[2]}'); a('s_cselect_b32 s33, s33, s32')
        a('s_bitcmp1_b32 s3, 1'); a('s_cselect_b32 s30, s33, s30')
        a(f'v_bfe_u32 v{X1}, v0, 4, 1'); a(f'v_bfe_u32 v{X2}, v0, 1, 1'); a(f'v_lshl_add_u32 v{X1}, v{X1}, 1, v{X2}')
        a(f'v_lshlrev_b32 v{X1}, 3, v{X1}'); a(f'v_lshrrev_b32 v{X1}, v{X1}, s30'); a(f'v_and_b32 v{X1}, 31, v{X1}')
        a(f'v_and_b32 v{X2}, 1, v0'); a(f'v_mul_u32_u24 v{X2}, 5, v{X2}')
        a(f'v_bfe_u32 v{X3}, v0, 2, 2'); a(f'v_mul_u32_u24 v{X3}, 30, v{X3}')
        a(f'v_add3_u32 v{X1}, v{X1}, v{X2}, v{X3}')
        a(f'v_lshrrev_b32 v{X2}, 5, v0'); a(f'v_lshlrev_b32 v{X2}, 11, v{X2}')
        a(f'v_lshl_add_u32 v{WA}, v{X1}, 3, v{X2}')
        a(f's_add_u32 s36, s83, {FL}')
        a(f'v_mov_b32 v{EV+3}, s{S_XCC}')
        a(f'v_mov_b32 v{EV+4}, {MW}')
        it += self.onesel(NM)
        emit_items(A, it)
        self.dq = dq
    def onesel(self, d):
        return [f'v_lshrrev_b32 v{X1}, 2, v0', f'v_xor_b32 v{X1}, v{X1}, v0', f'v_and_b32 v{X1}, 4, v{X1}', f'v_cmp_eq_u32 vcc, 0, v{X1}',
                f'v_mov_b32 v{X1}, 0x3f803f80'] + [f'v_cndmask_b32 v{d+k}, 0, v{X1}, vcc' for k in range(4)]
    def flag(self):
        A = self.A; nm = self.name
        A('s_cmp_lg_u32 s3, 2')
        A(f's_cbranch_scc1 {nm}_go')
        sv = list(A.vm); sl = list(A.lg)
        A(f'v_mov_b32 v{EV+2}, s{S_N}')
        A('s_cmp_eq_u32 s38, 2')
        A(f's_cbranch_scc1 {nm}_ex')
        A(f's_branch {nm}_e1')
        A.label(f'{nm}_ec')
        A(f'buffer_load_dwordx2 {vr(EV,2)}, off, s[8:11], s39 sc1')
        A.wait_vm()
        A.label(f'{nm}_e1')
        A(f'v_readfirstlane_b32 s33, v{EV}')
        A(f'v_mov_b32 v{EV+2}, v{EV+1}')
        A(f's_sub_u32 s{S_BUD}, s{S_BUD}, 1')
        A(f's_cbranch_scc1 {nm}_ex')
        A(f's_cmp_lg_u32 s33, s{S_N}')
        A(f's_cbranch_scc1 {nm}_ec')
        A.label(f'{nm}_ex')
        A(f's_max_i32 s{S_BUD}, s{S_BUD}, 0')
        A('s_mov_b64 exec, 1')
        A(f'buffer_store_dwordx2 {vr(EV+2,2)}, off, s[8:11], s36 sc1')
        A(f'ds_write_b32 v{EV+4}, v{EV+2}')
        A('s_mov_b64 exec, -1')
        A.label(f'{nm}_go')
        A.vm = sv; A.lg = sl
        A('s_nop 4')
    def touch(self, d0=XL, va=X1, lane=0):
        it = [f'v_min_u32 v{va}, 19, v{lane}', f'v_lshlrev_b32 v{va}, 7, v{va}',
              f's_mul_i32 s30, s{S_RG}, 163840', f's_mul_i32 s31, s{S_HP}, 10240', 's_add_u32 s30, s30, s31', 's_mul_i32 s31, s3, 2560',
              's_add_u32 s30, s30, s31', f's_add_u32 s31, s30, {O(0)}', f's_add_u32 s30, s30, {X(1)}',
              ('i', f'buffer_load_dword v{d0}, v{va}, s[8:11], s31 offen', 'pt'),
              ('i', f'buffer_load_dword v{d0+1}, v{va}, s[8:11], s30 offen', 'pt')]
        return it
    def xa_items(self, dst):
        return [f'v_and_b32 v{X1}, 31, v0', f'v_lshlrev_b32 v{X1}, 7, v{X1}',
                f'v_and_b32 v{X2}, 6, v0', f'v_bfe_u32 v{X3}, v0, 3, 1', f'v_lshrrev_b32 v{X4}, 5, v0',
                f'v_xor_b32 v{X2}, v{X2}, v{X3}', f'v_xor_b32 v{X2}, v{X2}, v{X4}',
                f'v_lshl_add_u32 v{dst}, v{X2}, 4, v{X1}'] + [f'v_xor_b32 v{dst+j}, {32*j}, v{dst}' for j in (1, 2, 3)]
    def setup0(self):
        it = []
        a = it.append
        a(f'v_bfe_u32 v{T0}, v0, 4, 1')
        a(f'v_lshrrev_b32 v{T1}, 5, v0')
        a(f'v_lshlrev_b32 v{T0}, 10, v{T0}')
        a(f'v_lshl_add_u32 v{T0}, v{T1}, 9, v{T0}')
        a(f'v_and_b32 v{T1}, 15, v0')
        a(f'v_lshl_add_u32 v{VSTP}, v{T1}, 3, v{T0}')
        a('s_and_b32 s30, s3, 1')
        a('s_lshl_b32 s30, s30, 8')
        a(f'v_lshlrev_b32 v{T1}, 4, v{T1}')
        a(f'v_add_u32 v{T1}, s30, v{T1}')
        a(f'v_lshrrev_b32 v{T0}, 4, v0')
        a(f'v_lshl_add_u32 v{VX}, v{T0}, 9, v{T1}')
        a(f'v_lshrrev_b32 v2, 5, v0')
        a(f'v_lshl_add_u32 v{T1}, v2, 9, v{T1}')
        a(f'v_and_b32 v{T0}, 1, v{T0}')
        a(f'v_lshl_add_u32 v{T1}, v{T0}, 3, v{T1}')
        a(f'v_add_u32 v{VX3}, 0x1000, v{T1}')
        return it

    def setup_addr(self):
        it = []
        a = it.append
        a(f'v_add_u32 v{DS1}, 0x10000, v{L16}')
        a(f'v_add_u32 v{DS2}, 0x20000, v{L16}')
        a(f'v_and_b32 v{T0}, 31, v0')
        a(f'v_lshrrev_b32 v{T1}, 5, v0')
        a(f'v_lshlrev_b32 v{VSC}, 3, v{T0}')
        a(f'v_add_u32 v{VSC}, {SC}, v{VSC}')
        a(f'v_mul_u32_u24 v{T0}, {RS}, v{T0}')
        a(f'v_lshl_add_u32 v{T0}, v{T1}, 6, v{T0}')
        a('s_and_b32 s30, s3, 1')
        a('s_lshl_b32 s30, s30, 7')
        a(f'v_add_u32 v{REC0}, s30, v{T0}')
        a('s_mul_i32 s30, s3, 9216')
        a(f's_add_u32 s30, s30, {PQ(0)}')
        a(f'v_add_u32 v{VPQ}, s30, v{T0}')
        a(f'v_lshrrev_b32 v{T0}, 2, v0')
        a(f'v_mul_u32_u24 v{T0}, {RS}, v{T0}')
        a('s_lshr_b32 s30, s3, 1')
        a('s_lshl_b32 s30, s30, 7')
        a(f'v_add_u32 v{T0}, s30, v{T0}')
        a(f'v_and_b32 v{T1}, 3, v0')
        for T, nch in (('B', 5), ('A', 3)):
            for mt, r in enumerate(TRA[T]):
                a(f'v_add_u32 v{X1}, {4*mt}, v{T1}')
                a(f'v_min_u32 v{X1}, {2*nch-1}, v{X1}')
                a(f'v_cmp_le_u32 vcc, {nch}, v{X1}')
                a(f'v_cndmask_b32 v{X2}, 0, {64-8*nch}, vcc')
                a(f'v_lshl_add_u32 v{X1}, v{X1}, 3, v{X2}')
                a(f'v_add_u32 v{r}, v{X1}, v{T0}')
        a(f'v_lshrrev_b32 v{X1}, 1, v{T1}')
        a(f'v_and_b32 v{X2}, 1, v{T1}')
        a(f'v_lshlrev_b32 v{X1}, 6, v{X1}')
        a(f'v_lshl_add_u32 v{X1}, v{X2}, 3, v{X1}')
        a(f'v_lshlrev_b32 v{X2}, 6, v{X2}')
        a('s_bitcmp1_b32 s3, 0')
        a('s_cselect_b64 vcc, -1, 0')
        a(f'v_cndmask_b32 v{X1}, v{X1}, v{X2}, vcc')
        a(f'v_add3_u32 v{TRB0}, v{X1}, v{T0}, 48')
        a(f'v_bfe_u32 v{X1}, v0, 3, 2')
        a(f'v_and_b32 v{X2}, 3, v0')
        a(f'v_lshl_add_u32 v{X1}, v{X1}, 2, v{X2}')
        a(f'v_bfe_u32 v{X2}, v0, 2, 1')
        a(f'v_mul_u32_u24 v{X2}, 10, v{X2}')
        a(f'v_add_u32 v{X2}, v{X2}, v{X1}')
        a(f'v_cmp_gt_u32 s[30:31], 10, v{X1}')
        a(f'v_lshrrev_b32 v{X1}, 5, v0')
        for T in 'BA':
            if T == 'B':
                a(f'v_cmp_le_u32 vcc, 6, v{X2}')
                a(f'v_cndmask_b32 v{X3}, 0, 2, vcc')
                a(f'v_cmp_le_u32 vcc, 12, v{X2}')
                a(f'v_cndmask_b32 v{X4}, 0, 2, vcc')
                a(f'v_add3_u32 v{X3}, v{X2}, v{X3}, v{X4}')
                a(f'v_cndmask_b32 v{X3}, 6, v{X3}, s[30:31]')
            else:
                a(f'v_cmp_le_u32 vcc, 4, v{X2}')
                a(f'v_cndmask_b32 v{X3}, 0, 4, vcc')
                a(f'v_add_u32 v{X3}, v{X2}, v{X3}')
                a(f'v_cndmask_b32 v{X3}, 4, v{X3}, s[30:31]')
            a(f'v_lshrrev_b32 v{X4}, 3, v{X3}')
            a(f'v_lshl_add_u32 v{X4}, v{X4}, 1, v{X1}')
            a(f'v_and_b32 v{X3}, 7, v{X3}')
            a(f'v_mul_u32_u24 v{X4}, {0xc0 if T == "A" else 0x140}, v{X4}')
            a(f'v_lshl_add_u32 v{VKA[T]}, v{X3}, 3, v{X4}')
        for k in range(4): a(f'v_mov_b32 v{SENT+k}, -1')
        a(f'v_mov_b32 v{VC+3}, 0x3f80')
        return it

    def stats_items(self):
        S = STR
        return [
        f'v_add_f32 v{X1}, v{S}, v{S+2}', f'v_add_f32 v{X2}, v{S+4}, v{S+6}',
        f'v_add_f32 v{X1}, v{X1}, v{X2}', f'v_mov_b32 v{X2}, v{X1}',
        f'v_add_f32 v{X3}, v{S+1}, v{S+3}',
        f'v_add_f32 v{X4}, v{S+5}, v{S+7}',
        f'v_permlane32_swap_b32 v{X1}, v{X2}',
        f'v_add_f32 v{X3}, v{X3}, v{X4}',
        f'v_add_f32 v{X1}, v{X1}, v{X2}',
        f'v_mul_f32 v{X1}, 0.125, v{X1}',
        f'v_sub_f32 v{S}, v{S}, v{X1}', f'v_sub_f32 v{S+2}, v{S+2}, v{X1}',
        f'v_sub_f32 v{S+4}, v{S+4}, v{X1}', f'v_sub_f32 v{S+6}, v{S+6}, v{X1}',
        f'v_mul_f32 v{X2}, v{S}, v{S}', f'v_fmac_f32 v{X2}, v{S+2}, v{S+2}',
        f'v_fmac_f32 v{X2}, v{S+4}, v{S+4}', f'v_fmac_f32 v{X2}, v{S+6}, v{S+6}',
        f'v_fmac_f32 v{X3}, 0x42a00000, v{X2}',
        f'v_mov_b32 v{X4}, v{X3}',
        f'v_cvt_pk_bf16_f32 v{X5}, -v{X1}, -v{X1}',
        f's_lshl_b32 s30, s3, 8',
        f'v_permlane32_swap_b32 v{X3}, v{X4}',
        f'v_add_u32 v{X1}, s30, v{VSC}',
        f'v_add_f32 v{X3}, v{X3}, v{X4}',
        f'v_mul_f32 v{X3}, 0x3acccccd, v{X3}',
        f'v_cvt_pk_bf16_f32 v{X3}, v{X3}, v{X3}',
        f'v_lshlrev_b32 v{X3}, 16, v{X3}',
        f'v_add_f32 v{X3}, 0x3727c5ac, v{X3}',
        f'v_cvt_pk_bf16_f32 v{X3}, v{X3}, v{X3}',
        f'v_lshlrev_b32 v{X3}, 16, v{X3}',
        f'v_sqrt_f32 v{X3}, v{X3}',
        f'v_cvt_pk_bf16_f32 v{X3}, v{X3}, v{X3}',
        f'v_lshlrev_b32 v{X3}, 16, v{X3}',
        f'v_rcp_f32 v{X6}, v{X3}',
        ('i', f'ds_write_b64 v{X1}, v[{X5}:{X6}]', 'sc')]
    def st_loads(self, L):
        return [f'buffer_load_dwordx2 {vr(STR+2*c,2)}, v{VSTP}, s[8:11], s31 offen offset:{128*c} sc1' for c in range(4)]
    def st_soff(self, L):
        return [f's_lshl_b32 s31, s{S_RG}, 13', f's_add_u32 s31, s31, s{S_W2K}', f's_add_u32 s31, s31, {ST(L)}']
    def xchunk(self, c):
        it = [f's_add_u32 m0, s{S_W1K}, {4096*c}']
        if c == 39: it.append(f's_min_u32 m0, m0, {158*1024}')
        it += [('i', f'buffer_load_dwordx4 v{L16}, s[12:15], m0 offen sc1 lds', f'x{c}')]
        if c == 39:
            it += [f's_mov_b32 s30, {159*1024}',
                   ('i', f'buffer_load_dwordx4 {vr(XL,4)}, v{L16}, s[12:15], s30 offen sc1', f'x{c}')]
        return it
    def wloads(self, T, s0, n):
        it = [f's_add_u32 s30, s90, {WF[T] + 1024*s0}']
        for k in range(n):
            it.append(('i', f'buffer_load_dwordx4 {wreg(T, s0+k)}, v{L16}, s[8:11], s30 offen offset:{1024*k}{self.wsc}', f'w{T}{s0}'))
        return it
    def wo_dma(self, f0, f1):
        gs = []
        f = f0
        while f < f1:
            it = [f's_add_u32 m0, s{S_W1K}, {WOL + 1024*f}']
            if f + 4 > f1: it.append(f's_min_u32 m0, m0, {WOL + 1024*(f1-1)}')
            it += [('i', f'buffer_load_dwordx4 v{L16}, s[16:19], m0 offen{self.wsc} lds', 'wo')]
            gs.append(it); f += 4
        return gs
    def rec_toggle(self, T):
        return [f'v_lshrrev_b32 v{X2}, 5, v0', 's_and_b32 s30, s3, 1',
                f'v_subrev_u32 v{X2}, s30, v{X2}' if T == 'A' else f'v_sub_u32 v{X2}, s30, v{X2}',
                f'v_lshl_add_u32 v{REC0}, v{X2}, 6, v{REC0}']
    def scread(self, rb):
        b = rb & 1
        return [('i', f'ds_read_b64 v[{T0}:{T1}], v{VSC} offset:{256*rb}', 'scr'), ('wlg', 'scr'),
                f'v_mov_b32 v{NM}, v{T0}', f'v_mov_b32 v{NM+1}, v{T0}', f'v_mov_b32 v{NM+2}, v{T0}', f'v_mov_b32 v{NM+3}, v{T0}',
                f'v_mov_b32 v{VR[b]}, v{T1}', f'v_mul_f32 v{VRL[b]}, 0x3fb8aa3b, v{T1}']
    def epilogue(self, T, rb, ac=None, kadd=0):
        b = rb & 1
        if ac is None: ac = ACC + 16 * b
        R = VR[b]; RL = VRL[b]
        it = []
        a = it.append
        if kadd: a([f's_mov_b32 s31, {kadd}', 's_cmp_ge_u32 s3, 2', f's_cselect_b32 s30, {PQ(rb)-KREC[b]}, s31', f'v_add_u32 v{REC}, s30, v{REC0}'])
        else: a(['s_cmp_ge_u32 s3, 2', f's_cselect_b32 s30, {PQ(rb)-KREC[b]}, 0', f'v_add_u32 v{REC}, s30, v{REC0}'])
        KO = KREC[b]
        if T == 'B':
            for k in range(10, 16): a(f'v_mul_f32 v{ac+k}, v{ac+k}, v{R}')
            for k in range(3): a(f'v_cvt_pk_bf16_f32 v{VC+k}, v{ac+10+2*k}, v{ac+11+2*k}')
            a(('i', f'ds_write_b128 v{REC}, {vr(VC,4)} offset:{KO+48}', 'rec'))
        if T == 'A':
            for k in range(12, 16): a(f'v_mul_f32 v{ac+k}, v{ac+k}, v{R}')
            for k in range(2): a(f'v_cvt_pk_bf16_f32 v{PK+6+k}, v{ac+12+2*k}, v{ac+13+2*k}')
            for b0 in (8, 0, 4):
                blk = [ac + b0 + k for k in range(4)]
                t = [TMP + 2 * k for k in range(4)]
                for x, tt in zip(blk, t): a(f'v_mul_f32 v{tt}, v{x}, v{RL}')
                for x, tt in zip(blk, t): a(f'v_max_f32 v{tt+1}, {"s%d" % S_LO if b0 == 8 else 0}, v{x}')
                for x, tt in zip(blk, t): a(f'v_exp_f32_e64 v{tt}, v{tt} clamp')
                for x, tt in zip(blk, t): a(f'v_fma_f32 v{tt+1}, v{tt+1}, v{R}, s{S_EP2 if b0 == 8 else S_EPS}')
                for x, tt in zip(blk, t):
                    a(f'v_fma_f32 v{tt}, v{tt}, s{S_E}, v{tt+1}' if b0 == 8 else f'v_add_f32 v{tt}, v{tt}, v{tt+1}')
                for k in range(0, 4, 2): a(f'v_cvt_pk_bf16_f32 v{PK+(b0+k)//2}, v{t[k]}, v{t[k+1]}')
                if b0 == 8:
                    a(f'v_cndmask_b32 v{PK+8}, v{PK+4}, v{VC+3}, s[{S_EV}:{S_EV+1}]')
                    a(f'v_cndmask_b32 v{PK+9}, v{PK+5}, 0, s[{S_EV}:{S_EV+1}]')
                    a(f'v_cndmask_b32 v{PK+4}, 0, v{PK+4}, s[{S_EV}:{S_EV+1}]')
                    a(f'v_cndmask_b32 v{PK+5}, 0, v{PK+5}, s[{S_EV}:{S_EV+1}]')
                    a(('i', f'ds_write_b128 v{REC}, {vr(PK+6,4)} offset:{KO+48}', 'rec'))
                    a(('i', f'ds_write_b64 v{REC}, {vr(PK+4,2)} offset:{KO+16}', 'rec'))
            a(('i', f'ds_write_b128 v{REC}, {vr(PK,4)} offset:{KO}', 'rec'))
        else:
            s = [ac + k for k in range(10)]
            a(f'v_max3_f32 v{X1}, v{s[0]}, v{s[1]}, v{s[2]}')
            a(f'v_max3_f32 v{X2}, -v{s[0]}, -v{s[1]}, -v{s[2]}')
            for k in (3, 5, 7):
                a(f'v_max3_f32 v{X1}, v{X1}, v{s[k]}, v{s[k+1]}')
                a(f'v_max3_f32 v{X2}, v{X2}, -v{s[k]}, -v{s[k+1]}')
            a(f'v_max_f32 v{X1}, v{X1}, v{s[9]}')
            a(f'v_max_f32_e64 v{X2}, v{X2}, -v{s[9]}')
            a(f'v_permlane32_swap_b32 v{X1}, v{X2}')
            a(f'v_max_f32 v{X1}, v{X1}, v{X2}')
            a(f'v_mul_f32_e64 v{X1}, -v{X1}, v{RL}')
            a(f'v_mov_b32 v{X2}, v{X1}')
            a(f'v_permlane32_swap_b32 v{X1}, v{X2}')
            Pp = [TMP + k for k in range(10)]; N = [TMP + 10 + k for k in range(10)]
            prev = None
            def addblk(ks):
                for k in ks:
                    if k == 0: continue
                    if k == 1:
                        a(f'v_add_f32 v{X3}, v{Pp[0]}, v{Pp[1]}'); a(f'v_add_f32 v{X4}, v{N[0]}, v{N[1]}')
                    else:
                        a(f'v_add_f32 v{X3}, v{X3}, v{Pp[k]}'); a(f'v_add_f32 v{X4}, v{X4}, v{N[k]}')
            for ks in ((0, 1, 2, 3), (4, 5, 6, 7), (8, 9)):
                for k in ks:
                    a(f'v_fma_f32 v{Pp[k]}, v{s[k]}, v{RL}, v{X1}')
                    a(f'v_fma_f32 v{N[k]}, -v{s[k]}, v{RL}, v{X2}')
                for k in ks:
                    a(f'v_exp_f32 v{Pp[k]}, v{Pp[k]}')
                    a(f'v_exp_f32 v{N[k]}, v{N[k]}')
                if prev: addblk(prev)
                prev = ks
            addblk(prev)
            a(f'v_permlane32_swap_b32 v{X3}, v{X4}')
            a(f'v_add_f32 v{X3}, v{X3}, v{X4}')
            a(f'v_rcp_f32 v{X3}, v{X3}')
            a(f'v_mov_b32 v{X4}, v{X3}')
            a(f'v_permlane32_swap_b32 v{X3}, v{X4}')
            for half, (regs, sc) in enumerate(((Pp, X3), (N, X4))):
                for k in range(0, 10, 2):
                    a(f'v_mul_f32 v{regs[k]}, v{regs[k]}, v{sc}')
                    a(f'v_mul_f32 v{regs[k+1]}, v{regs[k+1]}, v{sc}')
                    a(f'v_cvt_pk_bf16_f32 v{PK+5*half+k//2}, v{regs[k]}, v{regs[k+1]}')
                    n = 5 * half + k // 2
                    if n == 3: a(('i', f'ds_write_b128 v{REC}, {vr(PK,4)} offset:{KO}', 'rec'))
                    if n == 7: a(('i', f'ds_write_b128 v{REC}, {vr(PK+4,4)} offset:{KO+16}', 'rec'))
                    if n == 9: a(('i', f'ds_write_b64 v{REC}, {vr(PK+8,2)} offset:{KO+32}', 'rec'))
        return it
    def kv(self, T, rb):
        b = rb & 1
        rd = [['s_bitcmp1_b32 s3, 0', f's_cselect_b32 s30, {PQ(rb)-KREC[b]}, 0', f'v_add_u32 v{TRB}, s30, v{TRB0}']]
        for jh in range(2):
            rd.append(('i', f'ds_read_b64_tr_b16 {vr(KFB+2*jh,2)}, v{TRB} offset:{KREC[b]+16*jh*RS}', 'kvr'))
        for mt, r in enumerate(TRA[T]):
            for jh in range(2):
                rd.append(('i', f'ds_read_b64_tr_b16 {vr(KFA+4*mt+2*jh,2)}, v{r} offset:{KREC[b]+16*jh*RS}', 'kvr'))
        mm = [('wlg', 'kvr')]
        for mt in range(len(TRA[T])):
            c = '0' if rb == 0 else vr(KC + 4 * mt, 4)
            mm.append(f'v_mfma_f32_16x16x32_bf16 {vr(KC+4*mt,4)}, {vr(KFA+4*mt,4)}, {vr(KFB,4)}, {c}')
        return rd, mm
    def kvp_addr(self, T):
        NG = 6 if T == 'A' else 10
        it = [f'v_bfe_u32 v{X1}, v0, 3, 1', f'v_lshrrev_b32 v{X2}, 4, v0',
              ['s_lshr_b32 s30, s3, 1', 's_mul_i32 s30, s30, 3', 's_and_b32 s31, s3, 1', 's_lshl_b32 s31, s31, 1',
               f'v_add_u32 v{X1}, s31, v{X1}', f'v_cmp_gt_u32 s[32:33], 3, v{X1}', f'v_add_u32 v{X1}, s30, v{X1}'],
              f'v_mul_u32_u24 v{X1}, {NG}, v{X1}', f'v_add_u32 v{X1}, v{X1}, v{X2}', f'v_mov_b32 v{X5}, {OOB}',
              f'v_and_b32 v{X3}, 7, v0', f'v_lshlrev_b32 v{X3}, 4, v{X3}', f'v_lshl_add_u32 v{X1}, v{X1}, 11, v{X3}',
              f'v_cndmask_b32 v{VKP[0]}, v{X5}, v{X1}, s[32:33]']
        nmt = len(TRA[T])
        for mt in range(1, nmt): it.append(f'v_add_u32 v{VKP[mt]}, {8192*mt}, v{VKP[0]}')
        it += [f'v_cmp_gt_u32 vcc, {NG-4*(nmt-1)}, v{X2}', f'v_cndmask_b32 v{VKP[nmt-1]}, v{X5}, v{VKP[nmt-1]}, vcc']
        return it
    def clears(self, L, lane=0, l16=L16, x5=X5, x6=X6, sent=SENT):
        n = L + 1
        g1 = [f'v_lshrrev_b32 v{x5}, 3, v{lane}', f'v_and_b32 v{x6}, 7, v{lane}', f'v_lshlrev_b32 v{x5}, 11, v{x5}',
              f'v_lshl_add_u32 v{x5}, v{x6}, 4, v{x5}',
              f's_mul_i32 s30, s{S_HP}, {KVPS(n)}', f's_lshl_b32 s31, s{S_RG}, 7', 's_add_u32 s30, s30, s31',
              's_lshl_b32 s31, s3, 15', 's_add_u32 s30, s30, s31', f's_add_u32 s30, s30, {KVP(n)}',
              ('i', f'buffer_store_dwordx4 {vr(sent,4)}, v{x5}, s[8:11], s30 offen sc1', 'clr'),
              's_add_u32 s30, s30, 16384',
              ('i', f'buffer_store_dwordx4 {vr(sent,4)}, v{x5}, s[8:11], s30 offen sc1', 'clr')]
        g2 = [f'v_lshrrev_b32 v{x5}, 3, v{lane}', f'v_lshlrev_b32 v{x5}, 17, v{x5}', f'v_lshl_add_u32 v{x5}, v{x6}, 4, v{x5}',
              f's_lshl_b32 s30, s{S_HP}, 13', f's_lshl_b32 s31, s{S_RG}, 7', 's_add_u32 s30, s30, s31',
              f's_add_u32 s30, s30, s{S_W2K}', f's_add_u32 s30, s30, {KVF(n)}',
              ('i', f'buffer_store_dwordx4 {vr(sent,4)}, v{x5}, s[8:11], s30 offen sc1', 'clr'),
              f's_lshl_b32 s31, s{S_RG}, 13', f's_add_u32 s31, s31, s{S_W2K}', f's_lshl_b32 s32, s{S_HP}, 7',
              's_add_u32 s31, s31, s32', f's_add_u32 s31, s31, {F2(n)}',
              f's_lshl_b32 s32, s{S_RBY}, 10', f's_lshl_b32 s33, s{S_CG}, 7', 's_add_u32 s32, s32, s33',
              f's_add_u32 s32, s32, {ST(n)}',
              ['s_mov_b64 exec, 0xff',
               ('i', f'buffer_store_dwordx4 {vr(sent,4)}, v{l16}, s[8:11], s32 offen sc1', 'clr'),
               's_mov_b64 exec, 0xf',
               ('i', f'buffer_store_dwordx4 {vr(sent,4)}, v{l16}, s[8:11], s31 offen sc1', 'clr'),
               's_mov_b64 exec, -1']]
        if L >= 1 and self.opt.get('FCL'):
            g2[-1] = ['s_mov_b64 exec, 0xff',
                      ('fn', lambda: self.fstore([f'buffer_store_dwordx4 {vr(sent,4)}, v{l16}, s[8:11], s{k} offen' for k in (32, 31)], tag='clr'), 'clr'),
                      's_mov_b64 exec, -1']
        return [g1, g2]

    def front(self, L):
        A = self.A; o = self.opt
        T = 'AB'[L & 1]
        last = (L == self.nl - 1)
        PF = 7
        queue = []
        if True:
            emit_items(A, self.st_soff(L))
            self.poll(self.st_loads(L), [STR + k for k in range(8)], X1)
            self.stamp('st')
            A('s_barrier')
            for c in range(o['PRE']): emit_items(A, self.xchunk(c))
            emit_items(A, self.stats_items() + self.rec_toggle(T))
            queue = [self.xchunk(c) for c in range(o['PRE'], 40)]
        def xread(n):
            if n == 159: return []
            r, off = dsaddr(1024 * n)
            return [('i', f'ds_read_b128 {vr(RING+4*(n%8),4)}, v{r} offset:{off}', f'r{n}')]
        bar = o.get('BAR', {8: 16, 16: 24, 24: 32, 32: 40, 40: 56, 56: 72, 72: 88, 104: 128, 144: 160})
        bend = o.get('BEND', {1: 104, 2: 144})
        def xwait(q):
            if not q: return
            c = q // 4 - 1
            while any(isinstance(i, tuple) and i[2] == f'x{c}' for g in queue for i in g):
                emit_items(A, queue.pop(0))
            A.wait_vm(f'x{c}')
        A.wait_vm('x1'); A.wait_lg('sc'); self.stamp('x0'); A('s_barrier')
        for n in range(PF): emit_items(A, xread(n))
        gcount = 0
        for rb in range(4):
            ac = vr(ACC + 16 * (rb & 1), 16)
            fill = []
            if rb >= 2:
                rd, mm = self.kv(T, rb - 2)
                fill += rd
            if rb >= 1:
                ep = self.epilogue(T, rb - 1)
                if rb >= 2: ep = ep[:12] + mm + ep[12:]
                fill += ep
            scr = self.scread(rb)
            if rb == 0:
                fill += self.kvp_addr(T)
                if not last: fill += self.clears(L)
                fill += [self.srd_wo_items(T)]
            fill = scr[:1] + fill + scr[1:]
            if rb == 2: queue += self.wo_dma(0, 26)
            if rb == 3: queue += self.wo_dma(42, 66)
            rate = max(o['RMIN'], (cost(fill) * o['RX'] + o['DCOST'] * 40 / o['DMA_EVERY']) / 38); credit = -rate
            for s in range(41):
                n = 40 * rb + s
                if s < 40:
                    nn = n + PF
                    if nn in bar:
                        xwait(bar[nn]); A('s_barrier')
                        if nn == 104: queue += self.wo_dma(26, 42)
                        if nn == 144: queue += self.wo_dma(66, 82)
                    if nn < 160: emit_items(A, xread(nn))
                    if L == 0 and rb == 0 and s % 4 == 0: A.wait_vm(f'wA{s}')
                    if n == 159:
                        src = vr(XL, 4)
                    else:
                        if o['W2'] and n % 2 == 0 and n < 158: A.wait_lg(f'r{n+1}')
                        A.wait_lg(f'r{n}'); src = vr(RING + 4 * (n % 8), 4)
                    A(f'v_mfma_f32_32x32x16_bf16 {ac}, {wreg(T, s)}, {src}, {"0" if s == 0 else ac}')
                else:
                    emit_items(A, flat(fill)); fill = []
                    if L == 0 and rb == 0: A.wait_vm('wc')
                    A(f'v_mfma_f32_32x32x16_bf16 {ac}, {vr(WCR[T],4)}, {vr(NM,4)}, {ac}')
                    break
                gcount += 1
                credit += rate
                if queue and gcount % o['DMA_EVERY'] == 0:
                    g = queue.pop(0); emit_items(A, g); credit -= o['DCOST']
                if s >= 1:
                    while fill and credit >= 0.5 * cost(fill[0]):
                        it = fill.pop(0); p0 = A.pos; c0 = cost(it) - len(flat([it]))
                        emit_items(A, flat([it])); credit -= (A.pos - p0) + c0
            if rb >= 1:
                if rb in bend: xwait(bend[rb])
                if rb == 3:
                    for g in queue: emit_items(A, g)
                    queue = []
                    A.wait_vm('clr')
                A.wait_lg('rec'); A.wait_lg('kvr')
                self.stamp(f'b{rb}_')
                A('s_barrier')
        rd, mm = self.kv(T, 2)
        ep = self.epilogue(T, 3)
        if o.get('FINE'):
            self.stamp('ea'); emit_items(A, flat(rd)); self.stamp('eb'); emit_items(A, flat(ep[:11])); self.stamp('ec')
            h = 11 + (len(ep) - 11) // 2
            emit_items(A, flat(ep[11:h])); self.stamp('ed'); emit_items(A, flat(ep[h:])); self.stamp('ee'); emit_items(A, flat(mm)); self.stamp('ef')
            print(T, 'counts', len(flat(rd)), len(flat(ep[:11])), len(flat(ep[11:h])), len(flat(ep[h:])))
        else:
            emit_items(A, flat(rd + ep[:12] + mm + ep[12:]))
        A(f's_mul_i32 s34, s{S_HP}, {KVPS(L)}'); A(f's_add_u32 s34, s34, {KVP(L)}')
        A(f's_lshl_b32 s31, s{S_RG}, 7'); A('s_add_u32 s35, s34, s31')
        A(f'v_mov_b32 v{X5}, {OOB}')
        A.wait_lg()
        self.stamp('ep3_')
        A('s_barrier')
        rd, mm = self.kv(T, 3)
        emit_items(A, flat(rd + mm))
        for mt in range(len(TRA[T])):
            A(f'buffer_store_dwordx4 {vr(KC+4*mt,4)}, v{VKP[mt]}, s[8:11], s35 offen sc1')

    def split(self, src, dst):
        return [f'v_cvt_pk_bf16_f32 v{dst}, v{src}, v{src}',
            f'v_lshlrev_b32 v{dst+1}, 16, v{dst}',
            f'v_sub_f32 v{src}, v{src}, v{dst+1}',
            f'v_cvt_pk_bf16_f32 v{dst+1}, v{src}, v{src}',
            f'v_and_b32 v{dst+1}, 0xffff0000, v{dst+1}',
            f'v_sub_f32 v{src}, v{src}, v{dst+1}',
            f'v_and_b32 v{dst}, 0xffff, v{dst}',
            f'v_or_b32 v{dst}, v{dst}, v{dst+1}',
            f'v_mov_b32 v{dst+2}, 0',
            f'v_cvt_pk_bf16_f32 v{dst+1}, v{src}, v{dst+2}',
            f'v_mov_b32 v{dst+3}, 0',
            f'v_cmp_gt_u32 vcc, 32, v0',
            f'v_cndmask_b32 v{dst}, 0, v{dst}, vcc',
            f'v_cndmask_b32 v{dst+1}, 0, v{dst+1}, vcc']
    def checkpoint(self, FE, FA):
        A = self.A; o = self.opt; nm = self.name
        A.wait_vm('fl')
        sv = list(A.vm)
        A(f's_branch {nm}_c1')
        A.label(f'{nm}_c0')
        A(f's_mov_b32 s32, {FL}')
        A('s_cmp_lg_u32 s38, 2')
        A(f's_cbranch_scc1 {nm}_c2')
        A(f's_mov_b32 s30, {AR}'); A(f's_mov_b32 s31, {EC}')
        A(f'buffer_load_dwordx4 {vr(FE,4)}, v{L16}, s[8:11], s30 offen sc1')
        A.wait_vm()
        A(f'v_mov_b32 v{FE+6}, v{FE+3}'); A(f'v_mov_b32 v{FE+4}, v{FE+2}'); A(f'v_mov_b32 v{FE+2}, v{FE+1}')
        for k in range(4): A(f'v_mov_b32 v{FE+1+2*k}, s{S_M}')
        A(f'buffer_store_dwordx4 {vr(FE,4)}, v{FA}, s[8:11], s31 offen sc1')
        A(f'buffer_store_dwordx4 {vr(FE+4,4)}, v{FA}, s[8:11], s31 offen offset:16 sc1')
        A.wait_vm()
        A.label(f'{nm}_c2')
        self.flloads(FE, FA)
        A.wait_vm()
        A.label(f'{nm}_c1')
        for k in (0, 2, 4, 6): A(f'v_xor_b32 v{FE+k}, s{S_M}, v{FE+k}')
        A(f'v_or3_b32 v{FE}, v{FE}, v{FE+2}, v{FE+4}'); A(f'v_or_b32 v{FE}, v{FE}, v{FE+6}')
        A(f'v_cmp_ne_u32 vcc, 0, v{FE}')
        A(f's_sub_u32 s{S_BUD}, s{S_BUD}, 1')
        A(f's_cbranch_scc1 {nm}_c3')
        A('s_nop 4')
        A(f's_cbranch_vccnz {nm}_c0')
        A.label(f'{nm}_c3')
        A(f's_max_i32 s{S_BUD}, s{S_BUD}, 0')
        A.vm = sv
        self.stamp('cp')
        for k in (1, 3, 5, 7): A(f'v_xor_b32 v{FE+k}, s{S_XCC}, v{FE+k}')
        A(f'v_or3_b32 v{FE}, v{FE+1}, v{FE+3}, v{FE+5}'); A(f'v_or_b32 v{FE}, v{FE}, v{FE+7}')
        A(f'v_cmp_ne_u32 vcc, 0, v{FE}')
        A(f's_lshl_b32 s30, s{S_RG}, 2')
        A('s_lshr_b64 s[30:31], vcc, s30')
        A('s_and_b32 s30, s30, 15')
        A(f's_cselect_b32 s{S_SAME}, 0, 1')
        if o.get('FORCE_SLOW'): A(f's_mov_b32 s{S_SAME}, 0')
        A(f'v_lshlrev_b32 v{FA}, 2, v0')
        A(f's_lshl_b32 s30, s{S_RG}, 10'); A('s_lshl_b32 s31, s3, 8'); A('s_add_u32 s30, s30, s31'); A(f's_add_u32 s30, s30, {S0}')
        A(f's_add_u32 m0, s31, {SC}')
        A(f'buffer_load_dword v{FA}, s[8:11], s30 offen sc1 lds', tag='sc')
    def flloads(self, FE, FA):
        self.A(f'buffer_load_dwordx4 {vr(FE,4)}, v{FA}, s[8:11], s32 offen sc1', tag='fl')
        self.A(f'buffer_load_dwordx4 {vr(FE+4,4)}, v{FA}, s[8:11], s32 offen offset:16 sc1', tag='fl')
    def xo_items(self):
        return [f'v_and_b32 v{X1}, 15, v0', f'v_mul_u32_u24 v{X1}, 1280, v{X1}', f'v_lshrrev_b32 v{X2}, 4, v0',
              f'v_lshl_add_u32 v{X3}, v{X2}, 4, v{X1}', f'v_lshl_add_u32 v{X4}, v{X2}, 3, v{X1}',
              f's_and_b32 s30, s{S_RBY}, 7', 's_mul_i32 s30, s30, 20480', f's_mul_i32 s31, s{S_CG}, 160', 's_add_u32 s30, s30, s31',
              ('i', f'buffer_load_dwordx4 {vr(XOLD,4)}, v{X3}, s[12:15], s30 offen', 'xo'),
              ('i', f'buffer_load_dwordx4 {vr(XOLD+4,4)}, v{X3}, s[12:15], s30 offen offset:64', 'xo'),
              ('i', f'buffer_load_dwordx2 {vr(XOLD+8,2)}, v{X4}, s[12:15], s30 offen offset:128', 'xo')]
    def front0(self):
        A = self.A; o = self.opt
        nm = self.name
        T = 'A'; L = 0
        acc = [ACC, ACC + 16, 192, 208]
        XA = TMP; WA = TMP + 4; CS = 224
        FE = KC; FA = KC + 8; MR = KC + 9
        CP = o.get('CP', 8)
        FS = o.get('FS', 1)
        def xread(i):
            if i >= 160: return
            sg, s_, rb = i >> 4, (i >> 2) & 3, i & 3
            A(f'ds_read_b128 {vr(RING+4*(i%8),4)}, v{XA+s_} offset:{32768*(sg&1) + 16384 + 4096*rb}', tag=f'r{i}')
        def wread(s):
            sg, s_ = s >> 2, s & 3
            for jh in range(2):
                A(f'ds_read_b64_tr_b16 {ar(4*s+2*jh,2)}, v{WA} offset:{32768*(sg&1) + 4096*s_ + 1024*jh}', tag=f'w{s}')
        PF = 7
        queue = []
        wbq = [self.wloads('B', 4*g, 4) for g in range(6)] if self.nl > 1 else []
        for i in range(-PF, 160):
            nn = i + PF
            if nn < 160 and nn % 16 == 0:
                sg = nn >> 4
                for g in queue: emit_items(A, flat(g))
                A.wait_vm(f'g{sg}')
                if sg == FS: A.wait_vm('ec')
                A.wait_lg()
                if sg in (0, 1, 2, 3, 5, 7, 9): self.stamp(f's{sg}_')
                A('s_barrier')
                if sg % 2 == 0 and sg > 0:
                    for k in range(5): A(f'v_xor_b32 v{TMP+k}, 0x10000, v{TMP+k}')
                wread(4 * sg)
                if sg == FS: self.flag()
                queue = self.ring(sg + 3) if sg + 3 < 10 else []
                if sg == 0: queue = self.dq + queue
                if sg == 1: queue.append(flat(self.kvp_addr(T)))
                if sg == FS + 1:
                    A(f'v_mov_b32 v{MR}, {MW}')
                    A(f'ds_read_b32 v{MR}, v{MR}', tag='mw')
                if sg == FS + 2: A(f'v_readfirstlane_b32 s{S_M}, v{MR}')
                if sg == o.get('CL0', 7) and self.nl > 1: queue += self.clears(0)
                if sg == o.get('XO', 7): queue.append(self.xo_items())
                if sg == CP - 1:
                    A(f'v_lshlrev_b32 v{FA}, 5, v0'); A(f's_mov_b32 s32, {FL}')
                    self.flloads(FE, FA)
                if sg == CP: self.checkpoint(FE, FA)
                if sg == o.get('PT', -1): queue.append(self.touch())
                if sg >= CP:
                    nw = o.get('NWB', 3) if sg < 9 else 6
                    queue += wbq[:nw]; wbq = wbq[nw:]
            if nn < 160:
                if nn % 4 == 2 and (nn & 15) < 12: wread((nn >> 2) + 1)
                xread(nn)
            if i < 0: continue
            s_ = i >> 2; rb = i & 3
            if rb == 0: A.wait_lg(f'w{s_}')
            A.wait_lg(f'r{i}')
            A(f'v_mfma_f32_32x32x16_bf16 {vr(acc[rb],16)}, {wreg(T, s_)}, {vr(RING+4*(i%8),4)}, {"0" if s_ == 0 else vr(acc[rb],16)}')
            if rb == 1:
                A(f'v_mfma_f32_16x16x32_bf16 {vr(CS,4)}, {vr(NM,4)}, {wreg(T, s_)}, {"0" if s_ == 0 else vr(CS,4)}')
            if queue: emit_items(A, flat(queue.pop(0)))
        for g in queue: emit_items(A, flat(g))
        emit_items(A, self.split(CS, WCR['A']))
        emit_items(A, self.srd_wo_items(T) + [f's_mov_b32 s18, {WOL + 102400}'])
        A.wait_vm('sc')
        A.wait_lg()
        self.stamp('m_')
        A('s_barrier')
        NMx = TMP + 12
        for rb in range(4): A(f'ds_read_b32 v{NMx+rb}, v{VSC} offset:{256*rb}', tag='nm')
        def rread(rb):
            b = rb & 1
            return [('i', f'ds_read_b32 v{VR[b]}, v{VSC} offset:{256*rb+4}', 'scr'), ('wlg', 'scr'), f'v_mul_f32 v{VRL[b]}, 0x3fb8aa3b, v{VR[b]}']
        emit_items(A, rread(0)[:1] + rread(1) + rread(0)[2:])
        NB = [NM, KFA]
        for rb in range(4):
            for k in range(4): A(f'v_mov_b32 v{NB[rb&1]+k}, v{NMx+rb}')
            A(f'v_mfma_f32_32x32x16_bf16 {vr(acc[rb],16)}, {vr(WCR[T],4)}, {vr(NB[rb&1],4)}, {vr(acc[rb],16)}')
        if o.get('PT') == 10: emit_items(A, self.touch())
        wq = self.wo_dma(0, 82)
        for rb in range(4):
            ep = self.epilogue(T, rb, ac=acc[rb], kadd=KR2 if rb >= 2 else 0)
            if rb < 2: ep += rread(rb + 2)
            for k, it in enumerate(ep):
                emit_items(A, flat([it]))
                if wq and k % o.get('WOE', 6) == 3: emit_items(A, wq.pop(0))
        for g in wq: emit_items(A, g)
        if self.nl > 1 and o.get('WB2', 0) == 0:
            for g in range(6, 10): emit_items(A, self.wloads('B', 4*g, 4))
        A(f's_mul_i32 s34, s{S_HP}, {KVPS(L)}'); A(f's_add_u32 s34, s34, {KVP(L)}')
        A(f's_lshl_b32 s31, s{S_RG}, 7'); A('s_add_u32 s35, s34, s31')
        A(f'v_mov_b32 v{X5}, {OOB}')
        TB = TMP; TA2 = TMP + 4; F = ACC
        A(f's_mov_b32 s31, {KR2}')
        A('s_bitcmp1_b32 s3, 0')
        for rb in range(4):
            A(f's_cselect_b32 s30, {PQ(rb)-KREC[rb&1]}, {"s31" if rb >= 2 else "0"}')
            A(f'v_add_u32 v{TB+rb}, s30, v{TRB0}')
        for mt in range(2): A(f'v_add_u32 v{TA2+mt}, s31, v{TRA[T][mt]}')
        A.wait_vm('clr')
        A.wait_lg()
        self.stamp('ep3_')
        A('s_barrier')
        for rb in range(4):
            f = F + 12 * rb
            for jh in range(2):
                A(f'ds_read_b64_tr_b16 {vr(f+2*jh,2)}, v{TB+rb} offset:{KREC[rb&1]+16*jh*RS}', tag=f'kv{rb}')
            for mt in range(2):
                r = TRA[T][mt] if rb < 2 else TA2 + mt
                for jh in range(2):
                    A(f'ds_read_b64_tr_b16 {vr(f+4+4*mt+2*jh,2)}, v{r} offset:{KREC[rb&1]+16*jh*RS}', tag=f'kv{rb}')
        for rb in range(4):
            f = F + 12 * rb
            A.wait_lg(f'kv{rb}')
            for mt in range(2):
                c = '0' if rb == 0 else vr(KC + 4 * mt, 4)
                A(f'v_mfma_f32_16x16x32_bf16 {vr(KC+4*mt,4)}, {vr(f+4+4*mt,4)}, {vr(f,4)}, {c}')
        for mt in range(2):
            A(f'buffer_store_dwordx4 {vr(KC+4*mt,4)}, v{VKP[mt]}, s[8:11], s35 offen sc1')

    def layer(self, L):
        A = self.A; o = self.opt
        self.L = L
        T = 'AB'[L & 1]
        NG = 6 if T == 'A' else 10
        NR = 6 * NG
        last = (L == self.nl - 1)
        final = (L == 3)
        PF = 7
        if L == 0: self.front0()
        else: self.front(L)
        self.stamp('kvp')
        wo1 = 82 if L == 0 else o['WO1']
        for g in self.wo_dma(82, wo1): emit_items(A, g)
        QF = RING; KF = TMP; RD = 104; GQ = 136
        nks = 3 if T == 'B' else 2
        for hd in range(2):
            for ks in range(nks):
                q = QF + 12 * hd + 4 * ks
                if ks < nks - 1:
                    A(f'ds_read_b128 {vr(q,4)}, v{VPQ} offset:{128*hd+16*ks}', tag='qf')
                else:
                    A(f'ds_read_b64 {vr(q,2)}, v{VPQ} offset:{128*hd+16*ks}', tag='qf')
                    A(f'v_mov_b32 v{q+2}, 0'); A(f'v_mov_b32 v{q+3}, 0')
        A('s_lshl_b32 s30, s3, 4'); A(f's_add_u32 s30, s30, s{S_RG}')
        A('s_lshl_b32 s31, s30, 11'); A('s_add_u32 s34, s34, s31')
        A(f's_lshl_b32 s35, s{S_HP}, 13'); A(f's_add_u32 s35, s35, {KVF(L)}')
        A('s_lshl_b32 s31, s30, 7'); A('s_add_u32 s36, s35, s31')
        VO = PK
        A(f'v_and_b32 v{X1}, 7, v0'); A(f'v_lshrrev_b32 v{X2}, 5, v0')
        A(f'v_lshlrev_b32 v{X1}, 3, v{X1}'); A(f'v_lshl_add_u32 v{X1}, v{X2}, 2, v{X1}')
        A(f'v_bfe_u32 v{X2}, v0, 3, 2'); A(f'v_lshl_add_u32 v{VO}, v{X2}, 17, v{X1}')
        A(f'v_add_u32 v{VO+3}, {4*KVC}, v{VO}')
        A(f'v_lshrrev_b32 v{X1}, 2, v0'); A(f'v_and_b32 v{X2}, 3, v0'); A(f'v_lshlrev_b32 v{X2}, 4, v{X2}')
        A(f'v_lshl_add_u32 v{X1}, v{X1}, 7, v{X2}')
        A(f'v_cmp_gt_u32 vcc, {NR}, v0')
        A(f'v_cndmask_b32 v{VO+1}, v{X5}, v{X1}, vcc')
        A(f's_mul_i32 s31, s3, {16*NR}')
        A('s_add_u32 s35, s35, s31'); A('s_add_u32 s35, s35, s31')
        A(f's_lshr_b32 s32, s{S_RG}, 1'); A('s_lshl_b32 s32, s32, 17'); A('s_add_u32 s35, s35, s32')
        A(f'v_add_u32 v{X1}, s31, v{L16}'); A(f'v_add_u32 v{X2}, 0x1000, v{L16}')
        A(f'v_cndmask_b32 v{VO+2}, v{X2}, v{X1}, vcc')
        for hd in range(2):
            k = KF + 12 * hd + 4 * (nks - 1)
            A(f'v_mov_b32 v{k+2}, 0'); A(f'v_mov_b32 v{k+3}, 0')
        lsk = self.lab('nored')
        A(f's_cmp_ge_u32 s30, {NR}')
        A(f's_cbranch_scc1 {lsk}')
        self.poll([f'buffer_load_dwordx4 {vr(RD,4)}, v{L16}, s[8:11], s34 offen sc1',
                   f'buffer_load_dwordx4 {vr(RD+4,4)}, v{L16}, s[8:11], s34 offen offset:1024 sc1'], [RD + k for k in range(8)], X1, sleep=o.get('SL1', 0), pre=o.get('PRE1', 0))
        for k in range(4): A(f'v_add_f32 v{RD+k}, v{RD+k}, v{RD+4+k}')
        A(f'v_permlane32_swap_b32 v{RD}, v{RD+2}')
        A(f'v_permlane32_swap_b32 v{RD+1}, v{RD+3}')
        A(f'v_add_f32 v{RD}, v{RD}, v{RD+2}')
        A(f'v_add_f32 v{RD+1}, v{RD+1}, v{RD+3}')
        A(f'v_add_f32_dpp v{RD+2}, v{RD}, v{RD} row_ror:8 row_mask:0xf bank_mask:0xf')
        A(f'v_add_f32_dpp v{RD+3}, v{RD+1}, v{RD+1} row_ror:8 row_mask:0xf bank_mask:0xf')
        A(f'v_mov_b32 v{RD}, v{RD+2}'); A(f'v_mov_b32 v{RD+1}, v{RD+3}')
        A(f'v_permlane16_swap_b32 v{RD}, v{RD+2}')
        A(f'v_permlane16_swap_b32 v{RD+1}, v{RD+3}')
        A(f'v_add_f32 v{RD}, v{RD}, v{RD+2}')
        A(f'v_add_f32 v{RD+1}, v{RD+1}, v{RD+3}')
        A(f'v_cvt_pk_bf16_f32 v{RD}, v{RD}, v{RD+1}')
        A(f'buffer_store_dword v{RD}, v{VO}, s[8:11], s36 offen sc1')
        A(f'buffer_store_dword v{RD}, v{VO+3}, s[8:11], s36 offen sc1')
        A.label(lsk)
        self.stamp('red')
        if o.get('RBAR', 1): A('s_barrier')
        pre2 = o.get('PRE2', 0)
        if L == 0 and self.nl > 1:
            emit_items(A, self.onesel(NM))
            A('s_waitcnt vmcnt(2)')
        for g in self.wo_dma(wo1, 100): emit_items(A, g)
        if L == 0 and self.nl > 1:
            for s_ in range(40):
                d = vr(ACC + 4 * (s_ & 1), 4)
                A(f'v_mfma_f32_16x16x32_bf16 {d}, {vr(NM,4)}, {wreg("B", s_)}, {"0" if s_ < 2 else d}')
            A(f'v_add_f32 v{ACC}, v{ACC}, v{ACC+4}')
            emit_items(A, self.split(ACC, WCR['B']))
            pre2 = o.get('PRE20', 0)
        self.poll([f'buffer_load_dwordx4 {vr(RD+4,4)}, v{VO+1}, s[8:11], s35 offen sc1'], [RD + 4 + k for k in range(4)], X1, sleep=o.get('SL2', 0), pre=pre2)
        A(f'ds_write_b128 v{VO+2}, {vr(RD+4,4)}')
        A(f'v_bfe_u32 v{X1}, v0, 4, 1'); A(f'v_mul_u32_u24 v{X1}, 20480, v{X1}')
        A(f'v_and_b32 v{X2}, 15, v0'); A(f'v_lshl_add_u32 v{X1}, v{X2}, 4, v{X1}')
        A(f'v_lshrrev_b32 v{X2}, 5, v0')
        A(f'v_lshl_add_u32 v{VO}, v{X2}, 8, v{X1}')
        A(f'v_lshl_add_u32 v{VO+1}, v{X2}, 3, v{X1}')
        A.wait_lg()
        self.stamp('kvf')
        A('s_barrier')
        for hd in range(2):
            for ks in range(nks):
                k = KF + 12 * hd + 4 * ks
                o8 = 192 * NG * hd + 128 * ks
                A(f'ds_read_b64 {vr(k,2)}, v{VKA[T]} offset:{o8}', tag=f'kf{hd}{ks}')
                if ks < nks - 1:
                    A(f'ds_read_b64 {vr(k+2,2)}, v{VKA[T]} offset:{o8+64}', tag=f'kf{hd}{ks}')
        A(f's_lshl_b32 s30, s{S_RG}, 2'); A('s_add_u32 s30, s30, s3')
        A('s_mul_i32 s31, s30, 40960'); A(f's_mul_i32 s32, s{S_HP}, 1280'); A('s_add_u32 s31, s31, s32')
        A(f's_add_u32 s31, s31, {O(L)}')
        A('s_lshl_b32 s30, s30, 11'); A(f's_lshl_b32 s32, s{S_HP}, 7'); A('s_add_u32 s30, s30, s32')
        A(f's_add_u32 s30, s30, {F2(L)}')
        for ks in range(nks):
            for hd in range(2):
                d = vr(ACC + 16 * hd, 16)
                A.wait_lg(f'kf{hd}{ks}')
                A(f'v_mfma_f32_32x32x16_bf16 {d}, {vr(KF+12*hd+4*ks,4)}, {vr(QF+12*hd+4*ks,4)}, {"0" if ks == 0 else d}')
        OPK = 140
        for hd in range(2):
            d = ACC + 16 * hd
            A(f'v_add_f32 v{d+10}, s{S_EPS}, v{d+10}')
            A(f'v_rcp_f32 v{d+10}, v{d+10}')
            A(f'v_mov_b32 v{d+11}, v{d+10}')
            for k in range(0, 10, 2):
                A(f'v_pk_mul_f32 {vr(d+k,2)}, {vr(d+k,2)}, {vr(d+10,2)}')
            for k in range(5):
                dst = OPK + 4 * hd + k if k < 4 else OPK + 8 + hd
                A(f'v_cvt_pk_bf16_f32 v{dst}, v{d+2*k}, v{d+2*k+1}')
        self.fstore([f'buffer_store_dwordx4 {vr(OPK,4)}, v{VO}, s[8:11], s31 offen',
                     f'buffer_store_dwordx4 {vr(OPK+4,4)}, v{VO}, s[8:11], s31 offen offset:512',
                     f'buffer_store_dwordx2 {vr(OPK+8,2)}, v{VO+1}, s[8:11], s31 offen offset:1024'])
        OF = 48; WR = 128; YA = 168
        def woread(f):
            r, off = dsaddr(WOL + 1024 * f)
            return ('i', f'ds_read_b128 {vr(WR+4*(f%10),4)}, v{r} offset:{off}', f'wr{f}')
        for k in range(10):
            A(f'v_lshlrev_b32 v{YA+2*k}, 16, v{XOLD+k}')
            A(f'v_and_b32 v{YA+2*k+1}, 0xffff0000, v{XOLD+k}')
        A(f'v_and_b32 v{T0}, 15, v0'); A(f'v_lshlrev_b32 v{T0}, 7, v{T0}')
        A(f's_lshr_b32 s32, s{S_RBY}, 1'); A('s_lshl_b32 s32, s32, 11'); A(f's_add_u32 s32, s32, {F2(L)}')
        A(f's_mul_i32 s33, s{S_RBY}, 20480'); A(f's_add_u32 s33, s33, {O(L)}')
        A.wait_vm()
        A('s_mov_b64 exec, 1')
        self.fstore([f'buffer_store_dword v{L16}, off, s[8:11], s30'])
        A('s_mov_b64 exec, -1')
        self.stamp('f2')
        for f in range(9): emit_items(A, [woread(f)])
        self.poll([f'buffer_load_dword v{T1}, v{T0}, s[8:11], s32 offen sc1'], [T1], None)
        self.stamp('e2')
        for kk in range(20):
            if kk % 4 == 0 and kk: A('s_add_u32 s33, s33, 4096')
            A(f'buffer_load_dwordx4 {vr(OF+4*kk,4)}, v{L16}, s[8:11], s33 offen offset:{1024*(kk%4)} sc1', tag=f'o{kk}')
        if final:
            A('s_mov_b32 s16, s78'); A('s_and_b32 s17, s79, 0xffff'); A(f's_mov_b32 s18, {2048*640*2}')
            A(f'v_and_b32 v{T0}, 15, v0'); A(f'v_mul_u32_u24 v{T0}, 1280, v{T0}'); A(f'v_lshrrev_b32 v{T1}, 4, v0')
            A(f'v_lshl_add_u32 v{VR[0]}, v{T1}, 4, v{T0}'); A(f'v_lshl_add_u32 v{VR[1]}, v{T1}, 3, v{T0}')
            A(f's_mul_i32 s30, s{S_RBY}, 20480'); A(f's_mul_i32 s31, s{S_CG}, 160'); A('s_add_u32 s30, s30, s31')
        else:
            if DBG[0] or L == 0: self.srd_x(L + 1)
            A(f's_bfe_u32 s30, s{S_RBY}, 0x20001'); A('s_mul_i32 s30, s30, 40960'); A(f's_mul_i32 s31, s{S_CG}, 5120')
            xa = [(VX, 0), (VX, 2048), (VX3, 0)]
            if T == 'B':
                A(f's_lshl_b32 s32, s{S_ROT}, 12'); A('s_sub_u32 s31, s31, s32'); A('s_add_u32 s32, s31, 40960'); A('s_min_u32 s31, s31, s32')
                A(f'v_add_u32 v{VR[0]}, s31, v{VX}'); A(f'v_add_u32 v{VR[1]}, 0x800, v{VR[0]}'); A(f'v_add_u32 v{VRL[0]}, s31, v{VX3}')
                xa = [(VR[0], 0), (VR[1], 0), (VRL[0], 0)]
                for r, _ in xa:
                    A(f'v_subrev_u32 v{T0}, 40960, v{r}'); A(f'v_min_u32 v{r}, v{r}, v{T0}')
            else: A('s_add_u32 s30, s30, s31')
            A(f's_lshl_b32 s31, s{S_RBY}, 10'); A(f's_lshl_b32 s32, s{S_CG}, 7'); A('s_add_u32 s31, s31, s32')
            A(f's_add_u32 s31, s31, {ST(L+1)}')
            A(f'v_lshlrev_b32 v{T0}, 3, v0')
        for kk in range(20):
            A.wait_vm(f'o{kk}')
            if kk == 0: self.stamp('o0_')
            for mt in range(5):
                f = 5 * kk + mt
                if f + 9 < 100: emit_items(A, [woread(f + 9)])
                A.wait_lg(f'wr{f}')
                A(f'v_mfma_f32_16x16x32_bf16 {vr(YA+4*mt,4)}, {vr(WR+4*(f%10),4)}, {vr(OF+4*kk,4)}, {vr(YA+4*mt,4)}')
        self.stamp('y')
        for k in range(10):
            A(f'v_cvt_pk_bf16_f32 v{XOLD+k}, v{YA+2*k}, v{YA+2*k+1}')
        if final:
            A(f'buffer_store_dwordx4 {vr(XOLD,4)}, v{VR[0]}, s[16:19], s30 offen')
            A(f'buffer_store_dwordx4 {vr(XOLD+4,4)}, v{VR[0]}, s[16:19], s30 offen offset:64')
            A(f'buffer_store_dwordx2 {vr(XOLD+8,2)}, v{VR[1]}, s[16:19], s30 offen offset:128')
            return
        self.fstore([f'buffer_store_dwordx4 {vr(XOLD,4)}, v{xa[0][0]}, s[12:15], s30 offen',
                     f'buffer_store_dwordx4 {vr(XOLD+4,4)}, v{xa[1][0]}, s[12:15], s30 offen offset:{xa[1][1]}',
                     f'buffer_store_dwordx2 {vr(XOLD+8,2)}, v{xa[2][0]}, s[12:15], s30 offen'])
        U = OF; a = OF + 20; b = OF + 22; c = OF + 24
        for k in range(10):
            A(f'v_lshlrev_b32 v{U+2*k}, 16, v{XOLD+k}')
            A(f'v_and_b32 v{U+2*k+1}, 0xffff0000, v{XOLD+k}')
        A(f'v_pk_add_f32 {vr(a,2)}, {vr(U,2)}, {vr(U+2,2)}')
        A(f'v_pk_add_f32 {vr(b,2)}, {vr(U+4,2)}, {vr(U+6,2)}')
        for k in range(4, 10, 2):
            A(f'v_pk_add_f32 {vr(a,2)}, {vr(a,2)}, {vr(U+2*k,2)}')
            A(f'v_pk_add_f32 {vr(b,2)}, {vr(b,2)}, {vr(U+2*k+2,2)}')
        A(f'v_pk_add_f32 {vr(a,2)}, {vr(a,2)}, {vr(b,2)}')
        def allsum(x, y):
            A(f'v_mov_b32 v{y}, v{x}')
            A(f'v_permlane16_swap_b32 v{x}, v{y}')
            A(f'v_add_f32 v{x}, v{x}, v{y}')
            A(f'v_mov_b32 v{y}, v{x}')
            A(f'v_permlane32_swap_b32 v{x}, v{y}')
            A(f'v_add_f32 v{x}, v{x}, v{y}')
        A(f'v_add_f32 v{a}, v{a}, v{a+1}')
        allsum(a, a + 1)
        A(f'v_mul_f32 v{a}, 0x3c4ccccd, v{a}')
        A(f'v_mul_f32 v{b}, -1.0, v{a}')
        A(f'v_mul_f32 v{b+1}, -1.0, v{a}')
        for k in range(10):
            A(f'v_pk_add_f32 {vr(U+2*k,2)}, {vr(U+2*k,2)}, {vr(b,2)}')
        A(f'v_pk_mul_f32 {vr(b,2)}, {vr(U,2)}, {vr(U,2)}')
        A(f'v_pk_mul_f32 {vr(c,2)}, {vr(U+2,2)}, {vr(U+2,2)}')
        for k in range(2, 10, 2):
            A(f'v_pk_fma_f32 {vr(b,2)}, {vr(U+2*k,2)}, {vr(U+2*k,2)}, {vr(b,2)}')
            A(f'v_pk_fma_f32 {vr(c,2)}, {vr(U+2*k+2,2)}, {vr(U+2*k+2,2)}, {vr(c,2)}')
        A(f'v_pk_add_f32 {vr(b,2)}, {vr(b,2)}, {vr(c,2)}')
        A(f'v_add_f32 v{a+1}, v{b}, v{b+1}')
        allsum(a + 1, b)
        A(f'v_mov_b32 v{VC+3}, 0x3f80')
        for k in range(4): A(f'v_mov_b32 v{SENT+k}, -1')
        A.wait_vm()
        A('s_mov_b64 exec, 0xffff')
        self.fstore([f'buffer_store_dwordx2 {vr(a,2)}, v{T0}, s[8:11], s31 offen'])
        A('s_mov_b64 exec, -1')
        self.stamp('xs')

    def gen(self):
        self.prologue()
        for L in range(self.nl): self.layer(L)
        A = self.A
        A.prof_end()
        A.label(f'{self.name}_END')
        A('s_endpgm')
        return A.text()

def make(path, prof=False, nl=4, dbg=False, sl=(0, 1, 2, 3), opt=None):
    import gen, json, emit
    DBG[0] = dbg
    p = P('pk', prof=1 if prof else None, nl=nl, stamp_layers=sl, opt=opt)
    ks = [('pk_kernel', p.gen(), 512, 256)]
    ls = [('pk_kernel', 256, P_LDS)]
    gen.build(ks, ls, path)
    if prof: json.dump(emit.PROF_NAMES, open(path + '.names', 'w'))
    print('nops', p.A.nops, 'lines', len(p.A.lines))

if __name__ == '__main__':
    import sys
    kw = eval('dict(' + (sys.argv[2] if len(sys.argv) > 2 else '') + ')')
    make(sys.argv[1], **kw)
```

```python
from emit import *
from lay2 import *
def emit_items(A, items):
    for it in items:
        if isinstance(it, str): A(it)
        elif it[0] == 'i': A(it[1], tag=it[2])
        elif it[0] == 'wvm': A.wait_vm(it[1])
        elif it[0] == 'wlg': A.wait_lg(it[1])
        elif it[0] == 'fn': it[1]()
        else: raise ValueError(it)

P_LDS = 163840
RS = 296
RB = 32 * RS
KREC = [0, RB]
def PQ(rb): return (2 + rb) * RB
WOL = 6 * RB
SC = 162816
LANE = 0; L16 = 1
VR = [2, 3]; VRL = [4, 5]; T0 = 6; T1 = 7
NM = 8; WCR = {'A': 12, 'B': 16}; XOLD = 20
DS1 = 30; DS2 = 31; REC0 = 32; REC = 33
TRA = {'B': [34, 35, 36], 'A': [37, 38]}; TRB0 = 39; TRB = 40
VSC = 41; VSTP = 42; VX = 43; VX3 = 44; VKA = {'A': 45, 'B': 46}; VPQ = 47
ACC = 48; RING = 80; TMP = 112; X1 = 132; X2 = 133; X3 = 134; X4 = 135; X5 = 136; X6 = 137
PK = 138; VC = 148; KFA = 152; KFB = 164; KC = 168; XL = 180; SENT = 184; STR = 112
S_RG = 20; S_HP = 21; S_BUD = 22; S_SAME = 23; S_EPS = 24; S_W2K = 25; S_XCC = 26
S_RBY = 27; S_CG = 28; S_W1K = 37
VKP = [188, 189, 190]
S_N = 80; S_M = 81; VXD = 244; VWD = 245
S_LO = 84; S_EP2 = 85; S_E = 86; S_EV = 88; S_ROT = 29
MW = 131072
STG = 132096; STG2 = STG + 10240; EV = 232; S0 = 0x1D10000
KR2 = WOL + 82 * 1024
BUDGET = 400000

def cost(it):
    if isinstance(it, str):
        if it.startswith(('v_exp', 'v_rcp', 'v_sqrt', 'v_rsq')): return 2
        if it.startswith('v_mfma'): return 4
        return 1
    if isinstance(it, list): return sum(cost(x) for x in it)
    return 1

def flat(items):
    out = []
    for it in items:
        if isinstance(it, list): out += flat(it)
        else: out.append(it)
    return out

def wreg(T, s):
    if T == 'A': return ar(4 * s, 4)
    return ar(160 + 4 * s, 4) if s < 24 else vr(192 + 4 * (s - 24), 4)

def dsaddr(off):
    return [L16, DS1, DS2][off >> 16], off & 0xffff

class P:
    def __init__(self, name, prof=None, nl=4, stamp_layers=(0, 1, 2, 3), opt=None):
        self.name = name; self.nl = nl; self.sl = stamp_layers
        self.A = Asm(); self.A.prof = prof
        self.nlab = 0
        self.opt = dict(FB=4, PRE=9, DMA_EVERY=3, YFB=1, MASK=1, WO1=100, W2=1, DCOST=2, RMIN=2.0, RX=1.1)
        if opt: self.opt.update(opt)
        self.L = 0
        self.wsc = ' sc1' if self.opt.get('WSC', 1) else ''
    def lab(self, s):
        self.nlab += 1
        return f'{self.name}_{s}{self.nlab}'
    def stamp(self, n):
        if self.L in self.sl and (n in self.opt['ST'] if 'ST' in self.opt else True): self.A.stamp(f'{n}{self.L}')
    def poll(self, loads, regs, tmp, sleep=0, pre=0):
        A = self.A
        lp, lg = self.lab('poll'), self.lab('go')
        A('s_nop 4')
        if pre: A(f's_sleep {pre}')
        if sleep:
            l1 = self.lab('p1')
            A(f's_branch {l1}')
            A.label(lp)
            A(f's_sleep {sleep}')
            A.label(l1)
        else:
            A.label(lp)
        for t in loads: A(t)
        A.wait_vm()
        r = list(regs)
        if len(r) == 1: m = r[0]
        else:
            m = tmp
            if len(r) == 2:
                A(f'v_max_u32 v{m}, v{r[0]}, v{r[1]}'); r = []
            else:
                A(f'v_max3_u32 v{m}, v{r[0]}, v{r[1]}, v{r[2]}'); r = r[3:]
            while len(r) >= 2:
                A(f'v_max3_u32 v{m}, v{m}, v{r[0]}, v{r[1]}'); r = r[2:]
            if r: A(f'v_max_u32 v{m}, v{m}, v{r[0]}')
        A(f'v_cmp_eq_u32 vcc, -1, v{m}')
        A(f's_sub_u32 s{S_BUD}, s{S_BUD}, 1')
        A(f's_cbranch_scc1 {lg}')
        if self.opt['MASK']: A('s_mov_b64 exec, vcc')
        A(f's_cbranch_vccnz {lp}')
        A.label(lg)
        if self.opt['MASK']: A('s_mov_b64 exec, -1')
        A(f's_max_i32 s{S_BUD}, s{S_BUD}, 0')
    def fstore(self, stores, tag=None):
        A = self.A
        ls, lj = self.lab('slow'), self.lab('join')
        A(f's_cmp_eq_u32 s{S_SAME}, 0')
        A(f's_cbranch_scc1 {ls}')
        n0 = len(A.lines)
        for t in stores: A(t, tag=tag)
        body = A.lines[n0:]
        A(f's_branch {lj}')
        A.label(ls)
        for ln in body:
            A.raw(ln + ' sc1' if 'buffer_store' in ln else ln)
        A.raw('    s_nop 0')
        A.label(lj)
    def srd_x(self, L):
        A = self.A
        A(f's_mul_i32 s30, s{S_RG}, 163840')
        A(f's_add_u32 s30, s30, {X(L)}')
        A('s_add_u32 s12, s4, s30')
        A('s_addc_u32 s13, s5, 0')
        A('s_and_b32 s13, s13, 0xffff')
    def srd_wo_items(self, T):
        return [f's_mul_i32 s30, s{S_CG}, 102400', f's_add_u32 s30, s30, {WOF[T] - WOL}',
                's_add_u32 s16, s4, s30', 's_addc_u32 s17, s5, 0', 's_and_b32 s17, s17, 0xffff']

    def ring(self, sg):
        sl = 32768 * (sg & 3)
        gs = []
        for t in range(4):
            gs.append([f's_add_u32 s101, s7, {15360*t}', f's_add_u32 m0, s100, {sl + 1024*t}',
                       ('i', f'buffer_load_dwordx4 v{VWD}, s[16:19], s101 offen lds', f'g{sg}')])
            gs.append([f's_add_u32 s101, s6, {40960*t}', f's_add_u32 m0, s{S_W1K}, {sl + 16384 + 4096*t}',
                       ('i', f'buffer_load_dwordx4 v{VXD}, s[12:15], s101 offen lds', f'g{sg}')])
        gs[-1] += [f's_cmp_eq_u32 s{S_ROT}, {9 - sg}', 's_cselect_b32 s101, -9, 1', 's_lshl_b32 s101, s101, 7', 's_add_u32 s6, s6, s101',
                   's_mul_i32 s101, s101, 1920', 's_add_u32 s7, s7, s101']
        return gs
    def prologue(self):
        A = self.A; o = self.opt
        nm = self.name
        A('s_load_dwordx2 s[4:5], s[0:1], 72')
        A('s_load_dwordx16 s[64:79], s[0:1], 0')
        A(f's_memrealtime s[{S_N}:{S_N+1}]')
        A('s_cmp_ge_u32 s2, 256')
        A(f's_cbranch_scc1 {nm}_END')
        A.stamp('rstart', real=True); A.stamp('start')
        if o.get('PFC', 0):
            n = o['PFC']
            A.raw('    s_getpc_b64 s[30:31]')
            A.label(f'{nm}_pcb')
            A('s_lshr_b32 s32, s2, 3'); A(f's_mul_i32 s32, s32, {4*n*64}')
            A('v_lshrrev_b32 v2, 6, v0'); A('v_and_b32 v1, 63, v0'); A(f'v_min_u32 v3, {n-1}, v1')
            A(f'v_mul_u32_u24 v4, {n}, v2'); A('v_add_lshl_u32 v3, v3, v4, 6'); A('v_add_u32 v3, s32, v3')
            A.raw(f'    v_min_u32 v3, {nm}_END-{nm}_pcb, v3')
            A('global_load_dword v246, v3, s[30:31]')
            A.vm = []
        A('v_lshrrev_b32 v2, 6, v0')
        A('v_and_b32 v0, 63, v0')
        A('v_readfirstlane_b32 s3, v2')
        A(f'v_lshlrev_b32 v{L16}, 4, v0')
        A('s_and_b32 s30, s2, 7')
        A('s_lshr_b32 s31, s2, 3')
        A(f's_lshl_b32 s{S_RG}, s30, 1')
        A('s_and_b32 s30, s31, 1')
        A(f's_add_u32 s{S_RG}, s{S_RG}, s30')
        A(f's_lshr_b32 s{S_HP}, s31, 1')
        A('s_mov_b32 s10, %d' % WS_SIZE); A('s_mov_b32 s11, 0x00020000')
        A(f's_lshl_b32 s83, s{S_RG}, 4'); A(f's_add_u32 s83, s83, s{S_HP}'); A('s_lshl_b32 s83, s83, 3')
        A('s_lshr_b32 s39, s83, 1'); A(f's_add_u32 s39, s39, {AR}')
        A(f's_lshr_b32 s{S_CG}, s{S_HP}, 1')
        A(f's_and_b32 s30, s{S_HP}, 1')
        A(f's_lshl_b32 s82, s{S_RG}, 1'); A('s_add_u32 s82, s82, s30')
        A('s_lshl_b32 s30, s30, 2')
        A(f's_lshl_b32 s{S_RBY}, s{S_RG}, 3')
        A(f's_add_u32 s{S_RBY}, s{S_RBY}, s30')
        A(f's_add_u32 s{S_RBY}, s{S_RBY}, s3')
        A(f's_lshl_b32 s{S_W2K}, s3, 11')
        A(f's_lshl_b32 s{S_W1K}, s3, 10')
        A(f's_mov_b32 s{S_BUD}, {BUDGET}')
        A(f's_mov_b32 s{S_EPS}, 0x358637bd')
        A(f's_getreg_b32 s{S_XCC}, hwreg(HW_REG_XCC_ID, 0, 16)')
        A('s_mov_b32 s14, 163840'); A('s_mov_b32 s15, 0x00020000')
        A('s_mov_b32 s19, 0x00020000'); A('s_mov_b32 s95, 0x00020000'); A('s_mov_b32 s99, 0x00020000'); A('s_mov_b32 s87, 0x00020000')
        A(f's_mov_b32 s98, {640*640*2}'); A(f's_mov_b32 s86, {32*400*2}')
        A(f's_mul_i32 s34, s{S_RG}, 163840')
        A(f's_mul_i32 s35, s{S_HP}, 80')
        A(f's_sub_u32 s18, {640*1920*2}, s35'); A('s_mov_b32 s94, s18')
        A('s_mul_i32 s6, s3, 10240'); A('s_mul_i32 s7, s3, 61440'); A('s_lshl_b32 s100, s3, 12')
        A(f's_lshr_b32 s32, s{S_RG}, 1'); A('s_sub_u32 s33, s32, 5'); A('s_min_u32 s32, s32, s33')
        A(f's_and_b32 s33, s{S_RG}, 1'); A('s_mul_i32 s33, s33, 5'); A(f's_add_u32 s{S_ROT}, s32, s33')
        A(f's_mul_i32 s32, s{S_ROT}, 245760'); A('s_add_u32 s7, s7, s32')
        A(f's_lshl_b32 s32, s{S_ROT}, 7'); A('s_add_u32 s6, s6, s32')
        A('s_lshl_b32 s38, s2, 2'); A('s_add_u32 s38, s38, s3')
        XS = 48; AX1 = 58; AX2 = 59; WP = 60; AP1 = 72; AP2 = 73; AOD = 74; PHI = 76; AOP = 84; AA = 100
        AOR = 104; AOS = 107; OD = 112; D0 = 192; PKB = 224
        G = 120; N_ = 121; SG = 122; G2 = 123; U1 = 124; U2 = 125; U3 = 126; U4 = 127
        A(f'v_lshrrev_b32 v{G}, 5, v0'); A(f'v_and_b32 v{N_}, 31, v0')
        A(f'v_mul_u32_u24 v{U1}, 1280, v{G}')
        A(f'v_lshl_add_u32 v{AX1}, v{N_}, 4, v{U1}'); A(f'v_lshl_add_u32 v{AX2}, v{N_}, 3, v{U1}')
        A(f'v_min_u32 v{U1}, 59, v0'); A(f'v_mul_u32_u24 v{U2}, 205, v{U1}'); A(f'v_lshrrev_b32 v{U2}, 10, v{U2}')
        A(f'v_mul_u32_u24 v{U2}, 1200, v{U2}'); A(f'v_lshl_add_u32 v{VWD}, v{U1}, 4, v{U2}')
        A('s_lshl_b32 s30, s3, 7')
        for j in range(2):
            A(f'v_add_u32 v{U1}, s30, v0')
            if j: A(f'v_add_u32 v{U1}, 64, v{U1}')
            A(f'v_min_u32 v{U1}, 399, v{U1}'); A(f'v_mul_u32_u24 v{U2}, 205, v{U1}'); A(f'v_lshrrev_b32 v{U2}, 11, v{U2}')
            A(f'v_mul_u32_u24 v{U2}, 1120, v{U2}'); A(f'v_lshl_add_u32 v{AOD+j}, v{U1}, 4, v{U2}')
        A(f'v_bfe_u32 v{U1}, v0, 3, 2'); A(f'v_and_b32 v{U2}, 3, v0'); A(f'v_lshl_add_u32 v{SG}, v{U1}, 2, v{U2}')
        A(f'v_bfe_u32 v{G2}, v0, 2, 1')
        A(f'v_mul_u32_u24 v{U1}, 20, v{G2}'); A(f'v_lshl_add_u32 v{U1}, v{SG}, 1, v{U1}')
        A(f'v_mov_b32 v{U3}, {OOB}'); A(f'v_cmp_gt_u32 vcc, 10, v{SG}'); A(f'v_cndmask_b32 v{U1}, v{U3}, v{U1}, vcc')
        A(f'v_mul_u32_u24 v{U2}, 320, v{G}'); A(f'v_add_u32 v{AP1}, v{U1}, v{U2}')
        A(f'v_cmp_gt_u32 vcc, 32, v0'); A(f'v_cndmask_b32 v{AP2}, v{U3}, v{U1}, vcc')
        A(f'v_lshrrev_b32 v{U1}, 3, v0'); A(f'v_and_b32 v{U2}, 6, v{U1}'); A(f'v_mul_u32_u24 v{U1}, 1280, v{U1}')
        A(f'v_and_b32 v{U3}, 7, v0'); A(f'v_xor_b32 v{U2}, v{U2}, v{U3}')
        A(f'v_lshl_add_u32 v{VXD}, v{U2}, 4, v{U1}')
        A('s_and_b32 s30, s3, 1'); A('s_lshl_b32 s30, s30, 4'); A(f'v_xor_b32 v{VXD}, s30, v{VXD}')
        A(f's_mul_i32 s30, s{S_HP}, 10240'); A('s_mul_i32 s31, s3, 2560'); A('s_add_u32 s30, s30, s31')
        A(f's_mul_i32 s31, s{S_HP}, 1600'); A('s_and_b32 s32, s3, 1'); A('s_mul_i32 s32, s32, 800'); A('s_add_u32 s31, s31, s32')
        A(f's_mul_i32 s32, s{S_RG}, {40*3840}')
        A('s_and_b32 s33, s82, 15'); A(f's_mul_i32 s33, s33, {40*1280}'); A(f's_mul_i32 s36, s{S_CG}, 160'); A('s_add_u32 s33, s33, s36')
        if o.get('FINE0'): self.stamp('a')
        A.wait_lg()
        if o.get('FINE0'): self.stamp('ka')
        A('s_mov_b32 s8, s4')
        A('s_and_b32 s9, s5, 0xffff')
        A('s_add_u32 s12, s64, s34')
        A('s_addc_u32 s13, s65, 0')
        A('s_and_b32 s13, s13, 0xffff')
        A(f'v_mov_b32 v2, s{S_N}')
        A('s_cmp_lg_u32 s3, 2')
        A(f's_cbranch_scc1 {nm}_noar')
        A('s_mov_b64 exec, 1')
        A('buffer_store_dword v2, off, s[8:11], s39 sc1')
        A('s_mov_b64 exec, -1')
        A.label(f'{nm}_noar')
        A.vm = []
        A(f'buffer_load_dwordx4 {vr(XS,4)}, v{AX1}, s[12:15], s30 offen', tag='xs')
        A(f'buffer_load_dwordx4 {vr(XS+4,4)}, v{AX1}, s[12:15], s30 offen offset:512', tag='xs')
        A(f'buffer_load_dwordx2 {vr(XS+8,2)}, v{AX2}, s[12:15], s30 offen offset:1024', tag='xs')
        if o.get('FINE0'): self.stamp('lx')
        A('s_add_u32 s92, s72, s35'); A('s_addc_u32 s93, s73, 0'); A('s_and_b32 s93, s93, 0xffff')
        A('s_add_u32 s16, s66, s35'); A('s_addc_u32 s17, s67, 0'); A('s_and_b32 s17, s17, 0xffff')
        A('s_cmp_ge_u32 s82, 16'); A('s_cselect_b32 s96, s76, s68'); A('s_cselect_b32 s97, s77, s69'); A('s_and_b32 s97, s97, 0xffff')
        A('s_mov_b32 s84, s74'); A('s_and_b32 s85, s75, 0xffff')
        for j in range(3):
            A(f's_add_u32 s34, s3, {4*j}')
            if j == 2: A('s_min_u32 s34, s34, 9')
            A('s_mul_i32 s35, s34, 15360'); A('s_add_u32 s35, s35, s32')
            A('s_lshl_b32 s34, s34, 10'); A(f's_add_u32 m0, s34, {STG}')
            A(f'buffer_load_dwordx4 v{VWD}, s[92:95], s35 offen lds', tag='pl')
        if o.get('FINE0'): self.stamp('lb')
        for j in range(2):
            A(f's_add_u32 m0, s{S_W2K}, {STG2 + 1024*j}')
            A(f'buffer_load_dwordx4 v{AOD+j}, s[96:99], s33 offen lds', tag='pl')
        if o.get('FINE0'): self.stamp('lo')
        for j in range(12):
            A(f'buffer_load_ushort v{WP+j}, v{AP1 if j < 8 else AP2}, s[84:87], s31 offen offset:{40*j if j < 8 else 320+40*j}', tag='wp')
        self.stamp('p1')
        E = 208
        sv = list(A.vm)
        A('s_cmp_lg_u32 s38, 2')
        A(f's_cbranch_scc1 {nm}_nm')
        A(f's_mov_b32 s30, {AR}'); A(f's_mov_b32 s31, {EC}'); A(f's_mov_b32 s32, {o.get("MR", 8)}')
        A(f'v_lshlrev_b32 v{E+12}, 5, v0')
        A(f's_sub_u32 s33, 1000, s{S_N}')
        for k in range(4): A(f'v_mov_b32 v{E+17+2*k}, s{S_N}')
        A.label(f'{nm}_ml0')
        A(f'buffer_load_dwordx4 {vr(E+8,4)}, v{L16}, s[8:11], s30 offen sc1')
        A.wait_vm()
        for k in range(4): A(f'v_mov_b32 v{E+16+2*k}, v{E+8+k}')
        A(f'buffer_store_dwordx4 {vr(E+16,4)}, v{E+12}, s[8:11], s31 offen sc1')
        A(f'buffer_store_dwordx4 {vr(E+20,4)}, v{E+12}, s[8:11], s31 offen offset:16 sc1')
        for k in range(4): A(f'v_add_u32 v{E+8+k}, s33, v{E+8+k}')
        A(f'v_max3_u32 v{E+8}, v{E+8}, v{E+9}, v{E+10}'); A(f'v_max_u32 v{E+8}, v{E+8}, v{E+11}')
        A(f'v_cmp_lt_u32 vcc, 0xfa0, v{E+8}')
        A('s_sub_u32 s32, s32, 1')
        A(f's_cbranch_scc1 {nm}_nm')
        A('s_nop 4')
        A(f's_cbranch_vccnz {nm}_ml0')
        A.label(f'{nm}_nm'); A.vm = sv
        A('s_nop 4')
        dq = self.ring(0) + self.ring(1) + self.ring(2)
        def mix(items, every, n=None):
            k = 0
            for it in flat(items):
                emit_items(A, [it]); k += 1
                if k % every == 0 and dq and (n is None or n > 0) and not (isinstance(it, str) and it.startswith(('s_', 'v_cmp'))):
                    emit_items(A, dq.pop(0))
                    if n is not None: n -= 1
                elif k % every == 0: k -= 1
        for _ in range(o.get('R0', 8)): emit_items(A, dq.pop(0))
        if o.get('FINE0'): self.stamp('r0')
        for k in range(4): A(f'v_mov_b32 v{SENT+k}, -1')
        for g in self.clears(-1): emit_items(A, flat(g))
        self.stamp('p2')
        it = []
        a = it.append
        a('s_cmp_lt_u32 s3, 2'); a('s_cselect_b32 s30, 6, 4'); a('s_cselect_b32 s32, 6, 4')
        a(f'v_mul_u32_u24 v{U1}, s30, v{G2}'); a(f'v_add_u32 v{U1}, v{U1}, v{SG}'); a(f'v_lshl_add_u32 v{U2}, v{G}, 3, 6'); a(f'v_sub_u32 v{U1}, v{U1}, v{U2}')
        a(f'v_subrev_u32 v{U2}, 10, v{SG}'); a(f'v_cmp_gt_u32 vcc, s32, v{U2}'); a(f'v_cndmask_b32 v{U1}, 64, v{U1}, vcc')
        a(f'v_and_b32 v{U2}, 1, v{U1}'); a(f'v_lshlrev_b32 v{U2}, 4, v{U2}'); a(f'v_mov_b32 v{U3}, 0x3f80'); a(f'v_lshlrev_b32 v{U2}, v{U2}, v{U3}')
        a(f'v_lshrrev_b32 v{U1}, 1, v{U1}')
        for r in range(4):
            a(f'v_cmp_eq_u32 vcc, {r}, v{U1}'); a(f'v_cndmask_b32 v{PHI+4+r}, 0, v{U2}, vcc')
        a(f'v_bfe_u32 v{U1}, v0, 4, 1'); a(f'v_lshl_add_u32 v{U1}, v{U1}, 1, v{G2}'); a(f'v_bfe_u32 v{U2}, v0, 3, 1'); a(f'v_lshl_add_u32 v{U1}, v{U1}, 1, v{U2}')
        a(f'v_and_b32 v{U2}, 3, v0'); a(f'v_mul_u32_u24 v{U2}, 240, v{U2}'); a(f'v_lshl_add_u32 v{U1}, v{U1}, 10, v{U2}')
        a(f'v_lshl_add_u32 v{U2}, v{G}, 4, v{U1}')
        a('s_and_b32 s33, s3, 1'); a('s_mul_i32 s33, s33, 40'); a(f's_add_u32 s33, s33, {STG}')
        a('s_cmp_lt_u32 s3, 2'); a('s_cselect_b32 s30, 80, 0'); a('s_cselect_b32 s32, 0, 24'); a('s_add_u32 s32, s32, 160')
        a('s_add_u32 s30, s30, s33'); a('s_add_u32 s32, s32, s33')
        a(f'v_add_u32 v{AA}, s30, v{U2}'); a(f'v_add_u32 v{AA+2}, s32, v{U2}')
        a(f'v_add_u32 v{U3}, 32, v{AA}'); a(f'v_subrev_u32 v{U4}, 8, v{AA+2}')
        a(f'v_cmp_gt_u32 vcc, 32, v0'); a(f'v_cndmask_b32 v{AA+1}, v{U4}, v{U3}, vcc')
        G4 = G; R_ = N_; X_ = SG
        a(f'v_lshrrev_b32 v{G4}, 4, v0'); a(f'v_bfe_u32 v{R_}, v0, 2, 2'); a(f'v_and_b32 v{X_}, 3, v0')
        a(f'v_mul_u32_u24 v{U1}, 10, v{G4}'); a(f'v_add_u32 v{U1}, v{U1}, v{R_}'); a(f'v_mul_u32_u24 v{U1}, 160, v{U1}')
        a('s_and_b32 s30, s3, 1'); a('s_lshl_b32 s30, s30, 3'); a('s_lshr_b32 s32, s3, 1'); a('s_lshl_b32 s32, s32, 6'); a('s_add_u32 s30, s30, s32')
        a(f's_add_u32 s30, s30, {STG2}')
        a(f'v_lshl_add_u32 v{U2}, v{X_}, 4, s30'); a(f'v_add_u32 v{AOR}, v{U1}, v{U2}')
        a(f'v_bfe_u32 v{U2}, v0, 3, 1'); a(f'v_mul_u32_u24 v{U2}, 18, v{U2}'); a(f'v_add3_u32 v{U2}, v{U2}, v{R_}, 8'); a(f'v_mul_u32_u24 v{U2}, 160, v{U2}')
        a('s_cmp_eq_u32 s3, 1'); a('s_cselect_b64 vcc, -1, 0'); a('s_movk_i32 s32, 1600'); a('s_cselect_b32 s32, 640, s32')
        a(f'v_cndmask_b32 v{U1}, v{U2}, v{U1}, vcc')
        a(f'v_cndmask_b32 v{G2}, 4, v{G4}, vcc')
        a(f'v_and_b32 v{U2}, 1, v{G4}'); a(f'v_lshlrev_b32 v{U2}, 3, v{U2}'); a(f'v_lshl_add_u32 v{U2}, v{X_}, 4, v{U2}')
        a(f'v_lshrrev_b32 v{U3}, 1, v{G4}'); a(f'v_lshl_add_u32 v{U2}, v{U3}, 6, v{U2}')
        a(f'v_lshlrev_b32 v{U3}, 3, v{X_}'); a(f'v_add_u32 v{U3}, 0x80, v{U3}')
        a('s_cmp_eq_u32 s3, 0'); a('s_cselect_b64 vcc, -1, 0')
        a(f'v_cndmask_b32 v{U2}, v{U3}, v{U2}, vcc')
        a(f'v_cndmask_b32 v{U4}, 4, v{G4}, vcc')
        a(f's_mov_b32 s30, {STG2}'); a(f'v_add3_u32 v{AOR+1}, v{U1}, v{U2}, s30'); a(f'v_add_u32 v{AOR+2}, s32, v{AOR+1}')
        a('s_and_b32 s30, s82, 15'); a('s_mul_i32 s30, s30, 5')
        a(f'v_and_b32 v{U3}, 0xf0, v{L16}')
        for rd, (jj, mt) in enumerate(((G4, 's3'), (G2, f'v{U4}'))):
            a(f'v_add_u32 v{U1}, s30, v{jj}'); a(f'v_lshrrev_b32 v{U2}, 2, v{U1}'); a(f'v_and_b32 v{U1}, 3, v{U1}')
            a(f'v_mul_u32_u24 v{U2}, 5, v{U2}'); a(f'v_add_u32 v{U2}, {mt}, v{U2}')
            a(f'v_lshl_add_u32 v{U1}, v{U1}, 8, v{U3}'); a(f'v_lshl_add_u32 v{AOS+rd}, v{U2}, 10, v{U1}')
        it += self.setup0() + self.setup_addr() + self.rec_toggle('A')
        mix(it, o.get('M1', 20), o.get('R1', 8))
        self.stamp('p3')
        it = [('wvm', 'xs')]
        a = it.append
        for k in range(4): a(f'v_mov_b32 v{U1+k}, 0')
        for k in range(10):
            a(f'v_dot2c_f32_bf16 v{U1+(k&1)}, 0x3f803f80, v{XS+k}'); a(f'v_dot2c_f32_bf16 v{U3+(k&1)}, v{XS+k}, v{XS+k}')
        a(f'v_add_f32 v{X2}, v{U1}, v{U2}'); a(f'v_add_f32 v{X3}, v{U3}, v{U4}')
        for d in ('quad_perm:[1,0,3,2]', 'quad_perm:[2,3,0,1]', 'row_half_mirror', 'row_mirror'):
            for x in (X2, X3): a(f'v_add_f32_dpp v{x}, v{x}, v{x} {d} row_mask:0xf bank_mask:0xf')
        a(f'v_mov_b32 v{X1}, v{X2}'); a(f'v_mov_b32 v{X4}, v{X3}')
        a(f'v_permlane16_swap_b32 v{X1}, v{X2}'); a(f'v_permlane16_swap_b32 v{X3}, v{X4}')
        a(f'v_add_f32 v{X2}, v{X1}, v{X2}')
        a(f'v_add_f32 v{X3}, v{X3}, v{X4}')
        a(f'v_mul_f32 v{X1}, 0x3acccccd, v{X2}')
        a(f'v_fma_f32 v{X3}, -v{X1}, v{X2}, v{X3}')
        a(f'v_max_f32 v{X3}, 0, v{X3}')
        a(f'v_cvt_pk_bf16_f32 v{X5}, -v{X1}, -v{X1}')
        st = self.stats_items()
        it += st[st.index(f'v_mul_f32 v{X3}, 0x3acccccd, v{X3}'):-1]
        a(f'v_lshrrev_b32 v{X1}, 2, v0')
        a([f's_lshl_b32 s30, s83, 3', 's_lshl_b32 s32, s3, 4', 's_add_u32 s30, s30, s32', f's_add_u32 s30, s30, {S0}',
           's_mov_b32 exec_lo, 1', 's_mov_b32 exec_hi, 1'])
        a(('i', f'buffer_store_dwordx2 v[{X5}:{X6}], v{X1}, s[8:11], s30 offen sc1', 'pst'))
        emit_items(A, flat(it)); A('s_mov_b64 exec, -1')
        A.wait_vm('wp')
        self.stamp('p4')
        A('s_barrier')
        it = []
        a = it.append
        for mb in range(2):
            a(('i', f'ds_read_b64 {vr(AOP+8*mb,2)}, v{AA} offset:{8192*mb}', f'pa{mb}'))
            a(('i', f'ds_read_b64 {vr(AOP+8*mb+2,2)}, v{AA} offset:{8192*mb+8}', f'pa{mb}'))
            a(('i', f'ds_read_b64 {vr(AOP+8*mb+4,2)}, v{AA+1} offset:{8192*mb}', f'pa{mb}'))
            a(('i', f'ds_read_b64 {vr(AOP+8*mb+6,2)}, v{AA+2} offset:{8192*mb}', f'pa{mb}'))
        a(('i', f'ds_read_b64_tr_b16 {vr(OD,2)}, v{AOR}', 'po'))
        a(('i', f'ds_read_b64_tr_b16 {vr(OD+2,2)}, v{AOR} offset:640', 'po'))
        a(('i', f'ds_read_b64_tr_b16 {vr(OD+4,2)}, v{AOR+1}', 'po'))
        a(('i', f'ds_read_b64_tr_b16 {vr(OD+6,2)}, v{AOR+2}', 'po'))
        for k in range(4): a(f'v_lshl_or_b32 v{PHI+k}, v{WP+2*k+1}, 16, v{WP+2*k}')
        for k in range(2):
            a(f'v_lshl_or_b32 v{WP+8+2*k}, v{WP+9+2*k}, 16, v{WP+8+2*k}'); a(f'v_or_b32 v{PHI+4+k}, v{PHI+4+k}, v{WP+8+2*k}')
        a(f's_lshl_b32 s90, s{S_HP}, 2'); a('s_add_u32 s90, s90, s3'); a('s_mul_i32 s90, s90, 40960')
        a(f's_mul_i32 s34, s{S_RG}, 2560'); a('s_add_u32 s34, s34, s90'); a(f's_add_u32 s34, s34, {WF["B"]}')
        a('s_lshr_b32 s35, s82, 4'); a(f's_mul_i32 s35, s35, {WOF["B"]-WOF["A"]}'); a(f's_mul_i32 s30, s{S_CG}, 102400'); a('s_add_u32 s35, s35, s30')
        a(f's_add_u32 s35, s35, {WOF["A"]}')
        for mb in range(2):
            a(('wlg', f'pa{mb}'))
            for u in range(2):
                a(f'v_mfma_f32_32x32x16_bf16 {vr(D0+16*mb,16)}, {vr(AOP+8*mb+4*u,4)}, {vr(PHI+4*u,4)}, {"0" if u == 0 else vr(D0+16*mb,16)}')
        a(('wlg', 'po'))
        a(('i', f'buffer_store_dwordx4 {vr(OD,4)}, v{AOS}, s[8:11], s35 offen sc1', 'pst'))
        a(('i', f'buffer_store_dwordx4 {vr(OD+4,4)}, v{AOS+1}, s[8:11], s35 offen sc1', 'pst'))
        for x in range(12):
            a(f'v_cvt_pk_bf16_f32 v{PKB+x}, v{D0+2*x}, v{D0+2*x+1}')
            if x == 3: a(('i', f'buffer_store_dwordx4 {vr(PKB,4)}, v{L16}, s[8:11], s34 offen sc1', 'pst'))
            if x == 7: a(('i', f'buffer_store_dwordx4 {vr(PKB+4,4)}, v{L16}, s[8:11], s34 offen offset:1024 sc1', 'pst'))
        emit_items(A, it)
        A('s_mov_b32 exec_hi, 0')
        A(f'buffer_store_dwordx4 {vr(PKB+8,4)}, v{L16}, s[8:11], s34 offen offset:2048 sc1', tag='pst')
        A('s_mov_b64 exec, -1')
        A(f's_add_u32 s39, s83, {EC}')
        A(f'buffer_load_dwordx2 {vr(EV,2)}, off, s[8:11], s39 sc1', tag='ec')
        self.stamp('pc')
        it = self.xa_items(TMP)
        a = it.append
        a('s_bitcmp1_b32 s3, 0')
        a(f's_cselect_b32 s{S_LO}, 0xff800000, 0'); a(f's_cselect_b32 s{S_EP2}, 0, s{S_EPS}'); a(f's_cselect_b32 s{S_E}, 0, 1.0')
        a(f's_cselect_b64 s[{S_EV}:{S_EV+1}], 0, -1')
        WA = TMP + 4
        tb = [[10, 11, 12, 20], [13, 14, 22, 21], [0, 1, 2, 23], [3, 4, 24, 24]]
        tb = [sum(x << (8 * k) for k, x in enumerate(t)) for t in tb]
        a(f's_mov_b32 s30, {tb[1]}'); a(f's_mov_b32 s33, {tb[0]}'); a('s_cselect_b32 s30, s30, s33')
        a(f's_mov_b32 s33, {tb[3]}'); a(f's_mov_b32 s32, {tb[2]}'); a('s_cselect_b32 s33, s33, s32')
        a('s_bitcmp1_b32 s3, 1'); a('s_cselect_b32 s30, s33, s30')
        a(f'v_bfe_u32 v{X1}, v0, 4, 1'); a(f'v_bfe_u32 v{X2}, v0, 1, 1'); a(f'v_lshl_add_u32 v{X1}, v{X1}, 1, v{X2}')
        a(f'v_lshlrev_b32 v{X1}, 3, v{X1}'); a(f'v_lshrrev_b32 v{X1}, v{X1}, s30'); a(f'v_and_b32 v{X1}, 31, v{X1}')
        a(f'v_and_b32 v{X2}, 1, v0'); a(f'v_mul_u32_u24 v{X2}, 5, v{X2}')
        a(f'v_bfe_u32 v{X3}, v0, 2, 2'); a(f'v_mul_u32_u24 v{X3}, 30, v{X3}')
        a(f'v_add3_u32 v{X1}, v{X1}, v{X2}, v{X3}')
        a(f'v_lshrrev_b32 v{X2}, 5, v0'); a(f'v_lshlrev_b32 v{X2}, 11, v{X2}')
        a(f'v_lshl_add_u32 v{WA}, v{X1}, 3, v{X2}')
        a(f's_add_u32 s36, s83, {FL}')
        a(f'v_mov_b32 v{EV+3}, s{S_XCC}')
        a(f'v_mov_b32 v{EV+4}, {MW}')
        it += self.onesel(NM)
        emit_items(A, it)
        self.dq = dq
    def onesel(self, d):
        return [f'v_lshrrev_b32 v{X1}, 2, v0', f'v_xor_b32 v{X1}, v{X1}, v0', f'v_and_b32 v{X1}, 4, v{X1}', f'v_cmp_eq_u32 vcc, 0, v{X1}',
                f'v_mov_b32 v{X1}, 0x3f803f80'] + [f'v_cndmask_b32 v{d+k}, 0, v{X1}, vcc' for k in range(4)]
    def flag(self):
        A = self.A; nm = self.name
        A('s_cmp_lg_u32 s3, 2')
        A(f's_cbranch_scc1 {nm}_go')
        sv = list(A.vm); sl = list(A.lg)
        A(f'v_mov_b32 v{EV+2}, s{S_N}')
        A('s_cmp_eq_u32 s38, 2')
        A(f's_cbranch_scc1 {nm}_ex')
        A(f's_branch {nm}_e1')
        A.label(f'{nm}_ec')
        A(f'buffer_load_dwordx2 {vr(EV,2)}, off, s[8:11], s39 sc1')
        A.wait_vm()
        A.label(f'{nm}_e1')
        A(f'v_readfirstlane_b32 s33, v{EV}')
        A(f'v_mov_b32 v{EV+2}, v{EV+1}')
        A(f's_sub_u32 s{S_BUD}, s{S_BUD}, 1')
        A(f's_cbranch_scc1 {nm}_ex')
        A(f's_cmp_lg_u32 s33, s{S_N}')
        A(f's_cbranch_scc1 {nm}_ec')
        A.label(f'{nm}_ex')
        A(f's_max_i32 s{S_BUD}, s{S_BUD}, 0')
        A('s_mov_b64 exec, 1')
        A(f'buffer_store_dwordx2 {vr(EV+2,2)}, off, s[8:11], s36 sc1')
        A(f'ds_write_b32 v{EV+4}, v{EV+2}')
        A('s_mov_b64 exec, -1')
        A.label(f'{nm}_go')
        A.vm = sv; A.lg = sl
        A('s_nop 4')
    def touch(self, d0=XL, va=X1, lane=0):
        it = [f'v_min_u32 v{va}, 19, v{lane}', f'v_lshlrev_b32 v{va}, 7, v{va}',
              f's_mul_i32 s30, s{S_RG}, 163840', f's_mul_i32 s31, s{S_HP}, 10240', 's_add_u32 s30, s30, s31', 's_mul_i32 s31, s3, 2560',
              's_add_u32 s30, s30, s31', f's_add_u32 s31, s30, {O(0)}', f's_add_u32 s30, s30, {X(1)}',
              ('i', f'buffer_load_dword v{d0}, v{va}, s[8:11], s31 offen', 'pt'),
              ('i', f'buffer_load_dword v{d0+1}, v{va}, s[8:11], s30 offen', 'pt')]
        return it
    def xa_items(self, dst):
        return [f'v_and_b32 v{X1}, 31, v0', f'v_lshlrev_b32 v{X1}, 7, v{X1}',
                f'v_and_b32 v{X2}, 6, v0', f'v_bfe_u32 v{X3}, v0, 3, 1', f'v_lshrrev_b32 v{X4}, 5, v0',
                f'v_xor_b32 v{X2}, v{X2}, v{X3}', f'v_xor_b32 v{X2}, v{X2}, v{X4}',
                f'v_lshl_add_u32 v{dst}, v{X2}, 4, v{X1}'] + [f'v_xor_b32 v{dst+j}, {32*j}, v{dst}' for j in (1, 2, 3)]
    def setup0(self):
        it = []
        a = it.append
        a(f'v_bfe_u32 v{T0}, v0, 4, 1')
        a(f'v_lshrrev_b32 v{T1}, 5, v0')
        a(f'v_lshlrev_b32 v{T0}, 10, v{T0}')
        a(f'v_lshl_add_u32 v{T0}, v{T1}, 9, v{T0}')
        a(f'v_and_b32 v{T1}, 15, v0')
        a(f'v_lshl_add_u32 v{VSTP}, v{T1}, 3, v{T0}')
        a('s_and_b32 s30, s3, 1')
        a('s_lshl_b32 s30, s30, 8')
        a(f'v_lshlrev_b32 v{T1}, 4, v{T1}')
        a(f'v_add_u32 v{T1}, s30, v{T1}')
        a(f'v_lshrrev_b32 v{T0}, 4, v0')
        a(f'v_lshl_add_u32 v{VX}, v{T0}, 9, v{T1}')
        a(f'v_lshrrev_b32 v2, 5, v0')
        a(f'v_lshl_add_u32 v{T1}, v2, 9, v{T1}')
        a(f'v_and_b32 v{T0}, 1, v{T0}')
        a(f'v_lshl_add_u32 v{T1}, v{T0}, 3, v{T1}')
        a(f'v_add_u32 v{VX3}, 0x1000, v{T1}')
        return it

    def setup_addr(self):
        it = []
        a = it.append
        a(f'v_add_u32 v{DS1}, 0x10000, v{L16}')
        a(f'v_add_u32 v{DS2}, 0x20000, v{L16}')
        a(f'v_and_b32 v{T0}, 31, v0')
        a(f'v_lshrrev_b32 v{T1}, 5, v0')
        a(f'v_lshlrev_b32 v{VSC}, 3, v{T0}')
        a(f'v_add_u32 v{VSC}, {SC}, v{VSC}')
        a(f'v_mul_u32_u24 v{T0}, {RS}, v{T0}')
        a(f'v_lshl_add_u32 v{T0}, v{T1}, 6, v{T0}')
        a('s_and_b32 s30, s3, 1')
        a('s_lshl_b32 s30, s30, 7')
        a(f'v_add_u32 v{REC0}, s30, v{T0}')
        a(f's_mul_i32 s30, s3, {RB}')
        a(f's_add_u32 s30, s30, {PQ(0)}')
        a(f'v_add_u32 v{VPQ}, s30, v{T0}')
        a(f'v_lshrrev_b32 v{T0}, 2, v0')
        a(f'v_mul_u32_u24 v{T0}, {RS}, v{T0}')
        a('s_lshr_b32 s30, s3, 1')
        a('s_lshl_b32 s30, s30, 7')
        a(f'v_add_u32 v{T0}, s30, v{T0}')
        a(f'v_and_b32 v{T1}, 3, v0')
        for T, nch in (('B', 5), ('A', 3)):
            for mt, r in enumerate(TRA[T]):
                a(f'v_add_u32 v{X1}, {4*mt}, v{T1}')
                a(f'v_min_u32 v{X1}, {2*nch-1}, v{X1}')
                a(f'v_cmp_le_u32 vcc, {nch}, v{X1}')
                a(f'v_cndmask_b32 v{X2}, 0, {64-8*nch}, vcc')
                a(f'v_lshl_add_u32 v{X1}, v{X1}, 3, v{X2}')
                a(f'v_add_u32 v{r}, v{X1}, v{T0}')
        a(f'v_lshrrev_b32 v{X1}, 1, v{T1}')
        a(f'v_and_b32 v{X2}, 1, v{T1}')
        a(f'v_lshlrev_b32 v{X1}, 6, v{X1}')
        a(f'v_lshl_add_u32 v{X1}, v{X2}, 3, v{X1}')
        a(f'v_lshlrev_b32 v{X2}, 6, v{X2}')
        a('s_bitcmp1_b32 s3, 0')
        a('s_cselect_b64 vcc, -1, 0')
        a(f'v_cndmask_b32 v{X1}, v{X1}, v{X2}, vcc')
        a(f'v_add3_u32 v{TRB0}, v{X1}, v{T0}, 48')
        a(f'v_bfe_u32 v{X1}, v0, 3, 2')
        a(f'v_and_b32 v{X2}, 3, v0')
        a(f'v_lshl_add_u32 v{X1}, v{X1}, 2, v{X2}')
        a(f'v_bfe_u32 v{X2}, v0, 2, 1')
        a(f'v_mul_u32_u24 v{X2}, 10, v{X2}')
        a(f'v_add_u32 v{X2}, v{X2}, v{X1}')
        a(f'v_cmp_gt_u32 s[30:31], 10, v{X1}')
        a(f'v_lshrrev_b32 v{X1}, 5, v0')
        for T in 'BA':
            if T == 'B':
                a(f'v_cmp_le_u32 vcc, 6, v{X2}')
                a(f'v_cndmask_b32 v{X3}, 0, 2, vcc')
                a(f'v_cmp_le_u32 vcc, 12, v{X2}')
                a(f'v_cndmask_b32 v{X4}, 0, 2, vcc')
                a(f'v_add3_u32 v{X3}, v{X2}, v{X3}, v{X4}')
                a(f'v_cndmask_b32 v{X3}, 6, v{X3}, s[30:31]')
            else:
                a(f'v_cmp_le_u32 vcc, 4, v{X2}')
                a(f'v_cndmask_b32 v{X3}, 0, 4, vcc')
                a(f'v_add_u32 v{X3}, v{X2}, v{X3}')
                a(f'v_cndmask_b32 v{X3}, 4, v{X3}, s[30:31]')
            a(f'v_lshrrev_b32 v{X4}, 3, v{X3}')
            a(f'v_lshl_add_u32 v{X4}, v{X4}, 1, v{X1}')
            a(f'v_and_b32 v{X3}, 7, v{X3}')
            a(f'v_mul_u32_u24 v{X4}, {0xc0 if T == "A" else 0x140}, v{X4}')
            a(f'v_lshl_add_u32 v{VKA[T]}, v{X3}, 3, v{X4}')
        for k in range(4): a(f'v_mov_b32 v{SENT+k}, -1')
        a(f'v_mov_b32 v{VC+3}, 0x3f80')
        return it

    def stats_items(self):
        S = STR
        return [
        f'v_add_f32 v{X1}, v{S}, v{S+2}', f'v_add_f32 v{X2}, v{S+4}, v{S+6}',
        f'v_add_f32 v{X1}, v{X1}, v{X2}', f'v_mov_b32 v{X2}, v{X1}',
        f'v_add_f32 v{X3}, v{S+1}, v{S+3}',
        f'v_add_f32 v{X4}, v{S+5}, v{S+7}',
        f'v_permlane32_swap_b32 v{X1}, v{X2}',
        f'v_add_f32 v{X3}, v{X3}, v{X4}',
        f'v_add_f32 v{X1}, v{X1}, v{X2}',
        f'v_mul_f32 v{X1}, 0.125, v{X1}',
        f'v_sub_f32 v{S}, v{S}, v{X1}', f'v_sub_f32 v{S+2}, v{S+2}, v{X1}',
        f'v_sub_f32 v{S+4}, v{S+4}, v{X1}', f'v_sub_f32 v{S+6}, v{S+6}, v{X1}',
        f'v_mul_f32 v{X2}, v{S}, v{S}', f'v_fmac_f32 v{X2}, v{S+2}, v{S+2}',
        f'v_fmac_f32 v{X2}, v{S+4}, v{S+4}', f'v_fmac_f32 v{X2}, v{S+6}, v{S+6}',
        f'v_fmac_f32 v{X3}, 0x42a00000, v{X2}',
        f'v_mov_b32 v{X4}, v{X3}',
        f'v_cvt_pk_bf16_f32 v{X5}, -v{X1}, -v{X1}',
        f's_lshl_b32 s30, s3, 8',
        f'v_permlane32_swap_b32 v{X3}, v{X4}',
        f'v_add_u32 v{X1}, s30, v{VSC}',
        f'v_add_f32 v{X3}, v{X3}, v{X4}',
        f'v_mul_f32 v{X3}, 0x3acccccd, v{X3}',
        f'v_cvt_pk_bf16_f32 v{X3}, v{X3}, v{X3}',
        f'v_lshlrev_b32 v{X3}, 16, v{X3}',
        f'v_add_f32 v{X3}, 0x3727c5ac, v{X3}',
        f'v_cvt_pk_bf16_f32 v{X3}, v{X3}, v{X3}',
        f'v_lshlrev_b32 v{X3}, 16, v{X3}',
        f'v_sqrt_f32 v{X3}, v{X3}',
        f'v_cvt_pk_bf16_f32 v{X3}, v{X3}, v{X3}',
        f'v_lshlrev_b32 v{X3}, 16, v{X3}',
        f'v_rcp_f32 v{X6}, v{X3}',
        f'v_and_b32 v{X6}, 0xffffff7f, v{X6}',
        ('i', f'ds_write_b64 v{X1}, v[{X5}:{X6}]', 'sc')]
    def st_loads(self, L):
        return [f'buffer_load_dwordx2 {vr(STR+2*c,2)}, v{VSTP}, s[8:11], s31 offen offset:{128*c} sc1' for c in range(4)]
    def st_soff(self, L):
        return [f's_lshl_b32 s31, s{S_RG}, 13', f's_add_u32 s31, s31, s{S_W2K}', f's_add_u32 s31, s31, {ST(L)}']
    def xchunk(self, c):
        it = [f's_add_u32 m0, s{S_W1K}, {4096*c}']
        if c == 39: it.append(f's_min_u32 m0, m0, {158*1024}')
        it += [('i', f'buffer_load_dwordx4 v{L16}, s[12:15], m0 offen sc1 lds', f'x{c}')]
        if c == 39:
            it += [f's_mov_b32 s30, {159*1024}',
                   ('i', f'buffer_load_dwordx4 {vr(XL,4)}, v{L16}, s[12:15], s30 offen sc1', f'x{c}')]
        return it
    def wloads(self, T, s0, n):
        it = [f's_add_u32 s30, s90, {WF[T] + 1024*s0}']
        for k in range(n):
            it.append(('i', f'buffer_load_dwordx4 {wreg(T, s0+k)}, v{L16}, s[8:11], s30 offen offset:{1024*k}{self.wsc}', f'w{T}{s0}'))
        return it
    def wo_dma(self, f0, f1):
        gs = []
        f = f0
        while f < f1:
            it = [f's_add_u32 m0, s{S_W1K}, {WOL + 1024*f}']
            if f + 4 > f1: it.append(f's_min_u32 m0, m0, {WOL + 1024*(f1-1)}')
            it += [('i', f'buffer_load_dwordx4 v{L16}, s[16:19], m0 offen{self.wsc} lds', 'wo')]
            gs.append(it); f += 4
        return gs
    def rec_toggle(self, T):
        return [f'v_lshrrev_b32 v{X2}, 5, v0', 's_and_b32 s30, s3, 1',
                f'v_subrev_u32 v{X2}, s30, v{X2}' if T == 'A' else f'v_sub_u32 v{X2}, s30, v{X2}',
                f'v_lshl_add_u32 v{REC0}, v{X2}, 6, v{REC0}']
    def scread(self, rb):
        b = rb & 1
        return [('i', f'ds_read_b64 {vr(NM+2*b,2)}, v{VSC} offset:{256*rb}', 'scr'), ('wlg', 'scr'),
                f'v_mul_f32 v{VRL[b]}, 0x3fb8aa3b, v{NM+2*b+1}']
    def epilogue(self, T, rb, ac=None, kadd=0, pk=False, R=None, addr=True):
        b = rb & 1
        if ac is None: ac = ACC + 16 * b
        if R is None: R = NM + 2 * b + 1
        RL = VRL[b]
        it = []
        a = it.append
        def bc(r, p='v'): return f'{p}[{r & ~1}:{(r & ~1) + 1}]', r & 1
        def pk2(op, d, x, y, p='v'):
            y_, h = bc(y, p); a(f'v_pk_{op}_f32 {vr(d,2)}, {vr(x,2)}, {y_} op_sel:[0,{h}] op_sel_hi:[1,{h}]')
        def pk3(d, x, y, z, neg=False, pz='v'):
            y_, h = bc(y); z_, g = bc(z, pz)
            a(f'v_pk_fma_f32 {vr(d,2)}, {vr(x,2)}, {y_}, {z_} op_sel:[0,{h},{g}] op_sel_hi:[1,{h},{g}]' + (' neg_lo:[1,0,0] neg_hi:[1,0,0]' if neg else ''))
        if not addr: pass
        elif kadd: a([f's_mov_b32 s31, {kadd}', 's_cmp_ge_u32 s3, 2', f's_cselect_b32 s30, {PQ(rb)-KREC[b]}, s31', f'v_add_u32 v{REC}, s30, v{REC0}'])
        else: a(['s_cmp_ge_u32 s3, 2', f's_cselect_b32 s30, {PQ(rb)-KREC[b]}, 0', f'v_add_u32 v{REC}, s30, v{REC0}'])
        KO = KREC[b]
        def wr(r, off): a(('i', f'ds_write_b64 v{REC}, {vr(r,2)} offset:{KO+off}', 'rec'))
        def vmul(k0):
            for k in range(k0, 16, 2):
                if pk: pk2('mul', ac + k, ac + k, R)
                else: a(f'v_mul_f32 v{ac+k}, v{ac+k}, v{R}'); a(f'v_mul_f32 v{ac+k+1}, v{ac+k+1}, v{R}')
        if T == 'B':
            vmul(10)
            for k in range(3): a(f'v_cvt_pk_bf16_f32 v{VC+k}, v{ac+10+2*k}, v{ac+11+2*k}')
            wr(VC, 48); wr(VC + 2, 56)
        if T == 'A':
            vmul(12)
            for k in range(2): a(f'v_cvt_pk_bf16_f32 v{PK+6+k}, v{ac+12+2*k}, v{ac+13+2*k}')
            wr(PK + 6, 48)
            for b0 in (8, 0, 4):
                x = ac + b0; E = TMP; Ln = TMP + 4
                ep = S_EP2 if b0 == 8 else S_EPS
                if pk:
                    for k in (0, 2): pk2('mul', E + k, x + k, RL)
                else:
                    for k in range(4): a(f'v_mul_f32 v{E+k}, v{x+k}, v{RL}')
                for k in range(4): a(f'v_max_f32 v{Ln+k}, {"s%d" % S_LO if b0 == 8 else 0}, v{x+k}')
                for k in range(4): a(f'v_exp_f32_e64 v{E+k}, v{E+k} clamp')
                if pk:
                    for k in (0, 2): pk3(Ln + k, Ln + k, R, ep, pz='s')
                    for k in (0, 2):
                        if b0 == 8: a(f'v_pk_fma_f32 {vr(E+k,2)}, {vr(E+k,2)}, s[{S_E}:{S_E+1}], {vr(Ln+k,2)} op_sel:[0,0,0] op_sel_hi:[1,0,1]')
                        else: a(f'v_pk_add_f32 {vr(E+k,2)}, {vr(E+k,2)}, {vr(Ln+k,2)}')
                else:
                    for k in range(4): a(f'v_fma_f32 v{Ln+k}, v{Ln+k}, v{R}, s{ep}')
                    for k in range(4): a(f'v_fma_f32 v{E+k}, v{E+k}, s{S_E}, v{Ln+k}' if b0 == 8 else f'v_add_f32 v{E+k}, v{E+k}, v{Ln+k}')
                for k in range(0, 4, 2): a(f'v_cvt_pk_bf16_f32 v{PK+(b0+k)//2}, v{E+k}, v{E+k+1}')
                if b0 == 8:
                    a(f'v_cndmask_b32 v{PK+8}, v{PK+4}, v{VC+3}, s[{S_EV}:{S_EV+1}]')
                    a(f'v_cndmask_b32 v{PK+9}, v{PK+5}, 0, s[{S_EV}:{S_EV+1}]')
                    wr(PK + 8, 56)
                    a(f'v_cndmask_b32 v{PK+4}, 0, v{PK+4}, s[{S_EV}:{S_EV+1}]')
                    a(f'v_cndmask_b32 v{PK+5}, 0, v{PK+5}, s[{S_EV}:{S_EV+1}]')
                wr(PK + b0 // 2, 2 * b0)
        else:
            s = [ac + k for k in range(10)]
            a(f'v_max3_f32 v{X1}, v{s[0]}, v{s[1]}, v{s[2]}')
            a(f'v_max3_f32 v{X2}, -v{s[0]}, -v{s[1]}, -v{s[2]}')
            for k in (3, 5, 7):
                a(f'v_max3_f32 v{X1}, v{X1}, v{s[k]}, v{s[k+1]}')
                a(f'v_max3_f32 v{X2}, v{X2}, -v{s[k]}, -v{s[k+1]}')
            a(f'v_max_f32 v{X1}, v{X1}, v{s[9]}')
            a(f'v_max_f32_e64 v{X2}, v{X2}, -v{s[9]}')
            a(f'v_permlane32_swap_b32 v{X1}, v{X2}')
            a(f'v_max_f32 v{X1}, v{X1}, v{X2}')
            a(f'v_mul_f32_e64 v{X1}, -v{X1}, v{RL}')
            a(f'v_mov_b32 v{X2}, v{X1}')
            a(f'v_permlane32_swap_b32 v{X1}, v{X2}')
            Pp = [TMP + k for k in range(10)]; N = [TMP + 10 + k for k in range(10)]
            prev = None
            SP = PK; SN = PK + 2
            def addblk(ks):
                for k in ks:
                    if pk:
                        if k & 1 or k == 0: continue
                        for S_, Z in ((SP, Pp), (SN, N)):
                            a(f'v_pk_add_f32 {vr(S_,2)}, {vr(Z[0] if k == 2 else S_,2)}, {vr(Z[k],2)}')
                        continue
                    if k == 0: continue
                    if k == 1:
                        a(f'v_add_f32 v{X3}, v{Pp[0]}, v{Pp[1]}'); a(f'v_add_f32 v{X4}, v{N[0]}, v{N[1]}')
                    else:
                        a(f'v_add_f32 v{X3}, v{X3}, v{Pp[k]}'); a(f'v_add_f32 v{X4}, v{X4}, v{N[k]}')
            for ks in ((0, 1, 2, 3), (4, 5, 6, 7), (8, 9)):
                for k in ks:
                    if pk:
                        if k & 1 == 0: pk3(Pp[k], s[k], RL, X1); pk3(N[k], s[k], RL, X2, neg=True)
                        continue
                    a(f'v_fma_f32 v{Pp[k]}, v{s[k]}, v{RL}, v{X1}')
                    a(f'v_fma_f32 v{N[k]}, -v{s[k]}, v{RL}, v{X2}')
                for k in ks:
                    a(f'v_exp_f32 v{Pp[k]}, v{Pp[k]}')
                    a(f'v_exp_f32 v{N[k]}, v{N[k]}')
                if prev: addblk(prev)
                prev = ks
            addblk(prev)
            if pk: a(f'v_add_f32 v{X3}, v{SP}, v{SP+1}'); a(f'v_add_f32 v{X4}, v{SN}, v{SN+1}')
            a(f'v_permlane32_swap_b32 v{X3}, v{X4}')
            a(f'v_add_f32 v{X3}, v{X3}, v{X4}')
            a(f'v_rcp_f32 v{X3}, v{X3}')
            a(f'v_mov_b32 v{X4}, v{X3}')
            a(f'v_permlane32_swap_b32 v{X3}, v{X4}')
            for half, (regs, sc) in enumerate(((Pp, X3), (N, X4))):
                if pk:
                    for k in range(0, 10, 2): pk2('mul', regs[k], regs[k], sc)
                for k in range(0, 10, 2):
                    if not pk:
                        a(f'v_mul_f32 v{regs[k]}, v{regs[k]}, v{sc}')
                        a(f'v_mul_f32 v{regs[k+1]}, v{regs[k+1]}, v{sc}')
                    a(f'v_cvt_pk_bf16_f32 v{PK+5*half+k//2}, v{regs[k]}, v{regs[k+1]}')
                    n = 5 * half + k // 2
                    if n & 1: wr(PK + n - 1, 4 * (n - 1))
        return it
    def kv(self, T, rb, F=(KFA, KFB)):
        b = rb & 1
        FA, FB = F
        rd = [['s_bitcmp1_b32 s3, 0', f's_cselect_b32 s30, {PQ(rb)-KREC[b]}, 0', f'v_add_u32 v{TRB}, s30, v{TRB0}']] if b == 0 else []
        for jh in range(2):
            rd.append(('i', f'ds_read_b64_tr_b16 {vr(FB+2*jh,2)}, v{TRB} offset:{KREC[b]+16*jh*RS}', 'kvr'))
        for mt, r in enumerate(TRA[T]):
            for jh in range(2):
                rd.append(('i', f'ds_read_b64_tr_b16 {vr(FA+4*mt+2*jh,2)}, v{r} offset:{KREC[b]+16*jh*RS}', 'kvr'))
        mm = [('wlg', 'kvr')]
        for mt in range(len(TRA[T])):
            c = '0' if rb == 0 else vr(KC + 4 * mt, 4)
            mm.append(f'v_mfma_f32_16x16x32_bf16 {vr(KC+4*mt,4)}, {vr(FA+4*mt,4)}, {vr(FB,4)}, {c}')
        return rd, mm
    def kvp_addr(self, T):
        NG = 6 if T == 'A' else 10
        it = [f'v_bfe_u32 v{X1}, v0, 3, 1', f'v_lshrrev_b32 v{X2}, 4, v0',
              ['s_lshr_b32 s30, s3, 1', 's_mul_i32 s30, s30, 3', 's_and_b32 s31, s3, 1', 's_lshl_b32 s31, s31, 1',
               f'v_add_u32 v{X1}, s31, v{X1}', f'v_cmp_gt_u32 s[32:33], 3, v{X1}', f'v_add_u32 v{X1}, s30, v{X1}'],
              f'v_mul_u32_u24 v{X1}, {NG}, v{X1}', f'v_add_u32 v{X1}, v{X1}, v{X2}', f'v_mov_b32 v{X5}, {OOB}',
              f'v_and_b32 v{X3}, 7, v0', f'v_lshlrev_b32 v{X3}, 4, v{X3}', f'v_lshl_add_u32 v{X1}, v{X1}, 11, v{X3}',
              f'v_cndmask_b32 v{VKP[0]}, v{X5}, v{X1}, s[32:33]']
        nmt = len(TRA[T])
        for mt in range(1, nmt): it.append(f'v_add_u32 v{VKP[mt]}, {8192*mt}, v{VKP[0]}')
        it += [f'v_cmp_gt_u32 vcc, {NG-4*(nmt-1)}, v{X2}', f'v_cndmask_b32 v{VKP[nmt-1]}, v{X5}, v{VKP[nmt-1]}, vcc']
        return it
    def clears(self, L, lane=0, l16=L16, x5=X5, x6=X6, sent=SENT):
        n = L + 1
        g1 = [f'v_lshrrev_b32 v{x5}, 3, v{lane}', f'v_and_b32 v{x6}, 7, v{lane}', f'v_lshlrev_b32 v{x5}, 11, v{x5}',
              f'v_lshl_add_u32 v{x5}, v{x6}, 4, v{x5}',
              f's_mul_i32 s30, s{S_HP}, {KVPS(n)}', f's_lshl_b32 s31, s{S_RG}, 7', 's_add_u32 s30, s30, s31',
              's_lshl_b32 s31, s3, 15', 's_add_u32 s30, s30, s31', f's_add_u32 s30, s30, {KVP(n)}',
              ('i', f'buffer_store_dwordx4 {vr(sent,4)}, v{x5}, s[8:11], s30 offen sc1', 'clr'),
              's_add_u32 s30, s30, 16384',
              ('i', f'buffer_store_dwordx4 {vr(sent,4)}, v{x5}, s[8:11], s30 offen sc1', 'clr')]
        g2 = [f'v_lshrrev_b32 v{x5}, 3, v{lane}', f'v_lshlrev_b32 v{x5}, 17, v{x5}', f'v_lshl_add_u32 v{x5}, v{x6}, 4, v{x5}',
              f's_lshl_b32 s30, s{S_HP}, 13', f's_lshl_b32 s31, s{S_RG}, 7', 's_add_u32 s30, s30, s31',
              f's_add_u32 s30, s30, s{S_W2K}', f's_add_u32 s30, s30, {KVF(n)}',
              ('i', f'buffer_store_dwordx4 {vr(sent,4)}, v{x5}, s[8:11], s30 offen sc1', 'clr'),
              f's_lshl_b32 s31, s{S_RG}, 13', f's_add_u32 s31, s31, s{S_W2K}', f's_lshl_b32 s32, s{S_HP}, 7',
              's_add_u32 s31, s31, s32', f's_add_u32 s31, s31, {F2(n)}',
              f's_lshl_b32 s32, s{S_RBY}, 10', f's_lshl_b32 s33, s{S_CG}, 7', 's_add_u32 s32, s32, s33',
              f's_add_u32 s32, s32, {ST(n)}',
              ['s_mov_b64 exec, 0xff',
               ('i', f'buffer_store_dwordx4 {vr(sent,4)}, v{l16}, s[8:11], s32 offen sc1', 'clr'),
               's_mov_b64 exec, 0xf',
               ('i', f'buffer_store_dwordx4 {vr(sent,4)}, v{l16}, s[8:11], s31 offen sc1', 'clr'),
               's_mov_b64 exec, -1']]
        if L >= 1 and self.opt.get('FCL'):
            g2[-1] = ['s_mov_b64 exec, 0xff',
                      ('fn', lambda: self.fstore([f'buffer_store_dwordx4 {vr(sent,4)}, v{l16}, s[8:11], s{k} offen' for k in (32, 31)], tag='clr'), 'clr'),
                      's_mov_b64 exec, -1']
        return [g1, g2]

    def front(self, L):
        A = self.A; o = self.opt
        T = 'AB'[L & 1]
        last = (L == self.nl - 1)
        PF = 7
        emit_items(A, self.st_soff(L))
        self.poll(self.st_loads(L), [STR + k for k in range(8)], X1)
        self.stamp('st')
        A('s_barrier')
        PRE = o.get('PRE6', 5)
        for c in range(PRE): emit_items(A, self.xchunk(c))
        st = self.stats_items() + self.rec_toggle(T)
        SPL = o.get('SPL', len(st))
        emit_items(A, st[:SPL])
        queue = [self.xchunk(c) for c in range(PRE, 40)]
        def xread(n):
            if n >= 159: return []
            r, off = dsaddr(1024 * n)
            return [('i', f'ds_read_b128 {vr(RING+4*(n%8),4)}, v{r} offset:{off}', f'r{n}')]
        bar = o.get('BAR', {8: 16, 16: 28, 28: 44, 44: 72, 72: 104, 104: 160, 144: 0})
        bend = o.get('BEND', {})
        SCB = o.get('SCB', 28)
        def texts(g): return [x if isinstance(x, str) else x[1] for x in flat([g]) if isinstance(x, str) or x[0] == 'i']
        def tags(g): return {x[2] for x in flat([g]) if not isinstance(x, str) and x[0] == 'i'}
        def ismem(g): return any(t.startswith(('ds_', 'buffer_')) for t in texts(g))
        memq = []
        def blocked(g):
            if not isinstance(g, (str, list)) and g[0] in ('wvm', 'wlg'):
                return any(g[1] in tags(p) for p in memq)
            ins = [parse(t) for t in texts(g)]
            for p in memq:
                for q in (parse(t) for t in texts(p)):
                    for x in ins:
                        if x.w & (q.r | q.w) or x.r & q.w: return True
            return False
        def xcost(g):
            return sum(2 if t.startswith(('v_exp', 'v_rcp', 'v_sqrt', 'ds_write', 's_barrier')) else 1 for t in texts(g)) or 1
        def emit(g):
            p0 = A.pos; n0 = len(texts(g))
            emit_items(A, flat([g]))
            return (A.pos - p0) + xcost(g) - max(n0, 1) if n0 else A.pos - p0
        def xwait(q):
            if not q: return
            c = q // 4 - 1
            while any(f'x{c}' in tags(g) for g in queue): emit_items(A, queue.pop(0))
            A.wait_vm(f'x{c}')
        A.wait_vm('x1'); self.stamp('x0'); A('s_barrier')
        for n in range(PF): emit_items(A, xread(n))
        emit_items(A, st[SPL:SPL + o.get('SP2', 0)]); st = st[SPL + o.get('SP2', 0):]
        A.wait_lg('r1')
        gcount = 0
        wf = o.get('WOFR', 80)
        def wod(a, b): return self.wo_dma(a, min(b, wf)) if a < wf else []
        WN = o.get('WN', 3)
        DE = o.get('DE', (2, 2, 2, 2))
        for rb in range(4):
            ac = vr(ACC + 16 * (rb & 1), 16)
            fill = []; mm = []
            scr = self.scread(rb)
            if rb >= 2:
                rd, mm = self.kv(T, rb - 2)
                fill += rd
            if rb >= 1: fill += scr[:1] + self.epilogue(T, rb - 1, addr=(rb & 1)) + scr[1:]
            if rb == 0:
                fill += st + self.kvp_addr(T) + [self.srd_wo_items(T)]
                if not last and not o.get('CLE', 1):
                    for g in self.clears(L): fill += g
            if rb == 2: queue += wod(0, 24)
            if rb == 3: queue += wod(40, 64)
            tot = sum(xcost(g) for g in fill) + 40 + 40 // WN + 2 * min(len(queue) + 4, 40 // DE[rb]) + 8 - 2 * max(0, len(mm) - 1)
            rate = max(6.0, tot / o.get('GN', 39)); credit = 0.0
            kat = None
            for s in range(41):
                n = 40 * rb + s
                if s < 40:
                    src = vr(XL, 4) if n == 159 else vr(RING + 4 * (n % 8), 4)
                    A(f'v_mfma_f32_32x32x16_bf16 {ac}, {wreg(T, s)}, {src}, {"0" if s == 0 else ac}')
                else:
                    assert not mm or True
                    for g in memq + mm + fill: emit(g)
                    memq = []; fill = []; mm = []
                    A(f'v_mfma_f32_32x32x16_bf16 {ac}, {vr(WCR[T],4)}, {vr(NM+2*(rb&1),4)}, {ac}')
                    break
                gcount += 1
                if n in o.get('SN', ()): self.stamp(f'n{n}_')
                credit = min(credit, 0.99) if credit > 0 else 0.0
                credit += rate
                nn = n + PF
                p0 = A.pos
                if n == 37: fill += scr[1:]
                if nn in bar:
                    xwait(bar[nn])
                    if nn == SCB:
                        assert not any('sc' in tags(g) for g in fill + memq)
                        A.wait_lg('sc'); memq.append(scr[0])
                    A('s_barrier'); credit -= 1
                    if nn == 104: queue += wod(24, 40)
                    if nn == 144: queue += wod(64, 80)
                dg = queue.pop(0) if queue and gcount % DE[rb] == 0 else []
                k = 0
                while k < len(dg) and isinstance(dg[k], str): k += 1
                emit_items(A, dg[:k] + xread(nn) + dg[k:])
                credit -= A.pos - p0
                nm = 0
                while memq and nm < 2 and (nm == 0 or credit >= 2):
                    g = memq.pop(0); credit -= emit(g); nm += xcost(g)
                    if 'kvr' in tags(g): kat = s + o.get('KD', 3)
                m = n + 1
                wt = None
                if m < 159 and A._cnt(A.lg, f'r{m}') is not None: wt = f'r{min(m + WN - 1, 158)}'
                if wt: credit -= 1
                def dofill(cr):
                    while fill and cr >= 0.5 * xcost(fill[0]) + 0.5:
                        if ismem(fill[0]): memq.append(fill.pop(0)); continue
                        if blocked(fill[0]): break
                        cr -= emit(fill.pop(0))
                    return cr
                credit = dofill(credit)
                if mm and kat is not None and s >= kat and not any('kvr' in tags(g) for g in fill + memq):
                    for g in mm:
                        emit(g)
                        if isinstance(g, str): dofill(2.0)
                    mm = []
                if wt: A.wait_lg(wt)
                if n == 158: A.wait_vm('x39')
            if rb >= 1:
                if rb in bend: xwait(bend[rb])
                if rb == 3:
                    for g in queue: emit_items(A, g)
                    queue = []
                    A.wait_vm('clr')
                A.wait_lg('rec'); A.wait_lg('kvr')
                self.stamp(f'b{rb}_')
                A('s_barrier')
        rd, mm = self.kv(T, 2)
        ep = self.epilogue(T, 3, addr=False, pk=o.get('PK', 1))
        A(f's_mul_i32 s34, s{S_HP}, {KVPS(L)}'); A(f's_add_u32 s34, s34, {KVP(L)}')
        A(f's_lshl_b32 s31, s{S_RG}, 7'); A('s_add_u32 s35, s34, s31')
        A(f'v_mov_b32 v{X5}, {OOB}')
        emit_items(A, flat(rd + ep))
        A.wait_lg()
        self.stamp('ep3_')
        A('s_barrier')
        rd, m3 = self.kv(T, 3, F=(RING, RING + 12))
        emit_items(A, flat(rd + mm[1:] + m3))
        for mt in range(len(TRA[T])):
            A(f'buffer_store_dwordx4 {vr(KC+4*mt,4)}, v{VKP[mt]}, s[8:11], s35 offen sc1')

    def split(self, src, dst):
        return [f'v_cvt_pk_bf16_f32 v{dst}, v{src}, v{src}',
            f'v_lshlrev_b32 v{dst+1}, 16, v{dst}',
            f'v_sub_f32 v{src}, v{src}, v{dst+1}',
            f'v_cvt_pk_bf16_f32 v{dst+1}, v{src}, v{src}',
            f'v_and_b32 v{dst+1}, 0xffff0000, v{dst+1}',
            f'v_sub_f32 v{src}, v{src}, v{dst+1}',
            f'v_and_b32 v{dst}, 0xffff, v{dst}',
            f'v_or_b32 v{dst}, v{dst}, v{dst+1}',
            f'v_mov_b32 v{dst+2}, 0',
            f'v_cvt_pk_bf16_f32 v{dst+1}, v{src}, v{dst+2}',
            f'v_mov_b32 v{dst+3}, 0',
            f'v_cmp_gt_u32 vcc, 32, v0',
            f'v_cndmask_b32 v{dst}, v{dst+1}, v{dst}, vcc',
            f'v_mov_b32 v{dst+1}, 0']
    def checkpoint(self, FE, FA):
        A = self.A; o = self.opt; nm = self.name
        A.wait_vm('fl')
        sv = list(A.vm)
        A(f's_branch {nm}_c1')
        A.label(f'{nm}_c0')
        A(f's_mov_b32 s32, {FL}')
        A('s_cmp_lg_u32 s38, 2')
        A(f's_cbranch_scc1 {nm}_c2')
        A(f's_mov_b32 s30, {AR}'); A(f's_mov_b32 s31, {EC}')
        A(f'buffer_load_dwordx4 {vr(FE,4)}, v{L16}, s[8:11], s30 offen sc1')
        A.wait_vm()
        A(f'v_mov_b32 v{FE+6}, v{FE+3}'); A(f'v_mov_b32 v{FE+4}, v{FE+2}'); A(f'v_mov_b32 v{FE+2}, v{FE+1}')
        for k in range(4): A(f'v_mov_b32 v{FE+1+2*k}, s{S_M}')
        A(f'buffer_store_dwordx4 {vr(FE,4)}, v{FA}, s[8:11], s31 offen sc1')
        A(f'buffer_store_dwordx4 {vr(FE+4,4)}, v{FA}, s[8:11], s31 offen offset:16 sc1')
        A.wait_vm()
        A.label(f'{nm}_c2')
        self.flloads(FE, FA)
        A.wait_vm()
        A.label(f'{nm}_c1')
        for k in (0, 2, 4, 6): A(f'v_xor_b32 v{FE+k}, s{S_M}, v{FE+k}')
        A(f'v_or3_b32 v{FE}, v{FE}, v{FE+2}, v{FE+4}'); A(f'v_or_b32 v{FE}, v{FE}, v{FE+6}')
        A(f'v_cmp_ne_u32 vcc, 0, v{FE}')
        A(f's_sub_u32 s{S_BUD}, s{S_BUD}, 1')
        A(f's_cbranch_scc1 {nm}_c3')
        A('s_nop 4')
        A(f's_cbranch_vccnz {nm}_c0')
        A.label(f'{nm}_c3')
        A(f's_max_i32 s{S_BUD}, s{S_BUD}, 0')
        A.vm = sv
        self.stamp('cp')
        for k in (1, 3, 5, 7): A(f'v_xor_b32 v{FE+k}, s{S_XCC}, v{FE+k}')
        A(f'v_or3_b32 v{FE}, v{FE+1}, v{FE+3}, v{FE+5}'); A(f'v_or_b32 v{FE}, v{FE}, v{FE+7}')
        A(f'v_cmp_ne_u32 vcc, 0, v{FE}')
        A(f's_lshl_b32 s30, s{S_RG}, 2')
        A('s_lshr_b64 s[30:31], vcc, s30')
        A('s_and_b32 s30, s30, 15')
        A(f's_cselect_b32 s{S_SAME}, 0, 1')
        if o.get('FORCE_SLOW'): A(f's_mov_b32 s{S_SAME}, 0')
        A(f'v_lshlrev_b32 v{FA}, 2, v0')
        A(f's_lshl_b32 s30, s{S_RG}, 10'); A('s_lshl_b32 s31, s3, 8'); A('s_add_u32 s30, s30, s31'); A(f's_add_u32 s30, s30, {S0}')
        A(f's_add_u32 m0, s31, {SC}')
        A(f'buffer_load_dword v{FA}, s[8:11], s30 offen sc1 lds', tag='sc')
    def flloads(self, FE, FA):
        self.A(f'buffer_load_dwordx4 {vr(FE,4)}, v{FA}, s[8:11], s32 offen sc1', tag='fl')
        self.A(f'buffer_load_dwordx4 {vr(FE+4,4)}, v{FA}, s[8:11], s32 offen offset:16 sc1', tag='fl')
    def xo_items(self):
        return [f'v_and_b32 v{X1}, 15, v0', f'v_mul_u32_u24 v{X1}, 1280, v{X1}', f'v_lshrrev_b32 v{X2}, 4, v0',
              f'v_lshl_add_u32 v{X3}, v{X2}, 4, v{X1}', f'v_lshl_add_u32 v{X4}, v{X2}, 3, v{X1}',
              f's_and_b32 s30, s{S_RBY}, 7', 's_mul_i32 s30, s30, 20480', f's_mul_i32 s31, s{S_CG}, 160', 's_add_u32 s30, s30, s31',
              ('i', f'buffer_load_dwordx4 {vr(XOLD,4)}, v{X3}, s[12:15], s30 offen', 'xo'),
              ('i', f'buffer_load_dwordx4 {vr(XOLD+4,4)}, v{X3}, s[12:15], s30 offen offset:64', 'xo'),
              ('i', f'buffer_load_dwordx2 {vr(XOLD+8,2)}, v{X4}, s[12:15], s30 offen offset:128', 'xo')]
    def front0(self):
        A = self.A; o = self.opt
        nm = self.name
        T = 'A'; L = 0
        acc = [ACC, ACC + 16, 192, 208]
        XA = TMP; WA = TMP + 4; CS = 224
        FE = KC; FA = KC + 8; MR = KC + 9
        CP = o.get('CP', 8)
        FS = o.get('FS', 1)
        def xread(i):
            if i >= 160: return
            sg, s_, rb = i >> 4, (i >> 2) & 3, i & 3
            A(f'ds_read_b128 {vr(RING+4*(i%8),4)}, v{XA+s_} offset:{32768*(sg&1) + 16384 + 4096*rb}', tag=f'r{i}')
        def wread(s):
            sg, s_ = s >> 2, s & 3
            for jh in range(2):
                A(f'ds_read_b64_tr_b16 {ar(4*s+2*jh,2)}, v{WA} offset:{32768*(sg&1) + 4096*s_ + 1024*jh}', tag=f'w{s}')
        PF = 7
        queue = []
        wbq = [self.wloads('B', 4*g, 4) for g in range(6)] if self.nl > 1 else []
        for i in range(-PF, 160):
            nn = i + PF
            if nn < 160 and nn % 16 == 0:
                sg = nn >> 4
                for g in queue: emit_items(A, flat(g))
                A.wait_vm(f'g{sg}')
                if sg == FS: A.wait_vm('ec')
                A.wait_lg()
                if sg in (0, 1, 2, 3, 5, 7, 9): self.stamp(f's{sg}_')
                A('s_barrier')
                if sg % 2 == 0 and sg > 0:
                    for k in range(5): A(f'v_xor_b32 v{TMP+k}, 0x10000, v{TMP+k}')
                wread(4 * sg)
                if sg == FS: self.flag()
                queue = self.ring(sg + 3) if sg + 3 < 10 else []
                if sg == 0: queue = self.dq + queue
                if sg == 1: queue.append(flat(self.kvp_addr(T)))
                if sg == FS + 1:
                    A(f'v_mov_b32 v{MR}, {MW}')
                    A(f'ds_read_b32 v{MR}, v{MR}', tag='mw')
                if sg == FS + 2: A(f'v_readfirstlane_b32 s{S_M}, v{MR}')
                if sg == o.get('CL0', 7) and self.nl > 1: queue += self.clears(0)
                if sg == o.get('XO', 7): queue.append(self.xo_items())
                if sg == CP - 1:
                    A(f'v_lshlrev_b32 v{FA}, 5, v0'); A(f's_mov_b32 s32, {FL}')
                    self.flloads(FE, FA)
                if sg == CP: self.checkpoint(FE, FA)
                if sg == o.get('PT', -1): queue.append(self.touch())
                if sg >= CP:
                    nw = o.get('NWB', 3) if sg < 9 else 6
                    queue += wbq[:nw]; wbq = wbq[nw:]
            if nn < 160:
                if nn % 4 == 2 and (nn & 15) < 12: wread((nn >> 2) + 1)
                xread(nn)
            if i < 0: continue
            s_ = i >> 2; rb = i & 3
            if rb == 0: A.wait_lg(f'w{s_}')
            A.wait_lg(f'r{i}')
            A(f'v_mfma_f32_32x32x16_bf16 {vr(acc[rb],16)}, {wreg(T, s_)}, {vr(RING+4*(i%8),4)}, {"0" if s_ == 0 else vr(acc[rb],16)}')
            if rb == 1:
                A(f'v_mfma_f32_16x16x32_bf16 {vr(CS,4)}, {vr(NM,4)}, {wreg(T, s_)}, {"0" if s_ == 0 else vr(CS,4)}')
            if queue: emit_items(A, flat(queue.pop(0)))
        for g in queue: emit_items(A, flat(g))
        emit_items(A, self.split(CS, WCR['A']))
        emit_items(A, self.srd_wo_items(T) + [f's_mov_b32 s18, {WOL + 102400}'])
        A.wait_vm('sc')
        A.wait_lg()
        self.stamp('m_')
        A('s_barrier')
        NMx = TMP + 12
        for rb in range(4): A(f'ds_read_b32 v{NMx+rb}, v{VSC} offset:{256*rb}', tag='nm')
        def rread(rb):
            b = rb & 1
            return [('i', f'ds_read_b32 v{VR[b]}, v{VSC} offset:{256*rb+4}', 'scr'), ('wlg', 'scr'), f'v_mul_f32 v{VRL[b]}, 0x3fb8aa3b, v{VR[b]}']
        emit_items(A, rread(0)[:1] + rread(1) + rread(0)[2:])
        NB = [NM, KFA]
        for rb in range(4):
            for k in range(4): A(f'v_mov_b32 v{NB[rb&1]+k}, v{NMx+rb}')
            A(f'v_mfma_f32_32x32x16_bf16 {vr(acc[rb],16)}, {vr(WCR[T],4)}, {vr(NB[rb&1],4)}, {vr(acc[rb],16)}')
        if o.get('PT') == 10: emit_items(A, self.touch())
        wq = self.wo_dma(0, 82)
        for rb in range(4):
            ep = self.epilogue(T, rb, ac=acc[rb], kadd=KR2 if rb >= 2 else 0, pk=o.get('PK', 1), R=VR[rb & 1], addr=(rb & 1) == 0)
            if rb < 2: ep += rread(rb + 2)
            for k, it in enumerate(ep):
                emit_items(A, flat([it]))
                if wq and k % o.get('WOE', 6) == 3: emit_items(A, wq.pop(0))
        for g in wq: emit_items(A, g)
        if self.nl > 1 and o.get('WB2', 0) == 0:
            for g in range(6, 10): emit_items(A, self.wloads('B', 4*g, 4))
        A(f's_mul_i32 s34, s{S_HP}, {KVPS(L)}'); A(f's_add_u32 s34, s34, {KVP(L)}')
        A(f's_lshl_b32 s31, s{S_RG}, 7'); A('s_add_u32 s35, s34, s31')
        A(f'v_mov_b32 v{X5}, {OOB}')
        TB = TMP; TA2 = TMP + 4; F = ACC
        A(f's_mov_b32 s31, {KR2}')
        A('s_bitcmp1_b32 s3, 0')
        for rb in range(4):
            A(f's_cselect_b32 s30, {PQ(rb)-KREC[rb&1]}, {"s31" if rb >= 2 else "0"}')
            A(f'v_add_u32 v{TB+rb}, s30, v{TRB0}')
        for mt in range(2): A(f'v_add_u32 v{TA2+mt}, s31, v{TRA[T][mt]}')
        A.wait_vm('clr')
        A.wait_lg()
        self.stamp('ep3_')
        A('s_barrier')
        for rb in range(4):
            f = F + 12 * rb
            for jh in range(2):
                A(f'ds_read_b64_tr_b16 {vr(f+2*jh,2)}, v{TB+rb} offset:{KREC[rb&1]+16*jh*RS}', tag=f'kv{rb}')
            for mt in range(2):
                r = TRA[T][mt] if rb < 2 else TA2 + mt
                for jh in range(2):
                    A(f'ds_read_b64_tr_b16 {vr(f+4+4*mt+2*jh,2)}, v{r} offset:{KREC[rb&1]+16*jh*RS}', tag=f'kv{rb}')
        for rb in range(4):
            f = F + 12 * rb
            A.wait_lg(f'kv{rb}')
            for mt in range(2):
                c = '0' if rb == 0 else vr(KC + 4 * mt, 4)
                A(f'v_mfma_f32_16x16x32_bf16 {vr(KC+4*mt,4)}, {vr(f+4+4*mt,4)}, {vr(f,4)}, {c}')
        for mt in range(2):
            A(f'buffer_store_dwordx4 {vr(KC+4*mt,4)}, v{VKP[mt]}, s[8:11], s35 offen sc1')

    def layer(self, L):
        A = self.A; o = self.opt
        self.L = L
        T = 'AB'[L & 1]
        NG = 6 if T == 'A' else 10
        NR = 6 * NG
        last = (L == self.nl - 1)
        final = (L == 3)
        PF = 7
        if L == 0: self.front0()
        else: self.front(L)
        self.stamp('kvp')
        wo1 = 82 if L == 0 else o['WO1']
        for g in self.wo_dma(82 if L == 0 else o.get('WOFR', 80), wo1): emit_items(A, g)
        QF = RING; KF = TMP; RD = 104; GQ = 136
        nks = 3 if T == 'B' else 2
        for hd in range(2):
            for ks in range(nks):
                q = QF + 12 * hd + 4 * ks
                if ks < nks - 1:
                    A(f'ds_read_b64 {vr(q,2)}, v{VPQ} offset:{128*hd+16*ks}', tag='qf')
                    A(f'ds_read_b64 {vr(q+2,2)}, v{VPQ} offset:{128*hd+16*ks+8}', tag='qf')
                else:
                    A(f'ds_read_b64 {vr(q,2)}, v{VPQ} offset:{128*hd+16*ks}', tag='qf')
                    A(f'v_mov_b32 v{q+2}, 0'); A(f'v_mov_b32 v{q+3}, 0')
        A('s_lshl_b32 s30, s3, 4'); A(f's_add_u32 s30, s30, s{S_RG}')
        A('s_lshl_b32 s31, s30, 11'); A('s_add_u32 s34, s34, s31')
        A(f's_lshl_b32 s35, s{S_HP}, 13'); A(f's_add_u32 s35, s35, {KVF(L)}')
        A('s_lshl_b32 s31, s30, 7'); A('s_add_u32 s36, s35, s31')
        VO = PK
        A(f'v_and_b32 v{X1}, 7, v0'); A(f'v_lshrrev_b32 v{X2}, 5, v0')
        A(f'v_lshlrev_b32 v{X1}, 3, v{X1}'); A(f'v_lshl_add_u32 v{X1}, v{X2}, 2, v{X1}')
        A(f'v_bfe_u32 v{X2}, v0, 3, 2'); A(f'v_lshl_add_u32 v{VO}, v{X2}, 17, v{X1}')
        A(f'v_add_u32 v{VO+3}, {4*KVC}, v{VO}')
        A(f'v_lshrrev_b32 v{X1}, 2, v0'); A(f'v_and_b32 v{X2}, 3, v0'); A(f'v_lshlrev_b32 v{X2}, 4, v{X2}')
        A(f'v_lshl_add_u32 v{X1}, v{X1}, 7, v{X2}')
        A(f'v_cmp_gt_u32 vcc, {NR}, v0')
        A(f'v_cndmask_b32 v{VO+1}, v{X5}, v{X1}, vcc')
        A(f's_mul_i32 s31, s3, {16*NR}')
        A('s_add_u32 s35, s35, s31'); A('s_add_u32 s35, s35, s31')
        A(f's_lshr_b32 s32, s{S_RG}, 1'); A('s_lshl_b32 s32, s32, 17'); A('s_add_u32 s35, s35, s32')
        A(f'v_add_u32 v{X1}, s31, v{L16}'); A(f'v_add_u32 v{X2}, 0x1000, v{L16}')
        A(f'v_cndmask_b32 v{VO+2}, v{X2}, v{X1}, vcc')
        for hd in range(2):
            k = KF + 12 * hd + 4 * (nks - 1)
            A(f'v_mov_b32 v{k+2}, 0'); A(f'v_mov_b32 v{k+3}, 0')
        lsk = self.lab('nored')
        A(f's_cmp_ge_u32 s30, {NR}')
        A(f's_cbranch_scc1 {lsk}')
        self.poll([f'buffer_load_dwordx4 {vr(RD,4)}, v{L16}, s[8:11], s34 offen sc1',
                   f'buffer_load_dwordx4 {vr(RD+4,4)}, v{L16}, s[8:11], s34 offen offset:1024 sc1'], [RD + k for k in range(8)], X1, sleep=o.get('SL1', 0), pre=o.get('PRE1', 0))
        for k in range(4): A(f'v_add_f32 v{RD+k}, v{RD+k}, v{RD+4+k}')
        A(f'v_permlane32_swap_b32 v{RD}, v{RD+2}')
        A(f'v_permlane32_swap_b32 v{RD+1}, v{RD+3}')
        A(f'v_add_f32 v{RD}, v{RD}, v{RD+2}')
        A(f'v_add_f32 v{RD+1}, v{RD+1}, v{RD+3}')
        A(f'v_add_f32_dpp v{RD+2}, v{RD}, v{RD} row_ror:8 row_mask:0xf bank_mask:0xf')
        A(f'v_add_f32_dpp v{RD+3}, v{RD+1}, v{RD+1} row_ror:8 row_mask:0xf bank_mask:0xf')
        A(f'v_mov_b32 v{RD}, v{RD+2}'); A(f'v_mov_b32 v{RD+1}, v{RD+3}')
        A(f'v_permlane16_swap_b32 v{RD}, v{RD+2}')
        A(f'v_permlane16_swap_b32 v{RD+1}, v{RD+3}')
        A(f'v_add_f32 v{RD}, v{RD}, v{RD+2}')
        A(f'v_add_f32 v{RD+1}, v{RD+1}, v{RD+3}')
        A(f'v_cvt_pk_bf16_f32 v{RD}, v{RD}, v{RD+1}')
        A(f'buffer_store_dword v{RD}, v{VO}, s[8:11], s36 offen sc1')
        A(f'buffer_store_dword v{RD}, v{VO+3}, s[8:11], s36 offen sc1')
        A.label(lsk)
        self.stamp('red')
        if o.get('RBAR', 1): A('s_barrier')
        pre2 = o.get('PRE2', 0)
        cle = o.get('CLE', 1) and L + 2 < self.nl
        if cle and L > 0: emit_items(A, flat(self.clears(L + 1))); pre2 = o.get('PRE2C', pre2)
        if L == 0 and self.nl > 1:
            emit_items(A, self.onesel(NM))
            A('s_waitcnt vmcnt(2)')
        if cle and L == 0: emit_items(A, flat(self.clears(L + 1)))
        for g in self.wo_dma(wo1, 100): emit_items(A, g)
        if L == 0 and self.nl > 1:
            for s_ in range(40):
                d = vr(ACC + 4 * (s_ & 1), 4)
                A(f'v_mfma_f32_16x16x32_bf16 {d}, {vr(NM,4)}, {wreg("B", s_)}, {"0" if s_ < 2 else d}')
            A(f'v_add_f32 v{ACC}, v{ACC}, v{ACC+4}')
            emit_items(A, self.split(ACC, WCR['B']))
            pre2 = o.get('PRE20', 0)
        self.poll([f'buffer_load_dwordx4 {vr(RD+4,4)}, v{VO+1}, s[8:11], s35 offen sc1'], [RD + 4 + k for k in range(4)], X1, sleep=o.get('SL2', 0), pre=pre2)
        A(f'ds_write_b128 v{VO+2}, {vr(RD+4,4)}')
        A(f'v_bfe_u32 v{X1}, v0, 4, 1'); A(f'v_mul_u32_u24 v{X1}, 20480, v{X1}')
        A(f'v_and_b32 v{X2}, 15, v0'); A(f'v_lshl_add_u32 v{X1}, v{X2}, 4, v{X1}')
        A(f'v_lshrrev_b32 v{X2}, 5, v0')
        A(f'v_lshl_add_u32 v{VO}, v{X2}, 8, v{X1}')
        A(f'v_lshl_add_u32 v{VO+1}, v{X2}, 3, v{X1}')
        A.wait_lg()
        self.stamp('kvf')
        A('s_barrier')
        for hd in range(2):
            for ks in range(nks):
                k = KF + 12 * hd + 4 * ks
                o8 = 192 * NG * hd + 128 * ks
                A(f'ds_read_b64 {vr(k,2)}, v{VKA[T]} offset:{o8}', tag=f'kf{hd}{ks}')
                if ks < nks - 1:
                    A(f'ds_read_b64 {vr(k+2,2)}, v{VKA[T]} offset:{o8+64}', tag=f'kf{hd}{ks}')
        A(f's_lshl_b32 s30, s{S_RG}, 2'); A('s_add_u32 s30, s30, s3')
        A('s_mul_i32 s31, s30, 40960'); A(f's_mul_i32 s32, s{S_HP}, 1280'); A('s_add_u32 s31, s31, s32')
        A(f's_add_u32 s31, s31, {O(L)}')
        A('s_lshl_b32 s30, s30, 11'); A(f's_lshl_b32 s32, s{S_HP}, 7'); A('s_add_u32 s30, s30, s32')
        A(f's_add_u32 s30, s30, {F2(L)}')
        for ks in range(nks):
            for hd in range(2):
                d = vr(ACC + 16 * hd, 16)
                A.wait_lg(f'kf{hd}{ks}')
                A(f'v_mfma_f32_32x32x16_bf16 {d}, {vr(KF+12*hd+4*ks,4)}, {vr(QF+12*hd+4*ks,4)}, {"0" if ks == 0 else d}')
        OPK = 140
        for hd in range(2):
            d = ACC + 16 * hd
            A(f'v_add_f32 v{d+10}, s{S_EPS}, v{d+10}')
            A(f'v_rcp_f32 v{d+10}, v{d+10}')
            A(f'v_mov_b32 v{d+11}, v{d+10}')
            for k in range(0, 10, 2):
                A(f'v_pk_mul_f32 {vr(d+k,2)}, {vr(d+k,2)}, {vr(d+10,2)}')
            for k in range(5):
                dst = OPK + 4 * hd + k if k < 4 else OPK + 8 + hd
                A(f'v_cvt_pk_bf16_f32 v{dst}, v{d+2*k}, v{d+2*k+1}')
        self.fstore([f'buffer_store_dwordx4 {vr(OPK,4)}, v{VO}, s[8:11], s31 offen',
                     f'buffer_store_dwordx4 {vr(OPK+4,4)}, v{VO}, s[8:11], s31 offen offset:512',
                     f'buffer_store_dwordx2 {vr(OPK+8,2)}, v{VO+1}, s[8:11], s31 offen offset:1024'])
        OF = 48; WR = 128; YA = 168
        def woread(f):
            r, off = dsaddr(WOL + 1024 * f)
            return ('i', f'ds_read_b128 {vr(WR+4*(f%10),4)}, v{r} offset:{off}', f'wr{f}')
        for k in range(10):
            A(f'v_lshlrev_b32 v{YA+2*k}, 16, v{XOLD+k}')
            A(f'v_and_b32 v{YA+2*k+1}, 0xffff0000, v{XOLD+k}')
        A(f'v_and_b32 v{T0}, 15, v0'); A(f'v_lshlrev_b32 v{T0}, 7, v{T0}')
        A(f's_lshr_b32 s32, s{S_RBY}, 1'); A('s_lshl_b32 s32, s32, 11'); A(f's_add_u32 s32, s32, {F2(L)}')
        A(f's_mul_i32 s33, s{S_RBY}, 20480'); A(f's_add_u32 s33, s33, {O(L)}')
        A.wait_vm()
        A('s_mov_b64 exec, 1')
        self.fstore([f'buffer_store_dword v{L16}, off, s[8:11], s30'])
        A('s_mov_b64 exec, -1')
        self.stamp('f2')
        for f in range(9): emit_items(A, [woread(f)])
        self.poll([f'buffer_load_dword v{T1}, v{T0}, s[8:11], s32 offen sc1'], [T1], None)
        self.stamp('e2')
        for kk in range(20):
            if kk % 4 == 0 and kk: A('s_add_u32 s33, s33, 4096')
            A(f'buffer_load_dwordx4 {vr(OF+4*kk,4)}, v{L16}, s[8:11], s33 offen offset:{1024*(kk%4)} sc1', tag=f'o{kk}')
        if final:
            A('s_mov_b32 s16, s78'); A('s_and_b32 s17, s79, 0xffff'); A(f's_mov_b32 s18, {2048*640*2}')
            A(f'v_and_b32 v{T0}, 15, v0'); A(f'v_mul_u32_u24 v{T0}, 1280, v{T0}'); A(f'v_lshrrev_b32 v{T1}, 4, v0')
            A(f'v_lshl_add_u32 v{VR[0]}, v{T1}, 4, v{T0}'); A(f'v_lshl_add_u32 v{VR[1]}, v{T1}, 3, v{T0}')
            A(f's_mul_i32 s30, s{S_RBY}, 20480'); A(f's_mul_i32 s31, s{S_CG}, 160'); A('s_add_u32 s30, s30, s31')
        else:
            if DBG[0] or L == 0: self.srd_x(L + 1)
            A(f's_bfe_u32 s30, s{S_RBY}, 0x20001'); A('s_mul_i32 s30, s30, 40960'); A(f's_mul_i32 s31, s{S_CG}, 5120')
            xa = [(VX, 0), (VX, 2048), (VX3, 0)]
            if T == 'B':
                A(f's_lshl_b32 s32, s{S_ROT}, 12'); A('s_sub_u32 s31, s31, s32'); A('s_add_u32 s32, s31, 40960'); A('s_min_u32 s31, s31, s32')
                A(f'v_add_u32 v{VR[0]}, s31, v{VX}'); A(f'v_add_u32 v{VR[1]}, 0x800, v{VR[0]}'); A(f'v_add_u32 v{VRL[0]}, s31, v{VX3}')
                xa = [(VR[0], 0), (VR[1], 0), (VRL[0], 0)]
                for r, _ in xa:
                    A(f'v_subrev_u32 v{T0}, 40960, v{r}'); A(f'v_min_u32 v{r}, v{r}, v{T0}')
            else: A('s_add_u32 s30, s30, s31')
            A(f's_lshl_b32 s31, s{S_RBY}, 10'); A(f's_lshl_b32 s32, s{S_CG}, 7'); A('s_add_u32 s31, s31, s32')
            A(f's_add_u32 s31, s31, {ST(L+1)}')
            A(f'v_lshlrev_b32 v{T0}, 3, v0')
        for kk in range(20):
            A.wait_vm(f'o{kk}')
            if kk == 0: self.stamp('o0_')
            for mt in range(5):
                f = 5 * kk + mt
                if f + 9 < 100: emit_items(A, [woread(f + 9)])
                A.wait_lg(f'wr{f}')
                A(f'v_mfma_f32_16x16x32_bf16 {vr(YA+4*mt,4)}, {vr(WR+4*(f%10),4)}, {vr(OF+4*kk,4)}, {vr(YA+4*mt,4)}')
        self.stamp('y')
        for k in range(10):
            A(f'v_cvt_pk_bf16_f32 v{XOLD+k}, v{YA+2*k}, v{YA+2*k+1}')
        if final:
            A(f'buffer_store_dwordx4 {vr(XOLD,4)}, v{VR[0]}, s[16:19], s30 offen')
            A(f'buffer_store_dwordx4 {vr(XOLD+4,4)}, v{VR[0]}, s[16:19], s30 offen offset:64')
            A(f'buffer_store_dwordx2 {vr(XOLD+8,2)}, v{VR[1]}, s[16:19], s30 offen offset:128')
            return
        self.fstore([f'buffer_store_dwordx4 {vr(XOLD,4)}, v{xa[0][0]}, s[12:15], s30 offen',
                     f'buffer_store_dwordx4 {vr(XOLD+4,4)}, v{xa[1][0]}, s[12:15], s30 offen offset:{xa[1][1]}',
                     f'buffer_store_dwordx2 {vr(XOLD+8,2)}, v{xa[2][0]}, s[12:15], s30 offen'])
        U = OF; a = OF + 20; b = OF + 22; c = OF + 24
        for k in range(10):
            A(f'v_lshlrev_b32 v{U+2*k}, 16, v{XOLD+k}')
            A(f'v_and_b32 v{U+2*k+1}, 0xffff0000, v{XOLD+k}')
        A(f'v_pk_add_f32 {vr(a,2)}, {vr(U,2)}, {vr(U+2,2)}')
        A(f'v_pk_add_f32 {vr(b,2)}, {vr(U+4,2)}, {vr(U+6,2)}')
        for k in range(4, 10, 2):
            A(f'v_pk_add_f32 {vr(a,2)}, {vr(a,2)}, {vr(U+2*k,2)}')
            A(f'v_pk_add_f32 {vr(b,2)}, {vr(b,2)}, {vr(U+2*k+2,2)}')
        A(f'v_pk_add_f32 {vr(a,2)}, {vr(a,2)}, {vr(b,2)}')
        def allsum(x, y):
            A(f'v_mov_b32 v{y}, v{x}')
            A(f'v_permlane16_swap_b32 v{x}, v{y}')
            A(f'v_add_f32 v{x}, v{x}, v{y}')
            A(f'v_mov_b32 v{y}, v{x}')
            A(f'v_permlane32_swap_b32 v{x}, v{y}')
            A(f'v_add_f32 v{x}, v{x}, v{y}')
        A(f'v_add_f32 v{a}, v{a}, v{a+1}')
        allsum(a, a + 1)
        A(f'v_mul_f32 v{a}, 0x3c4ccccd, v{a}')
        A(f'v_mul_f32 v{b}, -1.0, v{a}')
        A(f'v_mul_f32 v{b+1}, -1.0, v{a}')
        for k in range(10):
            A(f'v_pk_add_f32 {vr(U+2*k,2)}, {vr(U+2*k,2)}, {vr(b,2)}')
        A(f'v_pk_mul_f32 {vr(b,2)}, {vr(U,2)}, {vr(U,2)}')
        A(f'v_pk_mul_f32 {vr(c,2)}, {vr(U+2,2)}, {vr(U+2,2)}')
        for k in range(2, 10, 2):
            A(f'v_pk_fma_f32 {vr(b,2)}, {vr(U+2*k,2)}, {vr(U+2*k,2)}, {vr(b,2)}')
            A(f'v_pk_fma_f32 {vr(c,2)}, {vr(U+2*k+2,2)}, {vr(U+2*k+2,2)}, {vr(c,2)}')
        A(f'v_pk_add_f32 {vr(b,2)}, {vr(b,2)}, {vr(c,2)}')
        A(f'v_add_f32 v{a+1}, v{b}, v{b+1}')
        allsum(a + 1, b)
        A(f'v_mov_b32 v{VC+3}, 0x3f80')
        for k in range(4): A(f'v_mov_b32 v{SENT+k}, -1')
        A.wait_vm()
        A('s_mov_b64 exec, 0xffff')
        self.fstore([f'buffer_store_dwordx2 {vr(a,2)}, v{T0}, s[8:11], s31 offen'])
        A('s_mov_b64 exec, -1')
        self.stamp('xs')

    def gen(self):
        self.prologue()
        for L in range(self.nl): self.layer(L)
        A = self.A
        A.prof_end()
        A.label(f'{self.name}_END')
        A('s_endpgm')
        return A.text()

def make(path, prof=False, nl=4, dbg=False, sl=(0, 1, 2, 3), opt=None):
    import gen, json, emit
    DBG[0] = dbg
    p = P('pk', prof=1 if prof else None, nl=nl, stamp_layers=sl, opt=opt)
    ks = [('pk_kernel', p.gen(), 512, 256)]
    ls = [('pk_kernel', 256, P_LDS)]
    gen.build(ks, ls, path)
    if prof: json.dump(emit.PROF_NAMES, open(path + '.names', 'w'))
    print('nops', p.A.nops, 'lines', len(p.A.lines))

if __name__ == '__main__':
    import sys
    kw = eval('dict(' + (sys.argv[2] if len(sys.argv) > 2 else '') + ')')
    make(sys.argv[1], **kw)
```
